```python
import torch

def _softmax(x, axis=-1):
    return torch.softmax(x, dim=axis)
def _gelu(x):
    return torch.nn.functional.gelu(x, approximate="tanh")
def _silu(x):
    return torch.nn.functional.silu(x)
def _sigmoid(x):
    return torch.sigmoid(x)
def _layernorm(x, axis=-1, eps=1e-5):
    m = x.mean(dim=axis, keepdim=True)
    v = x.var(dim=axis, keepdim=True, unbiased=False)
    return (x - m) / torch.sqrt(v + eps)
def _scatter_add(tgt, idx, src, axis=0):
    return tgt.clone().index_add_(axis, idx, src)
def _segment_sum(src, seg, n):
    out = torch.zeros((n,) + src.shape[1:], dtype=src.dtype)
    return out.index_add_(0, seg, src)
def _pad(x, pw):
    flat = tuple(v for pair in reversed(pw) for v in pair)
    return torch.nn.functional.pad(x, flat)

kernel_name = 'gated_mix__sliding_block_cached__dense_activation_silu__decode'

def setup_inputs():

    _w = (lambda a: (lambda t: t.to(torch.bfloat16) if t.is_floating_point() else t)(torch.as_tensor(a)))
    def _A_setup():
        B, Sq, D = 2, 1, 512
        Hq, Hkv, Sk, Dh = 32, 8, 32768, 128
        assert Hq % Hkv == 0, (Hq, Hkv)
        return {
            "x": _w((lambda *s: torch.randn(*s, dtype=torch.bfloat16) * 0.05)(B, Sq, D)),
            "k_cache": _w((lambda *s: torch.randn(*s, dtype=torch.bfloat16) * 6.4)(B, Hkv, Sk, Dh)),
            "v_cache": _w((lambda *s: torch.randn(*s, dtype=torch.bfloat16) * 0.8)(B, Hkv, Sk, Dh)),
            "wq": _w((lambda *s: torch.randn(*s, dtype=torch.bfloat16) * 6.4)(D, Hq * Dh) * (D ** -0.5)),
            "wo": _w((lambda *s: torch.randn(*s, dtype=torch.bfloat16) * 0.8)(Hq * Dh, D) * ((Hq * Dh) ** -0.5)),
        }
    _A_in = _A_setup()

    def _B_setup():
        B, S, D, F = 2, 1, 512, 1792
        return {
            "x": _w((lambda *s: torch.randn(*s, dtype=torch.bfloat16) * 0.05)(B, S, D)),
            "w1": _w((lambda *s: torch.randn(*s, dtype=torch.bfloat16) * 12.8)(D, F) * (D ** -0.5)),
            "w2": _w((lambda *s: torch.randn(*s, dtype=torch.bfloat16) * 0.4)(F, D) * (F ** -0.5)),
        }
    _B_in = _B_setup()

    return {
        "A_x": _A_in["x"],
        "A_k_cache": _A_in["k_cache"],
        "A_v_cache": _A_in["v_cache"],
        "A_wq": _A_in["wq"],
        "A_wo": _A_in["wo"],
        "B_x": _B_in["x"],
        "B_w1": _B_in["w1"],
        "B_w2": _B_in["w2"],
        "gate_w": _w((lambda *s: torch.randn(*s, dtype=torch.bfloat16) * 0.05)(512) * 16.0),
    }

def reference(A_x, A_k_cache, A_v_cache, A_wq, A_wo, B_x, B_w1, B_w2, gate_w):
    def _A_ref(x, k_cache, v_cache, wq, wo):
        B, Sq, D = x.shape
        Hq, Dh = 32, 128
        Hkv, Sk = k_cache.shape[1], k_cache.shape[2]
        W = min(4096, max(256, Sk // 4))
        rep = Hq // Hkv
        q = (lambda x, *d: x.permute(*d))((x @ wq).reshape(B, Sq, Hq, Dh), 0, 2, 1, 3)
        k = (lambda x, n, axis: torch.repeat_interleave(x, n, dim=axis))(k_cache[:, :, Sk - W:, :], rep, axis=1)
        v = (lambda x, n, axis: torch.repeat_interleave(x, n, dim=axis))(v_cache[:, :, Sk - W:, :], rep, axis=1)
        scores = torch.einsum("bhqd,bhkd->bhqk", q, k) * (Dh ** -0.5)
        p = _softmax(scores, axis=-1)
        o = torch.einsum("bhqk,bhkd->bhqd", p, v)
        return (lambda x, *d: x.permute(*d))(o, 0, 2, 1, 3).reshape(B, Sq, Hq * Dh) @ wo

    def _B_ref(x, w1, w2):
        h = torch.einsum("bsd,df->bsf", x, w1)
        h = _silu(h)
        out = torch.einsum("bsf,fd->bsd", h, w2)
        return out

    x = A_x
    g = _sigmoid((x * gate_w).sum(-1, keepdims=True))
    a = _A_ref(x, A_k_cache, A_v_cache, A_wq, A_wo)
    b = _B_ref(x, B_w1, B_w2)
    return g * a + (1 - g) * b
```

```python
KNAME = "gated_mix__sliding_block_cached__dense_activation_silu__decode_kernel"

class A:
    def __init__(self):
        self.l = []
    def __call__(self, s=""):
        for line in s.split("\n"):
            self.l.append(line)
    def text(self):
        return "\n".join(self.l) + "\n"

def header(grid, block, lds, kname=KNAME):
    return f"""; @launch grid=({grid},1,1) block=({block},1,1) lds={lds}
.amdgcn_target "amdgcn-amd-amdhsa--gfx950"
.text
.globl {kname}
.p2align 8
.type {kname},@function
{kname}:
"""

def footer(vgpr=256, sgpr=102, accum=None, kname=KNAME):
    if accum is None:
        accum = min(256, (vgpr + 3) // 4 * 4)
    return f""".section .rodata,"a"
.p2align 6
.amdhsa_kernel {kname}
  .amdhsa_next_free_vgpr {vgpr}
  .amdhsa_next_free_sgpr {sgpr}
  .amdhsa_accum_offset {accum}
  .amdhsa_group_segment_fixed_size 0
  .amdhsa_kernarg_size 96
  .amdhsa_user_sgpr_count 2
  .amdhsa_user_sgpr_kernarg_segment_ptr 1
  .amdhsa_system_sgpr_workgroup_id_x 1
.end_amdhsa_kernel
"""
```

```python
import re

REG_RE = re.compile(r'^(-|\|)?([vsa])(\d+)\|?$')
RNG_RE = re.compile(r'^(-|\|)?([vsa])\[(\d+):(\d+)\]\|?$')

def regs_of(op):
    op = op.strip()
    if op.startswith("abs(") and op.endswith(")"):
        op = op[4:-1]
    if op.startswith("neg(") and op.endswith(")"):
        op = op[4:-1]
    m = REG_RE.match(op)
    if m:
        return {(m.group(2), int(m.group(3)))}
    m = RNG_RE.match(op)
    if m:
        return {(m.group(2), i) for i in range(int(m.group(3)), int(m.group(4)) + 1)}
    if op == "vcc":
        return {("s", "vcc_lo"), ("s", "vcc_hi")}
    if op in ("vcc_lo", "vcc_hi"):
        return {("s", op)}
    if op == "exec":
        return {("s", "exec_lo"), ("s", "exec_hi")}
    if op in ("exec_lo", "exec_hi", "m0"):
        return {("s", op)}
    return set()

TRANS = ("v_exp_f32", "v_log_f32", "v_rcp_f32", "v_rsq_f32", "v_sqrt_f32", "v_sin_f32", "v_cos_f32", "v_rcp_iflag_f32")
MFMA_PASSES = {"v_mfma_f32_16x16x32_bf16": 4, "v_mfma_f32_32x32x16_bf16": 8, "v_mfma_f32_16x16x16_bf16": 4,
               "v_mfma_f32_16x16x4_f32": 8, "v_mfma_f32_32x32x2_f32": 16, "v_mfma_f32_4x4x4_16b_bf16": 2,
               "v_mfma_f32_16x16x32_f16": 4}

class I:
    pass

def parse(line):
    s = line.split(";")[0].strip()
    if not s or s.endswith(":") or s.startswith("."):
        return None
    parts = s.split(None, 1)
    mn = parts[0]
    rest = parts[1] if len(parts) > 1 else ""
    ops = []
    cur = ""; depth = 0
    for ch in rest:
        if ch == "[": depth += 1
        if ch == "]": depth -= 1
        if ch == "," and depth == 0:
            ops.append(cur.strip()); cur = ""
        else:
            cur += ch
    if cur.strip(): ops.append(cur.strip())
    mods = ""
    if ops:
        last = ops[-1].split(None, 1)
        ops[-1] = last[0]
        mods = last[1] if len(last) > 1 else ""
    i = I()
    i.mn = mn; i.ops = ops; i.mods = mods
    base = re.sub(r'_(e32|e64|dpp|sdwa)$', '', mn)
    i.base = base
    i.kind = "other"
    i.w = set(); i.r = set()
    i.dpp = ("row_" in mods or "quad_perm" in mods or "wave_" in mods or mn.endswith("_dpp"))
    R = [regs_of(o) for o in ops]
    if base.startswith("v_mfma"):
        i.kind = "mfma"; i.w = R[0]; i.A = R[1]; i.B = R[2]; i.C = R[3]; i.r = R[1] | R[2] | R[3]
        i.passes = MFMA_PASSES[base]
    elif base.startswith("v_"):
        i.kind = "valu"
        if base.startswith("v_cmpx"):
            i.w = R[0] | regs_of("exec"); i.r = set().union(*R[1:])
        elif base.startswith("v_cmp"):
            i.w = R[0]; i.r = set().union(*R[1:]) if len(R) > 1 else set()
        elif base in ("v_add_co_u32", "v_sub_co_u32", "v_subrev_co_u32"):
            i.w = R[0] | R[1]; i.r = set().union(*R[2:])
        elif base in ("v_addc_co_u32", "v_subb_co_u32"):
            i.w = R[0] | R[1]; i.r = set().union(*R[2:])
        elif base in ("v_permlane32_swap_b32", "v_permlane16_swap_b32", "v_swap_b32"):
            i.w = R[0] | R[1]; i.r = R[0] | R[1]
        elif base in ("v_fmac_f32", "v_mac_f32", "v_dot2c_f32_bf16", "v_writelane_b32", "v_pk_fmac_f16"):
            i.w = R[0]; i.r = set().union(*R)
        elif base == "v_nop":
            pass
        else:
            i.w = R[0]; i.r = set().union(*R[1:]) if len(R) > 1 else set()
            if base == "v_cndmask_b32" and len(ops) == 3:
                i.r |= regs_of("vcc")
            if i.dpp:
                i.r |= R[0]
        i.trans = base in TRANS
    elif base.startswith("buffer_") or base.startswith("global_") or base.startswith("flat_"):
        i.kind = "vmem"
        lds = " lds" in (" " + mods) or base.startswith("global_load_lds")
        i.lds = lds
        if "load" in base and not lds:
            i.w = R[0]; i.r = set().union(*R[1:])
        elif "atomic" in base and ("sc0" in mods):
            i.w = R[0]; i.r = set().union(*R)
        else:
            i.r = set().union(*R) if R else set()
        i.store_data = set()
        if "store" in base:
            i.store_data = R[0] if base.startswith("buffer_") else R[1]
        i.wide = ("x3" in base or "x4" in base) and "store" in base
        if lds: i.r |= {("s", "m0")}
    elif base.startswith("ds_"):
        i.kind = "ds"
        if "read" in base or "bpermute" in base or "permute" in base or "swizzle" in base or "rtn" in base:
            i.w = R[0]; i.r = set().union(*R[1:]) if len(R) > 1 else set()
        else:
            i.r = set().union(*R) if R else set()
    elif base.startswith("s_"):
        i.kind = "salu"
        if base == "s_nop":
            i.nop = int(ops[0], 0) + 1
        if base.startswith("s_cmp") or base in ("s_waitcnt", "s_barrier", "s_branch", "s_endpgm", "s_nop", "s_sleep", "s_setprio") or base.startswith("s_cbranch"):
            i.r = set().union(*R) if R else set()
        elif base.startswith("s_load") or base.startswith("s_buffer_load") or base in ("s_memtime", "s_memrealtime"):
            i.kind = "smem"; i.w = R[0]; i.r = set().union(*R[1:]) if len(R) > 1 else set()
        else:
            i.w = R[0] if R else set(); i.r = set().union(*R[1:]) if len(R) > 1 else set()
            if "saveexec" in base:
                i.w |= regs_of("exec"); i.r |= regs_of("exec")
    return i

def isv(rs):
    return {r for r in rs if r[0] in ("v", "a")}
def iss(rs):
    return {r for r in rs if r[0] == "s"}

def need(p, c):
    n = 0
    if p.kind == "valu":
        pv = isv(p.w); ps = iss(p.w)
        if c.kind == "mfma" and pv & c.r: n = max(n, 2)
        if c.kind == "valu":
            if c.dpp and pv & c.r: n = max(n, 2)
            if c.base.startswith("v_permlane") and pv & c.r: n = max(n, 2)
            if c.base in ("v_readlane_b32", "v_readfirstlane_b32") and pv & c.r: n = max(n, 1)
            if getattr(p, "trans", False) and pv & c.r: n = max(n, 1)
            if ps & c.r:
                n = max(n, 2)
                if c.base in ("v_readlane_b32", "v_writelane_b32"): n = max(n, 4)
                if c.base.startswith("v_div_fmas"): n = max(n, 4)
            if ("s", "exec_lo") in ps:
                if c.dpp: n = max(n, 5)
                if c.base in ("v_readlane_b32", "v_readfirstlane_b32", "v_writelane_b32") or c.base.startswith("v_permlane"): n = max(n, 4)
            if "op_sel" in p.mods or "sdwa" in p.mn:
                if pv & (c.r | c.w): n = max(n, 1)
        if c.kind == "vmem" and ps & c.r: n = max(n, 5)
        if c.kind in ("salu", "smem") and ps & c.r: n = max(n, 3)
        if c.kind == "mfma" and ("s", "exec_lo") in ps: n = max(n, 4)
        if getattr(p, "trans", False) and c.kind in ("vmem", "ds") and pv & c.r: n = max(n, 1)
    if p.kind == "mfma":
        P = p.passes
        rd = {2: 5, 4: 8, 8: 12, 16: 20}[P]
        if c.kind == "mfma":
            if p.w & (c.A | c.B): n = max(n, rd)
            if p.w & c.C:
                if p.w == c.C and c.passes == P:
                    n = max(n, 2 if P == 2 else 0)
                else:
                    n = max(n, {2: 4, 4: 6, 8: 10, 16: 18}[P])
            elif p.w & c.w:
                n = max(n, rd)
        elif c.kind in ("valu", "vmem", "ds"):
            if p.w & (c.r | c.w): n = max(n, rd)
            if c.kind == "valu" and (p.C & c.w): n = max(n, {2: 1, 4: 3, 8: 7, 16: 15}[P])
    if p.kind == "salu":
        if ("s", "m0") in p.w and c.kind == "vmem" and getattr(c, "lds", False): n = max(n, 1)
    if p.kind == "vmem" and getattr(p, "wide", False):
        if c.kind == "valu" and p.store_data & c.w: n = max(n, 2)
        elif p.store_data & c.w: n = max(n, 1)
    return n

def fix(text, verbose=False):
    out = []
    hist = []
    nins = 0
    for line in text.split("\n"):
        c = parse(line)
        if c is None:
            out.append(line); continue
        dist = 0
        add = 0
        for p in reversed(hist):
            k = need(p, c)
            if k > dist: add = max(add, k - dist)
            dist += getattr(p, "nop", 1)
            if dist > 24: break
        if add:
            nins += 1
            left = add
            while left > 0:
                k = min(left, 16)
                nl = f"    s_nop {k-1}"
                out.append(nl + "   ; auto")
                hist.append(parse(nl)); left -= k
        out.append(line)
        hist.append(c)
        if len(hist) > 40: hist = hist[-40:]
    if verbose: print("hazard: inserted", nins, "nops")
    return "\n".join(out)
```

```python
import sys
from asmlib import A
import hazard

BASE = "gated_mix__sliding_block_cached__dense_activation_silu__decode"
NT = " nt"

WS_QP   = 0x10000
WS_HP   = 0x50000
WS_AP   = 0x100000
WS_ST   = 0x200000
WS_OP   = 0x300000

S_X, S_K, S_V, S_WQ, S_WO, S_W1, S_W2, S_GW, S_OUT, S_WS = 8, 12, 16, 20, 24, 28, 32, 36, 40, 44
def srd(b): return f"s[{b}:{b+3}]"

def prologue(a, need):
    tab = {"x": (S_X, 0, 2048), "k": (S_K, 8, 1 << 27), "v": (S_V, 16, 1 << 27), "wq": (S_WQ, 24, 1 << 22),
           "wo": (S_WO, 32, 1 << 22), "w1": (S_W1, 48, 512*1792*2), "w2": (S_W2, 56, 512*1792*2),
           "gw": (S_GW, 64, 1024), "out": (S_OUT, 72, 2048), "ws": (S_WS, 88, 1 << 29)}
    for n in need:
        b, off, sz = tab[n]
        a(f"    s_load_dwordx2 s[{b}:{b+1}], s[0:1], {off}")
    for n in need:
        b, off, sz = tab[n]
        a(f"    s_mov_b32 s{b+2}, {hex(sz)}")
        a(f"    s_mov_b32 s{b+3}, 0x20000")
    a("""    v_lshrrev_b32 v1, 6, v0
    v_and_b32 v0, 63, v0                  ; v0 = lane
    v_readfirstlane_b32 s3, v1            ; s3 = wave""")

def onehot_masks(a, m0, t0=60, t1=61, t2=62):
    a(f"""    v_and_b32 v{t0}, 1, v0
    v_mov_b32 v{t1}, 0xffff
    v_mov_b32 v{t2}, 0xffff0000
    v_cmp_eq_u32 vcc, 1, v{t0}
    v_cndmask_b32 v{t1}, v{t1}, v{t2}, vcc
    v_bfe_u32 v{t0}, v0, 1, 2                 ; (lane>>1)&3""")
    for r in range(4):
        a(f"""    v_cmp_eq_u32 vcc, {r}, v{t0}
    v_cndmask_b32 v{m0+r}, 0, v{t1}, vcc""")

def kernel_head(a, name):
    a(f""".text
.globl {name}
.p2align 8
.type {name},@function
{name}:""")

def kernel_desc(name, vgpr, sgpr=102):
    acc = min(256, (vgpr + 3) // 4 * 4)
    return f""".section .rodata,"a"
.p2align 6
.amdhsa_kernel {name}
  .amdhsa_next_free_vgpr {vgpr}
  .amdhsa_next_free_sgpr {sgpr}
  .amdhsa_accum_offset {acc}
  .amdhsa_group_segment_fixed_size 0
  .amdhsa_kernarg_size 96
  .amdhsa_user_sgpr_count 2
  .amdhsa_user_sgpr_kernarg_segment_ptr 1
  .amdhsa_system_sgpr_workgroup_id_x 1
.end_amdhsa_kernel
"""

def k1(a):
    name = "p1_kernel"
    kernel_head(a, name)
    a(f"""    s_cmp_ge_u32 s2, 256
    s_cbranch_scc1 L_k1_end""")
    prologue(a, ["x", "wq", "w1", "ws"])
    a(f"""    s_and_b32 s50, s2, 7                  ; hkv
    s_lshr_b32 s51, s2, 3                 ; j
    s_and_b32 s52, s51, 7                 ; cb
    s_lshr_b32 s53, s51, 3                ; ks
    s_lshl_b32 s54, s53, 7
    s_lshl_b32 s55, s3, 5
    s_add_u32 s54, s54, s55
    s_lshl_b32 s56, s54, 13               ; *8192
    s_lshl_b32 s57, s50, 10               ; hkv*512*2
    s_lshl_b32 s58, s52, 7                ; cb*128
    s_add_u32 s57, s57, s58
    s_add_u32 s56, s56, s57
    ; w1: fb = c % 28, ks8 = c / 28
    s_mul_i32 s59, s2, 2341               ; c*2341 >> 16 == c/28 for c<256
    s_lshr_b32 s59, s59, 16               ; ks8
    s_mul_i32 s60, s59, 28
    s_sub_u32 s60, s2, s60                ; fb
    s_lshl_b32 s61, s59, 6
    s_lshl_b32 s62, s3, 4
    s_add_u32 s61, s61, s62
    s_mul_i32 s62, s61, 3584
    s_lshl_b32 s63, s60, 7
    s_add_u32 s62, s62, s63               ; w1 soffset
    v_lshrrev_b32 v5, 3, v0               ; l>>3
    v_and_b32 v6, 7, v0
    v_lshlrev_b32 v6, 4, v6               ; (l&7)*16
    v_lshlrev_b32 v7, 15, v5              ; 4*(l>>3)*8192
    v_add_u32 v7, v7, v6
    v_mul_u32_u24 v8, {2*3584}, v5
    v_add_u32 v8, v8, v6                  ; w1 voffset
    v_lshlrev_b32 v9, 3, v5
    v_lshlrev_b32 v10, 2, v5
    s_lshl_b32 s64, s54, 1
    s_lshl_b32 s65, s61, 1                ; x soffset w1
    s_waitcnt lgkmcnt(0)
    buffer_load_dwordx2 v[20:21], v9, {srd(S_X)}, s64 offen
    buffer_load_dwordx2 v[22:23], v9, {srd(S_X)}, s64 offen offset:1024
    buffer_load_dword v24, v10, {srd(S_X)}, s65 offen
    buffer_load_dword v25, v10, {srd(S_X)}, s65 offen offset:1024""")
    for t in range(4):
        a(f"""    buffer_load_dwordx4 v[{32+4*t}:{35+4*t}], v7, {srd(S_WQ)}, s56 offen{NT}""")
        if t < 3: a("    s_add_u32 s56, s56, 8192")
    for t in range(2):
        a(f"""    buffer_load_dwordx4 v[{48+4*t}:{51+4*t}], v8, {srd(S_W1)}, s62 offen{NT}""")
        if t < 1: a("    s_add_u32 s62, s62, 3584")
    onehot_masks(a, 12)
    a("""    s_mov_b32 s66, 0x01000100
    s_mov_b32 s67, 0x03020302""")
    for r in range(56, 72): a(f"    v_mov_b32 v{r}, 0")
    a("    s_waitcnt vmcnt(6)")
    for b in range(2):
        for t in range(4):
            src = 20 + 2*b + (t >> 1)
            sel = "s66" if (t & 1) == 0 else "s67"
            a(f"    v_perm_b32 v26, v{src}, v{src}, {sel}")
            for r in range(4):
                a(f"    v_and_b32 v{72+(b*4+t)*4+r}, v26, v{12+r}")
        for t in range(2):
            src = 24 + b
            sel = "s66" if t == 0 else "s67"
            a(f"    v_perm_b32 v26, v{src}, v{src}, {sel}")
            for r in range(4):
                a(f"    v_and_b32 v{104+(b*2+t)*4+r}, v26, v{12+r}")
    for t in range(4):
        a(f"    s_waitcnt vmcnt({5-t})")
        for b in range(2):
            A0 = 72+(b*4+t)*4
            a(f"    v_mfma_f32_16x16x32_bf16 v[{56+4*b}:{59+4*b}], v[{A0}:{A0+3}], v[{32+4*t}:{35+4*t}], v[{56+4*b}:{59+4*b}]")
    for t in range(2):
        a(f"    s_waitcnt vmcnt({1-t})")
        for b in range(2):
            A0 = 104+(b*2+t)*4
            a(f"    v_mfma_f32_16x16x32_bf16 v[{64+4*b}:{67+4*b}], v[{A0}:{A0+3}], v[{48+4*t}:{51+4*t}], v[{64+4*b}:{67+4*b}]")
    a(f"""    v_bfe_u32 v2, v0, 3, 1                ; rsel
    v_lshrrev_b32 v3, 5, v0               ; l>>5
    v_cmp_eq_u32 vcc, v2, v3
    v_lshlrev_b32 v4, 9, v2               ; rsel*512
    v_and_b32 v5, 7, v0
    v_lshlrev_b32 v5, 5, v5               ; (l&7)*32
    v_bfe_u32 v6, v0, 4, 1
    v_lshlrev_b32 v6, 4, v6               ; *16
    v_add3_u32 v4, v4, v5, v6
    s_lshl_b32 s68, s3, 10                ; w*1024
    v_add_u32 v4, s68, v4
    s_and_saveexec_b64 s[70:71], vcc
    ds_write_b128 v4, v[56:59]
    ds_write_b128 v4, v[60:63] offset:256
    ds_write_b128 v4, v[64:67] offset:4096
    ds_write_b128 v4, v[68:71] offset:4352
    s_mov_b64 exec, s[70:71]
    s_waitcnt lgkmcnt(0)
    s_barrier
    s_lshr_b32 s72, s3, 1                 ; region
    s_and_b32 s73, s3, 1                  ; b
    s_lshl_b32 s74, s72, 12
    s_lshl_b32 s75, s73, 8
    s_add_u32 s74, s74, s75
    v_lshlrev_b32 v4, 2, v0
    v_add_u32 v4, s74, v4""")
    for k in range(8):
        a(f"    ds_read_b32 v{20+k}, v4 offset:{k*512}")
    a("""    s_waitcnt lgkmcnt(0)
    v_add_f32 v20, v20, v21
    v_add_f32 v22, v22, v23
    v_add_f32 v24, v24, v25
    v_add_f32 v26, v26, v27
    v_add_f32 v20, v20, v22
    v_add_f32 v24, v24, v26
    v_add_f32 v20, v20, v24
    v_mov_b32 v21, 0x12345""")
    a(f"""    s_cmp_eq_u32 s72, 0
    s_cbranch_scc0 L_k1_h
    s_lshl_b32 s76, s53, 1
    s_add_u32 s76, s76, s73
    s_lshl_b32 s76, s76, 15               ; *4096*8
    s_lshl_b32 s77, s57, 2                ; C0*8
    s_add_u32 s76, s76, s77
    s_add_u32 s76, s76, {WS_QP}
    s_branch L_k1_st
L_k1_h:
    s_cmp_ge_u32 s2, 224
    s_cbranch_scc1 L_k1_end
    s_lshl_b32 s76, s59, 1
    s_add_u32 s76, s76, s73
    s_mul_i32 s76, s76, {1792*8}
    s_lshl_b32 s77, s60, 9                ; fb*64*8
    s_add_u32 s76, s76, s77
    s_add_u32 s76, s76, {WS_HP}
L_k1_st:
    v_lshlrev_b32 v4, 3, v0
    buffer_store_dwordx2 v[20:21], v4, {srd(S_WS)}, s76 offen
L_k1_end:
    s_endpgm
""")
    return kernel_desc(name, 128)

LDS_Q = 0
LDS_OW = 1024
LDS_SW = LDS_OW + 4*2304
LDS_V = 16384
K2_LDS = LDS_V + 65536

def k2(a):
    name = "attn_kernel"
    kernel_head(a, name)
    a(f"""    s_cmp_ge_u32 s2, 256
    s_cbranch_scc1 L_k2_end""")
    prologue(a, ["k", "v", "ws"])
    a(f"""    s_and_b32 s50, s2, 7                  ; hkv
    s_lshr_b32 s51, s2, 3                 ; j
    s_lshr_b32 s52, s51, 4                ; b
    s_and_b32 s53, s51, 15                ; s
    s_lshl_b32 s54, s52, 3
    s_add_u32 s54, s54, s50               ; b*8+hkv
    s_lshl_b32 s54, s54, 23
    s_lshl_b32 s55, s53, 16               ; s*256*256
    s_add_u32 s54, s54, s55
    s_lshl_b32 s55, s3, 14                ; w*64*256
    s_add_u32 s54, s54, s55
    s_add_u32 s54, s54, {(32768-4096)*256}
    ; K voffset = (l&15)*256 + (l>>4)*16
    v_and_b32 v2, 15, v0
    v_lshrrev_b32 v3, 4, v0
    v_lshlrev_b32 v4, 8, v2
    v_lshl_add_u32 v4, v3, 4, v4          ; v4 = K voffset
    v_lshlrev_b32 v5, 1, v3
    v_xor_b32 v5, v5, v2
    v_lshlrev_b32 v5, 4, v5
    v_lshl_add_u32 v5, v3, 8, v5          ; v5 = even
    v_xor_b32 v6, 128, v5                 ; v6 = odd
    s_lshl_b32 s56, s52, 15               ; b*4096*8
    s_lshl_b32 s57, s50, 12               ; hkv*512*8
    s_add_u32 s56, s56, s57
    s_lshl_b32 s57, s3, 10                ; w*64*16
    s_add_u32 s56, s56, s57
    s_add_u32 s56, s56, {WS_QP}
    v_lshlrev_b32 v7, 4, v0               ; l*16
    s_waitcnt lgkmcnt(0)""")
    for ks in range(4):
        a(f"    buffer_load_dwordx4 v[{16+4*ks}:{19+4*ks}], v7, {srd(S_WS)}, s56 offen")
        if ks < 3: a(f"    s_add_u32 s56, s56, {2*4096*8}")
    a("    s_mov_b32 s58, s54")
    for T in range(4):
        for t in range(4):
            r = 64 + (T*4+t)*4
            a(f"    buffer_load_dwordx4 v[{r}:{r+3}], v4, {srd(S_K)}, s58 offen offset:{t*64}{NT}")
        if T < 3: a("    s_add_u32 s58, s58, 4096")
    a(f"""    s_lshl_b32 s59, s3, 14
    s_add_u32 s59, s59, {LDS_V}
    s_mov_b32 s58, s54""")
    for n4 in range(4):
        a(f"    s_mov_b32 m0, s59")
        for k in range(4):
            n = n4*4+k
            a(f"    buffer_load_dwordx4 v{5 + (n & 1)}, {srd(S_V)}, s58 offen offset:{k*1024}{NT} lds")
        if n4 < 3:
            a("    s_add_u32 s59, s59, 4096")
            a("    s_add_u32 s58, s58, 4096")
    a(f"""    s_waitcnt vmcnt(32)
    v_add_f32 v16, v16, v20
    v_add_f32 v18, v18, v22
    v_add_f32 v24, v24, v28
    v_add_f32 v26, v26, v30
    v_add_f32 v16, v16, v24
    v_add_f32 v18, v18, v26
    v_cvt_pk_bf16_f32 v16, v16, v18
    v_lshlrev_b32 v8, 2, v0
    s_lshl_b32 s60, s3, 8
    v_add_u32 v8, s60, v8
    ds_write_b32 v8, v16 offset:{LDS_Q}
    s_waitcnt lgkmcnt(0)
    s_barrier
    v_and_b32 v8, 3, v0
    v_lshlrev_b32 v8, 8, v8
    v_lshl_add_u32 v8, v3, 4, v8""")
    for t in range(4):
        a(f"    ds_read_b128 v[{32+4*t}:{35+4*t}], v8 offset:{LDS_Q + t*64}")
    for r in range(48, 64): a(f"    v_mov_b32 v{r}, 0")
    a("    s_waitcnt lgkmcnt(0)")
    for T in range(4):
        a(f"    s_waitcnt vmcnt({16 + 12 - 4*T})")
        for t in range(4):
            r = 64 + (T*4+t)*4
            a(f"    v_mfma_f32_16x16x32_bf16 v[{48+4*T}:{51+4*T}], v[{r}:{r+3}], v[{32+4*t}:{35+4*t}], v[{48+4*T}:{51+4*T}]")
    import math
    c = (128 ** -0.5) * math.log2(math.e)
    import struct
    cbits = struct.unpack("<I", struct.pack("<f", c))[0]
    a(f"""    s_mov_b32 s61, {hex(cbits)}
    v_max3_f32 v16, v48, v49, v50
    v_max3_f32 v17, v51, v52, v53
    v_max3_f32 v18, v54, v55, v56
    v_max3_f32 v19, v57, v58, v59
    v_max3_f32 v20, v60, v61, v62
    v_max3_f32 v16, v16, v17, v63
    v_max3_f32 v18, v18, v19, v20
    v_max_f32 v16, v16, v18
    v_mov_b32 v17, v16
    v_permlane16_swap_b32 v16, v17
    v_max_f32 v16, v16, v17
    v_mov_b32 v17, v16
    v_permlane32_swap_b32 v16, v17
    v_max_f32 v16, v16, v17
    v_mul_f32 v16, s61, v16""")
    for r in range(48, 64):
        a(f"    v_fma_f32 v{r}, v{r}, s61, -v16")
    for r in range(48, 64):
        a(f"    v_exp_f32 v{r}, v{r}")
    a("""    v_add_f32 v17, v48, v49
    v_add_f32 v18, v50, v51
    v_add_f32 v19, v52, v53
    v_add_f32 v20, v54, v55
    v_add_f32 v21, v56, v57
    v_add_f32 v22, v58, v59
    v_add_f32 v23, v60, v61
    v_add_f32 v24, v62, v63
    v_add_f32 v17, v17, v18
    v_add_f32 v19, v19, v20
    v_add_f32 v21, v21, v22
    v_add_f32 v23, v23, v24
    v_add_f32 v17, v17, v19
    v_add_f32 v21, v21, v23
    v_add_f32 v17, v17, v21
    v_mov_b32 v18, v17
    v_permlane16_swap_b32 v17, v18
    v_add_f32 v17, v17, v18
    v_mov_b32 v18, v17
    v_permlane32_swap_b32 v17, v18
    v_add_f32 v17, v17, v18               ; l""")
    for u in range(2):
        for h in range(2):
            T = 2*u + h
            a(f"    v_cvt_pk_bf16_f32 v{40+4*u+2*h}, v{48+4*T}, v{49+4*T}")
            a(f"    v_cvt_pk_bf16_f32 v{41+4*u+2*h}, v{50+4*T}, v{51+4*T}")
    a(f"""    v_bfe_u32 v8, v0, 2, 2                ; r
    v_and_b32 v9, 3, v0                   ; c
    v_lshl_add_u32 v10, v3, 2, v8         ; 4g + r  (0..15)
    v_and_b32 v11, 7, v10                 ; k7
    v_lshlrev_b32 v10, 8, v10             ; key*256
    v_lshl_add_u32 v10, v9, 3, v10        ; + c*8
    s_lshl_b32 s62, s3, 14
    s_add_u32 s62, s62, {LDS_V}
    v_add_u32 v10, s62, v10""")
    for dt in range(8):
        a(f"    v_xor_b32 v12, {dt}, v11")
        a(f"    v_lshl_add_u32 v{128+dt}, v12, 5, v10")
    for r in range(64, 96): a(f"    v_mov_b32 v{r}, 0")
    for u in range(2):
        a(f"    s_waitcnt vmcnt({8 if u == 0 else 0})")
        for dt in range(8):
            for h in range(2):
                r = 96 + dt*4 + 2*h
                a(f"    ds_read_b64_tr_b16 v[{r}:{r+1}], v{128+dt} offset:{(32*u+16*h)*256}")
        for dt in range(8):
            a(f"    s_waitcnt lgkmcnt({14 - 2*dt})")
            r = 96 + dt*4
            a(f"    v_mfma_f32_16x16x32_bf16 v[{64+4*dt}:{67+4*dt}], v[{r}:{r+3}], v[{40+4*u}:{43+4*u}], v[{64+4*dt}:{67+4*dt}]")
    a(f"""    v_and_b32 v8, 15, v0
    v_cmp_gt_u32 vcc, 4, v8
    v_mul_u32_u24 v9, 576, v8
    v_lshl_add_u32 v9, v3, 4, v9
    s_mul_i32 s63, s3, 2304
    v_add_u32 v9, s63, v9
    v_lshlrev_b32 v11, 3, v8
    s_lshl_b32 s63, s3, 5
    v_add_u32 v11, s63, v11
    s_and_saveexec_b64 s[64:65], vcc""")
    for dt in range(8):
        a(f"    ds_write_b128 v9, v[{64+4*dt}:{67+4*dt}] offset:{LDS_OW + dt*64}")
    a(f"""    ds_write_b64 v11, v[16:17] offset:{LDS_SW}
    s_mov_b64 exec, s[64:65]
    s_waitcnt lgkmcnt(0)
    s_barrier
    s_mul_i32 s63, s3, 576
    v_lshlrev_b32 v8, 3, v0
    v_add_u32 v8, s63, v8
    s_lshl_b32 s63, s3, 3
    v_mov_b32 v9, s63""")
    for w in range(4):
        a(f"    ds_read_b64 v[{20+2*w}:{21+2*w}], v8 offset:{LDS_OW + w*2304}")
        a(f"    ds_read_b64 v[{28+2*w}:{29+2*w}], v9 offset:{LDS_SW + w*32}")
    a("""    s_waitcnt lgkmcnt(0)
    v_max3_f32 v36, v28, v30, v32
    v_max_f32 v36, v36, v34               ; M
    v_sub_f32 v28, v28, v36
    v_sub_f32 v30, v30, v36
    v_sub_f32 v32, v32, v36
    v_sub_f32 v34, v34, v36
    v_exp_f32 v28, v28
    v_exp_f32 v30, v30
    v_exp_f32 v32, v32
    v_exp_f32 v34, v34
    v_mul_f32 v38, v28, v29
    v_fmac_f32 v38, v30, v31
    v_fmac_f32 v38, v32, v33
    v_fmac_f32 v38, v34, v35              ; L
    v_mul_f32 v40, v28, v20
    v_mul_f32 v42, v28, v21
    v_fmac_f32 v40, v30, v22
    v_fmac_f32 v42, v30, v23
    v_fmac_f32 v40, v32, v24
    v_fmac_f32 v42, v32, v25
    v_fmac_f32 v40, v34, v26
    v_fmac_f32 v42, v34, v27
    v_mov_b32 v41, 0x12345
    v_mov_b32 v43, 0x12345
    v_mov_b32 v37, 0x12345
    v_mov_b32 v39, 0x12345""")
    a(f"""    s_lshl_b32 s66, s50, 1
    s_add_u32 s66, s66, s52
    s_lshl_b32 s66, s66, 4
    s_add_u32 s66, s66, s53
    s_lshl_b32 s67, s66, 12
    s_lshl_b32 s68, s3, 10                ; head*128*8
    s_add_u32 s67, s67, s68
    s_add_u32 s67, s67, {WS_AP}
    v_lshlrev_b32 v8, 4, v0
    buffer_store_dwordx4 v[40:43], v8, {srd(S_WS)}, s67 offen
    s_lshl_b32 s66, s50, 1
    s_add_u32 s66, s66, s52
    s_lshl_b32 s66, s66, 2
    s_add_u32 s66, s66, s3
    s_lshl_b32 s66, s66, 4
    s_add_u32 s66, s66, s53
    s_lshl_b32 s66, s66, 4
    s_add_u32 s66, s66, {WS_ST}
    v_mov_b32 v8, 0
    v_cmp_eq_u32 vcc, 0, v0
    s_and_saveexec_b64 s[64:65], vcc
    buffer_store_dwordx4 v[36:39], v8, {srd(S_WS)}, s66 offen
L_k2_end:
    s_endpgm
""")
    return kernel_desc(name, 136)

LDS3_O = 0
LDS3_H = 256
K3_LDS = 1024
def k3(a):
    name = "p3_kernel"
    kernel_head(a, name)
    a(f"""    s_cmp_ge_u32 s2, 256
    s_cbranch_scc1 L_k3_end""")
    prologue(a, ["x", "wo", "w2", "gw", "ws"])
    a(f"""    ; rows 16c..16c+15 of wo: head = c>>3, hkv = c>>5, head4 = (c>>3)&3, db = c&7
    s_lshr_b32 s50, s2, 5                 ; hkv
    s_bfe_u32 s51, s2, 0x20003            ; head4 = (c>>3)&3
    s_and_b32 s52, s2, 7                  ; db
    v_and_b32 v2, 15, v0
    v_lshrrev_b32 v3, 4, v0
    v_lshlrev_b32 v4, 10, v3              ; g*1024
    v_lshl_add_u32 v4, v2, 4, v4          ; + j*16
    s_lshl_b32 s53, s2, 14                ; 16c*1024
    s_lshl_b32 s54, s3, 8                 ; w*256
    s_add_u32 s53, s53, s54
    s_mul_i32 s55, s2, 7168               ; 7c*1024
    s_add_u32 s55, s55, s54
    v_and_b32 v5, 31, v0
    v_lshlrev_b32 v5, 12, v5              ; *4096
    v_lshrrev_b32 v6, 5, v0
    v_lshl_add_u32 v5, v6, 4, v5          ; + hi*2*8
    s_lshl_b32 s56, s50, 17               ; hkv*32*4096
    s_lshl_b32 s57, s51, 10               ; head4*1024
    s_add_u32 s56, s56, s57
    s_lshl_b32 s57, s52, 7                ; db*16*8
    s_add_u32 s56, s56, s57
    s_lshl_b32 s57, s3, 5                 ; w*4*8
    s_add_u32 s56, s56, s57
    s_add_u32 s56, s56, {WS_AP}
    v_bfe_u32 v6, v0, 4, 1
    v_lshlrev_b32 v6, 10, v6              ; b*4*16*16
    v_lshl_add_u32 v6, v2, 4, v6          ; + s*16
    s_lshl_b32 s57, s50, 11               ; hkv*2*1024
    s_lshl_b32 s58, s51, 8
    s_add_u32 s57, s57, s58
    s_add_u32 s57, s57, {WS_ST}
    v_lshrrev_b32 v7, 5, v0               ; b
    v_mul_u32_u24 v7, {1792*8}, v7
    v_bfe_u32 v8, v0, 2, 3                ; k
    v_lshl_add_u32 v7, v8, 3, v7
    v_and_b32 v8, 3, v0
    v_mul_u32_u24 v8, {2*2*1792*8}, v8
    v_add_u32 v7, v7, v8
    s_mul_i32 s58, s2, 56
    s_add_u32 s58, s58, {WS_HP}
    v_lshlrev_b32 v9, 4, v0
    s_waitcnt lgkmcnt(0)
    buffer_load_dwordx4 v[16:19], v5, {srd(S_WS)}, s56 offen
    buffer_load_dwordx4 v[20:23], v6, {srd(S_WS)}, s57 offen
    buffer_load_dword v24, v7, {srd(S_WS)}, s58 offen
    s_add_u32 s58, s58, {2*1792*8}
    buffer_load_dword v25, v7, {srd(S_WS)}, s58 offen
    buffer_load_dwordx4 v[28:31], v9, {srd(S_X)}, 0 offen
    buffer_load_dwordx4 v[32:35], v9, {srd(S_X)}, 0 offen offset:1024
    buffer_load_dwordx4 v[36:39], v9, {srd(S_GW)}, 0 offen""")
    for t in range(4):
        a(f"    buffer_load_dwordx4 v[{64+4*t}:{67+4*t}], v4, {srd(S_WO)}, s53 offen{NT}")
        if t < 3: a("    s_add_u32 s53, s53, 4096")
    for t in range(2):
        a(f"    buffer_load_dwordx4 v[{80+4*t}:{83+4*t}], v4, {srd(S_W2)}, s55 offen{NT}")
        if t < 1: a("    s_add_u32 s55, s55, 4096")
    onehot_masks(a, 12)
    a(f"""    s_waitcnt vmcnt(11)
    v_mov_b32 v40, v20                    ; m
    v_max_f32_dpp v40, v40, v40 row_ror:8 row_mask:0xf bank_mask:0xf
    v_max_f32_dpp v40, v40, v40 row_ror:4 row_mask:0xf bank_mask:0xf
    v_max_f32_dpp v40, v40, v40 row_ror:2 row_mask:0xf bank_mask:0xf
    v_max_f32_dpp v40, v40, v40 row_ror:1 row_mask:0xf bank_mask:0xf
    v_sub_f32 v41, v20, v40
    v_exp_f32 v41, v41                    ; f
    v_mul_f32 v42, v41, v22               ; f*l
    v_mul_f32 v16, v41, v16
    v_mul_f32 v18, v41, v18""")
    for k in (8, 4, 2, 1):
        a(f"""    v_add_f32_dpp v42, v42, v42 row_ror:{k} row_mask:0xf bank_mask:0xf
    v_add_f32_dpp v16, v16, v16 row_ror:{k} row_mask:0xf bank_mask:0xf
    v_add_f32_dpp v18, v18, v18 row_ror:{k} row_mask:0xf bank_mask:0xf""")
    a(f"""    v_rcp_f32 v42, v42
    v_mul_f32 v16, v16, v42
    v_mul_f32 v18, v18, v42
    v_cvt_pk_bf16_f32 v16, v16, v18
    v_bfe_u32 v8, v0, 4, 1                ; b
    v_lshlrev_b32 v8, 5, v8
    v_lshrrev_b32 v10, 5, v0              ; hi
    v_lshl_add_u32 v8, v10, 4, v8         ; + (2hi)*8
    s_lshl_b32 s59, s3, 1
    v_add_u32 v8, s59, v8
    v_cmp_eq_u32 vcc, 0, v2               ; s==0 lanes
    s_and_saveexec_b64 s[60:61], vcc
    ds_write_b16 v8, v16 offset:{LDS3_O}
    ds_write_b16_d16_hi v8, v16 offset:{LDS3_O + 8}
    s_mov_b64 exec, s[60:61]""")
    a(f"""    s_waitcnt vmcnt(9)
    v_add_f32 v24, v24, v25
    v_add_f32_dpp v24, v24, v24 quad_perm:[1,0,3,2] row_mask:0xf bank_mask:0xf
    v_add_f32_dpp v24, v24, v24 quad_perm:[2,3,0,1] row_mask:0xf bank_mask:0xf
    v_cvt_pk_bf16_f32 v24, v24, v24
    v_lshlrev_b32 v24, 16, v24
    v_mul_f32 v25, 0xbfb8aa3b, v24        ; -log2e * h
    v_exp_f32 v25, v25
    v_add_f32 v25, 1.0, v25
    v_rcp_f32 v25, v25
    v_mul_f32 v24, v24, v25
    v_cvt_pk_bf16_f32 v24, v24, v24
    v_bfe_u32 v8, v0, 2, 3                ; k
    v_cmp_eq_u32 vcc, 7, v8
    v_cndmask_b32 v24, v24, 0, vcc        ; zero k==7
    v_and_b32 v10, 3, v8                  ; g
    v_lshrrev_b32 v11, 2, v8              ; t
    v_lshlrev_b32 v10, 3, v10
    v_lshl_add_u32 v10, v11, 1, v10
    v_lshrrev_b32 v11, 5, v0              ; b
    v_lshl_add_u32 v10, v11, 5, v10
    v_and_b32 v11, 3, v0
    v_cmp_eq_u32 vcc, 0, v11
    s_and_saveexec_b64 s[60:61], vcc
    ds_write_b16 v10, v24 offset:{LDS3_H}
    s_mov_b64 exec, s[60:61]""")
    a("    s_waitcnt vmcnt(6)")
    for b in range(2):
        acc = 44 + b
        a(f"    v_mov_b32 v{acc}, 0")
        for r in range(4):
            xs = 28 + 4*b + r; gs = 36 + r
            a(f"""    v_lshlrev_b32 v46, 16, v{xs}
    v_lshlrev_b32 v47, 16, v{gs}
    v_and_b32 v48, 0xffff0000, v{xs}
    v_and_b32 v49, 0xffff0000, v{gs}
    v_mul_f32 v46, v46, v47
    v_mul_f32 v48, v48, v49
    v_cvt_pk_bf16_f32 v46, v46, v48
    v_lshlrev_b32 v47, 16, v46
    v_and_b32 v48, 0xffff0000, v46
    v_add_f32 v{acc}, v{acc}, v47
    v_add_f32 v{acc}, v{acc}, v48""")
    for k in (8, 4, 2, 1):
        a(f"""    v_add_f32_dpp v44, v44, v44 row_ror:{k} row_mask:0xf bank_mask:0xf
    v_add_f32_dpp v45, v45, v45 row_ror:{k} row_mask:0xf bank_mask:0xf""")
    for sw in ("v_permlane16_swap_b32", "v_permlane32_swap_b32"):
        a(f"""    v_mov_b32 v46, v44
    v_mov_b32 v47, v45
    {sw} v44, v46
    {sw} v45, v47
    v_add_f32 v44, v44, v46
    v_add_f32 v45, v45, v47""")
    a(f"""    v_cmp_gt_u32 vcc, 32, v0
    v_cndmask_b32 v44, v45, v44, vcc
    v_cvt_pk_bf16_f32 v44, v44, v44
    v_lshlrev_b32 v44, 16, v44
    v_mul_f32 v44, 0xbfb8aa3b, v44
    v_exp_f32 v44, v44
    v_add_f32 v44, 1.0, v44
    v_rcp_f32 v44, v44                    ; g
    v_sub_f32 v45, 1.0, v44               ; 1-g
    s_waitcnt lgkmcnt(0)
    s_barrier
    v_bfe_u32 v8, v0, 3, 1
    v_lshlrev_b32 v8, 5, v8
    v_lshl_add_u32 v8, v3, 3, v8
    ds_read_b64 v[46:47], v8 offset:{LDS3_O}
    ds_read_b32 v48, v8 offset:{LDS3_H}
    s_mov_b32 s62, 0x01000100
    s_mov_b32 s63, 0x03020302""")
    for r in range(96, 104): a(f"    v_mov_b32 v{r}, 0")
    a("    s_waitcnt lgkmcnt(0)")
    for t in range(4):
        src = 46 + (t >> 1); sel = "s62" if (t & 1) == 0 else "s63"
        a(f"    v_perm_b32 v49, v{src}, v{src}, {sel}")
        for r in range(4):
            a(f"    v_and_b32 v{104+4*t+r}, v49, v{12+r}")
    for t in range(2):
        sel = "s62" if t == 0 else "s63"
        a(f"    v_perm_b32 v49, v48, v48, {sel}")
        for r in range(4):
            a(f"    v_and_b32 v{120+4*t+r}, v49, v{12+r}")
    for t in range(4):
        a(f"    s_waitcnt vmcnt({5-t})")
        a(f"    v_mfma_f32_16x16x32_bf16 v[96:99], v[{104+4*t}:{107+4*t}], v[{64+4*t}:{67+4*t}], v[96:99]")
    for t in range(2):
        a(f"    s_waitcnt vmcnt({1-t})")
        a(f"    v_mfma_f32_16x16x32_bf16 v[100:103], v[{120+4*t}:{123+4*t}], v[{80+4*t}:{83+4*t}], v[100:103]")
    a(f"""    v_mul_f32 v96, v96, v44
    v_mul_f32 v97, v97, v44
    v_mul_f32 v98, v98, v44
    v_mul_f32 v99, v99, v44
    v_fmac_f32 v96, v100, v45
    v_fmac_f32 v97, v101, v45
    v_fmac_f32 v98, v102, v45
    v_fmac_f32 v99, v103, v45
    v_lshrrev_b32 v8, 5, v0
    v_lshlrev_b32 v8, 11, v8              ; b*512*4
    v_lshl_add_u32 v8, v2, 5, v8          ; + j*32
    v_bfe_u32 v10, v0, 4, 1
    v_lshl_add_u32 v8, v10, 4, v8
    s_lshl_b32 s64, s2, 12
    s_lshl_b32 s65, s3, 9
    s_add_u32 s64, s64, s65
    s_add_u32 s64, s64, {WS_OP}
    buffer_store_dwordx4 v[96:99], v8, {srd(S_WS)}, s64 offen
L_k3_end:
    s_endpgm
""")
    return kernel_desc(name, 136)

def k4(a):
    name = "fin_kernel"
    kernel_head(a, name)
    a(f"""    s_cmp_ge_u32 s2, 32
    s_cbranch_scc1 L_k4_end""")
    prologue(a, ["out", "ws"])
    a(f"""    v_and_b32 v2, 31, v0
    v_lshlrev_b32 v2, 2, v2
    v_lshrrev_b32 v3, 5, v0
    v_lshlrev_b32 v3, 17, v3              ; *32*4096
    v_add_u32 v2, v2, v3
    s_lshl_b32 s50, s3, 18                ; w*64*4096
    s_lshl_b32 s51, s2, 7
    s_add_u32 s50, s50, s51
    s_add_u32 s50, s50, {WS_OP}
    s_waitcnt lgkmcnt(0)""")
    for i in range(32):
        a(f"    buffer_load_dword v{16+i}, v2, {srd(S_WS)}, s50 offen")
        if i < 31: a("    s_add_u32 s50, s50, 4096")
    a("    s_waitcnt vmcnt(0)")
    n = 32
    while n > 1:
        for i in range(n // 2):
            a(f"    v_add_f32 v{16+i}, v{16+i}, v{16+i+n//2}")
        n //= 2
    a(f"""    v_mov_b32 v17, v16
    v_permlane32_swap_b32 v16, v17
    v_add_f32 v16, v16, v17
    v_lshlrev_b32 v4, 2, v0
    s_lshl_b32 s52, s3, 8
    v_add_u32 v5, s52, v4
    ds_write_b32 v5, v16
    s_waitcnt lgkmcnt(0)
    s_barrier
    ds_read_b32 v20, v4
    ds_read_b32 v21, v4 offset:256
    ds_read_b32 v22, v4 offset:512
    ds_read_b32 v23, v4 offset:768
    s_waitcnt lgkmcnt(0)
    v_add_f32 v20, v20, v21
    v_add_f32 v22, v22, v23
    v_add_f32 v20, v20, v22
    v_cvt_pk_bf16_f32 v20, v20, v20
    v_lshlrev_b32 v4, 1, v0
    s_lshl_b32 s53, s2, 6
    s_cmp_eq_u32 s3, 0
    s_cbranch_scc0 L_k4_end
    v_cmp_gt_u32 vcc, 32, v0
    s_and_saveexec_b64 s[60:61], vcc
    buffer_store_short v20, v4, {srd(S_OUT)}, s53 offen
L_k4_end:
    s_endpgm
""")
    return kernel_desc(name, 64)

def main(path):
    a = A()
    a(f"""; @launch kernel=p1_kernel grid=(256,1,1) block=(256,1,1) lds=8192
; @launch kernel=attn_kernel grid=(256,1,1) block=(256,1,1) lds={K2_LDS}
; @launch kernel=p3_kernel grid=(256,1,1) block=(256,1,1) lds={K3_LDS}
; @launch kernel=fin_kernel grid=(32,1,1) block=(256,1,1) lds=1024
.amdgcn_target "amdgcn-amd-amdhsa--gfx950"
""")
    descs = []
    for k in (k1, k2, k3, k4):
        descs.append(k(a))
    for d in descs: a(d)
    open(path, "w").write(hazard.fix(a.text(), True))

if __name__ == "__main__":
    main(sys.argv[1] if len(sys.argv) > 1 else "v0.s")
```

```python
import sys, math, struct
from asmlib import A
import hazard

KNAME = "gated_mix__sliding_block_cached__dense_activation_silu__decode_kernel"

class Cfg:
    wk = 20
    wv = 20
    ww = 20
    qstart = 4
    hstart = 10
    stamps = False
    spin_lds = 1 << 20
    spin_glb = 1 << 14
    nt = " nt"
    rotmul = 1
    rothkv = 0
    wrot = 1
    sleep1 = 0
    sleeph = 4
    sleep2 = 1
    sleep3 = 1
    na1 = 4
    na2 = 8
    w2first = True

WS_QP, WS_HP, WS_OP, WS_AP = 0x10000, 0x50000, 0x70000, 0x100000
D_QP, D_AP = 0x20000, 0x80000
WS_STAMP = 0x4000000

L_PROG, L_S2, L_HF, L_GATE, L_MX, L_LW, L_H = 0x000, 0x100, 0x110, 0x120, 0x140, 0x180, 0x1C0
L_Q, L_P, L_WO, L_W2, L_K, L_V = 0x280, 0x680, 0x1000, 0x5000, 0x7000, 0x17000
LDS_TOTAL = 0x27000
L_P3P = L_K
NW = 6

S_X, S_K, S_V, S_WQ, S_WO, S_W1, S_W2, S_GW, S_OUT, S_WS = 8, 12, 16, 20, 24, 28, 32, 36, 40, 44
def srd(b): return f"s[{b}:{b+3}]"
S_WAVE = 3
S_HKV, S_J = 48, 49
S_RB, S_CBK = 50, 51
S_T0 = 80
S_TAG = 84
S_PROG = 85
S_LIM = 86
S_FF = 87
VSEL = 136
VST = 144

def f32bits(x): return struct.unpack("<I", struct.pack("<f", x))[0]
DPP8 = ("quad_perm:[1,0,3,2]", "quad_perm:[2,3,0,1]", "row_half_mirror")

class G:
    def __init__(self, cfg):
        self.c = cfg; self.a = A(); self.lab = 0
    def __call__(self, s): self.a(s)
    def label(self, p="L"):
        self.lab += 1; return f"{p}_{self.lab}"
    def stamp(self, k):
        if self.c.stamps:
            self(f"""    s_memrealtime s[98:99]
    s_waitcnt lgkmcnt(0)
    v_writelane_b32 v{VST}, s98, {k}""")
    def note(self, k, sreg):
        if self.c.stamps:
            self(f"    v_writelane_b32 v{VST}, s{sreg}, {k}")
    def spin_tail(self, L):
        self(f"""    s_sub_u32 s{S_LIM}, s{S_LIM}, 1
    s_cmp_gt_i32 s{S_LIM}, 0
    s_cbranch_scc1 {L}""")
    def wait_prog(self, need, vtmp=10):
        L = self.label("Lp"); E = self.label("Lpe")
        self(f"""    s_cmp_ge_u32 s{S_PROG}, {need}
    s_cbranch_scc1 {E}
{L}:
    ds_read_b32 v{vtmp}, v1 offset:{L_PROG}
    s_waitcnt lgkmcnt(0)
    v_readfirstlane_b32 s{S_PROG}, v{vtmp}
    s_cmp_ge_u32 s{S_PROG}, {need}
    s_cbranch_scc1 {E}""")
        self.spin_tail(L)
        self(f"{E}:")
    def wait_nonzero4(self, dst, vaddr, off, tmp):
        L = self.label("Ls"); E = self.label("Lse")
        self(f"""{L}:
    ds_read_b128 v[{dst}:{dst+3}], v{vaddr} offset:{off}
    s_waitcnt lgkmcnt(0)
    v_min_u32 v{tmp}, v{dst}, v{dst+1}
    v_min3_u32 v{tmp}, v{tmp}, v{dst+2}, v{dst+3}
    v_cmp_eq_u32 vcc, 0, v{tmp}
    s_cbranch_vccz {E}""")
        self.spin_tail(L)
        self(f"{E}:")
    def wait_flag(self, off, n, vtmp, vzero):
        L = self.label("Lf"); E = self.label("Lfe")
        if n == 1:
            rd = f"ds_read_b32 v{vtmp}, v{vzero} offset:{off}"; comb = ""
        else:
            rd = f"ds_read_b64 v[{vtmp}:{vtmp+1}], v{vzero} offset:{off}"; comb = f"    v_min_u32 v{vtmp}, v{vtmp}, v{vtmp+1}\n"
        self(f"""{L}:
    {rd}
    s_waitcnt lgkmcnt(0)
{comb}    v_cmp_eq_u32 vcc, 0, v{vtmp}
    s_cbranch_vccz {E}""")
        self.spin_tail(L)
        self(f"{E}:")
    def poll(self, loads, granules, bad, mode="low", sleep=0, tmp=None, dual=None, nk=None):
        L = self.label("Lg"); E = self.label("Lge")
        self(f"    s_mov_b32 s101, {self.c.spin_glb}")
        self(f"{L}:")
        if dual:
            bases, tmps, delta, na = dual
            self(f"""    s_sub_u32 s100, {self.c.spin_glb - na}, s101
    s_cmp_ge_i32 s100, 0
    s_cselect_b32 s100, s101, 0
    s_and_b32 s100, s100, 1
    s_mul_i32 s100, s100, {delta}""")
            for bs, ts in zip(bases, tmps):
                self(f"    s_add_u32 s{ts}, s{bs}, s100")
        for ld in loads: self("    " + ld)
        self("    s_waitcnt vmcnt(0)")
        if mode == "low":
            for i, r in enumerate(granules):
                for k in range(4):
                    if i == 0 and k == 0:
                        self(f"    v_xor_b32 v{bad}, s{S_T0}, v{r}")
                    else:
                        self(f"    v_bitop3_b32 v{bad}, v{bad}, v{r+k}, s{S_T0+k} bitop3:0xf6")
            self(f"    v_and_b32 v{bad}, 0xff, v{bad}")
        else:
            for i, r in enumerate(granules):
                t = bad if i == 0 else tmp
                self(f"    v_bitop3_b32 v{t}, v{r}, v{r+1}, v{r+2} bitop3:0x96")
                self(f"    v_bitop3_b32 v{t}, v{t}, v{r+3}, s{S_TAG} bitop3:0x96")
                if i: self(f"    v_or_b32 v{bad}, v{bad}, v{t}")
        self(f"""    v_cmp_ne_u32 vcc, 0, v{bad}
    s_cbranch_vccz {E}""")
        if sleep: self(f"    s_sleep {sleep}")
        self(f"""    s_sub_u32 s101, s101, 1
    s_cmp_gt_i32 s101, 0
    s_cbranch_scc1 {L}
{E}:""")
        if nk is not None and self.c.stamps:
            self(f"    s_sub_u32 s100, {self.c.spin_glb}, s101")
            self.note(nk, 100)

def selectors(g):
    g(f"""    v_and_b32 v4, 1, v0                   ; e'&1
    v_bfe_u32 v5, v0, 1, 2                ; e'>>1
    v_mov_b32 v6, 0x0c0c0100
    v_mov_b32 v8, 0x01000c0c
    v_cmp_eq_u32 vcc, 1, v4
    v_cndmask_b32 v6, v6, v8, vcc
    v_mov_b32 v8, 0x0c0c0302
    v_mov_b32 v10, 0x03020c0c
    v_cndmask_b32 v8, v8, v10, vcc
    v_mov_b32 v10, 0x0c0c0c0c""")
    for r in range(4):
        g(f"""    v_cmp_eq_u32 vcc, {r}, v5
    v_cndmask_b32 v{VSEL+2*r}, v10, v6, vcc
    v_cndmask_b32 v{VSEL+1+2*r}, v10, v8, vcc""")

def tags(g):
    g(f"""    s_waitcnt lgkmcnt(0)
    s_add_u32 s{S_TAG}, s{S_TAG}, 0x01010101
    s_and_b32 s{S_T0}, s{S_TAG}, 0xff
    s_bfe_u32 s{S_T0+1}, s{S_TAG}, 0x80008
    s_bfe_u32 s{S_T0+2}, s{S_TAG}, 0x80010
    s_lshr_b32 s{S_T0+3}, s{S_TAG}, 24
    v_mov_b32 v16, s{S_T0}
    v_mov_b32 v17, s{S_T0+1}
    v_mov_b32 v18, s{S_T0+2}
    v_mov_b32 v19, s{S_T0+3}""")

def proj(g, n, x0, x1, nx):
    for r in range(128, 136): g(f"    v_mov_b32 v{r}, 0")
    g(f"    s_waitcnt vmcnt({n})")
    g.stamp(1)
    def build(t):
        base = 48 + (t & 1)*8
        for b, xb in ((0, x0), (1, x1)):
            for r in range(4):
                g(f"    v_perm_b32 v{base+4*b+r}, v{xb+(t>>1)}, v{xb+(t>>1)}, v{VSEL+2*r+(t&1)}")
    build(0)
    for t in range(n):
        if t + 1 < n: build(t + 1)
        base = 48 + (t & 1)*8
        g(f"    s_waitcnt vmcnt({n-1-t})")
        for b in range(2):
            g(f"    v_mfma_f32_16x16x32_bf16 v[{128+4*b}:{131+4*b}], v[{base+4*b}:{base+4*b+3}], v[{64+4*t}:{67+4*t}], v[{128+4*b}:{131+4*b}]")
    for k in range(4):
        g(f"    v_permlane32_swap_b32 v{128+k}, v{132+k}")
    for k in range(4):
        g(f"    v_add_f32_dpp v{36+k}, v{132+k}, v{128+k} row_ror:8 row_mask:0xf bank_mask:0xf")
    for k in range(4):
        g(f"    v_bfi_b32 v{36+k}, s{S_FF}, v{16+k}, v{36+k}")
def pub_addr(g):
    g("""    v_and_b32 v5, 7, v0
    v_lshl_add_u32 v4, v5, 5, v4          ; + cg*32
    v_bfe_u32 v5, v0, 4, 1
    v_lshl_add_u32 v4, v5, 4, v4          ; + half*16
    s_mov_b32 s70, 0x00ff00ff
    s_mov_b32 s71, 0x00ff00ff""")

def stamp_out(g):
    g(f"""    s_waitcnt vmcnt(0) lgkmcnt(0)
    s_mul_i32 s72, s2, {NW}
    s_add_u32 s72, s72, s{S_WAVE}
    s_lshl_b32 s72, s72, 6
    s_add_u32 s72, s72, {WS_STAMP}
    s_mov_b32 exec_lo, 0xffff
    s_mov_b32 exec_hi, 0
    buffer_store_dword v{VST}, v1, {srd(S_WS)}, s72 offen
    s_waitcnt vmcnt(0)""")

def gen(cfg, path):
    g = G(cfg)
    NT = cfg.nt
    g(f"""; @launch grid=(256,1,1) block=({NW*64},1,1) lds={LDS_TOTAL}
.amdgcn_target "amdgcn-amd-amdhsa--gfx950"
.text
.globl {KNAME}
.p2align 8
.type {KNAME},@function
{KNAME}:
    s_cmp_ge_u32 s2, 256
    s_cbranch_scc1 L_end""")
    if cfg.stamps:
        g(f"    s_memrealtime s[96:97]")
    tab = [(S_WS, 88, 1 << 29), (S_WQ, 24, 1 << 22), (S_X, 0, 2048), (S_W1, 48, 512*1792*2), (S_K, 8, 1 << 27), (S_V, 16, 1 << 27),
           (S_WO, 32, 1 << 22), (S_W2, 56, 512*1792*2), (S_GW, 64, 1024), (S_OUT, 72, 2048)]
    for b, off, sz in tab:
        g(f"    s_load_dwordx2 s[{b}:{b+1}], s[0:1], {off}")
    for b, off, sz in tab:
        g(f"    s_mov_b32 s{b+2}, {hex(sz)}")
        g(f"    s_mov_b32 s{b+3}, 0x20000")
    g(f"""    v_lshrrev_b32 v1, 6, v0
    v_and_b32 v0, 63, v0                  ; v0 = lane
    v_readfirstlane_b32 s{S_WAVE}, v1
    v_lshlrev_b32 v1, 2, v0               ; v1 = lane*4
    v_and_b32 v2, 15, v0                  ; v2 = l&15
    v_lshrrev_b32 v3, 4, v0               ; v3 = l>>4
    s_and_b32 s{S_HKV}, s2, 7
    s_lshr_b32 s{S_J}, s2, 3
    s_lshr_b32 s{S_RB}, s{S_J}, 2
    s_lshl_b32 s52, s{S_HKV}, 3
    s_add_u32 s{S_RB}, s{S_RB}, s52
    s_and_b32 s{S_CBK}, s{S_J}, 3
    s_mov_b32 s{S_PROG}, 0
    s_mov_b32 s{S_LIM}, {cfg.spin_lds}
    s_mov_b32 s{S_FF}, 0xff""")
    if cfg.stamps:
        g(f"""    s_waitcnt lgkmcnt(0)
    v_mov_b32 v{VST}, 0
    v_writelane_b32 v{VST}, s96, 0""")
    g(f"""    s_cmp_eq_u32 s{S_WAVE}, 4
    s_cbranch_scc1 L_loader
    s_cmp_eq_u32 s{S_WAVE}, 5
    s_cbranch_scc1 L_helper
    s_cmp_eq_u32 s{S_WAVE}, 0
    s_cbranch_scc1 L_p1q
    ; waves 1,2,3
    v_lshlrev_b32 v11, 4, v0              ; l*16
    s_waitcnt lgkmcnt(0)
    s_load_dword s{S_TAG}, s[{S_WS}:{S_WS+1}], 0x0
    s_barrier""")
    selectors(g); tags(g)
    g(f"""    s_cmp_eq_u32 s{S_WAVE}, 1
    s_cbranch_scc1 L_qwait""")
    g(f"""    s_lshr_b32 s72, s{S_J}, 4              ; b
    s_lshl_b32 s73, s72, 14               ; b*4096*4
    s_lshl_b32 s74, s{S_HKV}, 11          ; hkv*512*4
    s_add_u32 s73, s73, s74
    s_and_b32 s74, s{S_WAVE}, 1
    s_lshl_b32 s74, s74, 10
    s_add_u32 s73, s73, s74
    s_add_u32 s73, s73, {WS_QP}
    s_add_u32 s74, s73, {1*32768}
    s_add_u32 s75, s73, {2*32768}
    s_add_u32 s76, s73, {3*32768}""")
    g.wait_prog(cfg.qstart)
    g.stamp(15)
    g.poll([f"buffer_load_dwordx4 v[{32+4*k}:{35+4*k}], v11, {srd(S_WS)}, s{60+k} offen sc1" for k in range(4)], [32, 36, 40, 44], 48, sleep=cfg.sleep1,
           dual=([73, 74, 75, 76], [60, 61, 62, 63], D_QP, cfg.na1), nk=10)
    for k in range(4):
        g(f"""    v_add_f32 v{32+k}, v{32+k}, v{36+k}
    v_add_f32 v{40+k}, v{40+k}, v{44+k}""")
    for k in range(4):
        g(f"    v_add_f32 v{32+k}, v{32+k}, v{40+k}")
    g(f"""    v_cvt_pk_bf16_f32 v32, v32, v33
    v_cvt_pk_bf16_f32 v33, v34, v35
    v_lshlrev_b32 v4, 3, v0
    s_and_b32 s72, s{S_WAVE}, 1
    s_lshl_b32 s73, s72, 9
    v_add_u32 v4, s73, v4
    ds_write_b64 v4, v[32:33] offset:{L_Q}
    v_mov_b32 v5, 1
    s_lshl_b32 s72, s72, 2
    v_mov_b32 v4, s72
    ds_write_b32 v4, v5 offset:{L_S2}
    s_branch L_qwait""")
    g(f"""L_p1q:
    s_and_b32 s52, s{S_J}, 7               ; cb
    s_lshr_b32 s53, s{S_J}, 3              ; ks
    s_lshl_b32 s56, s53, 20               ; 128*ks*8192
    s_lshl_b32 s57, s{S_HKV}, 10
    s_lshl_b32 s58, s52, 7
    s_add_u32 s57, s57, s58
    s_add_u32 s56, s56, s57
    v_lshrrev_b32 v5, 3, v0               ; r8
    v_and_b32 v6, 7, v0
    v_lshlrev_b32 v6, 4, v6
    v_lshlrev_b32 v7, 17, v5
    v_add_u32 v7, v7, v6
    v_lshlrev_b32 v9, 5, v5               ; x voffset = 16*r8*2
    s_lshl_b32 s64, s53, 8                ; 128*ks*2
    s_waitcnt lgkmcnt(0)
    s_load_dword s{S_TAG}, s[{S_WS}:{S_WS+1}], 0x0
    buffer_load_dwordx4 v[20:23], v9, {srd(S_X)}, s64 offen
    buffer_load_dwordx4 v[24:27], v9, {srd(S_X)}, s64 offen offset:16
    buffer_load_dwordx4 v[28:31], v9, {srd(S_X)}, s64 offen offset:1024
    buffer_load_dwordx4 v[32:35], v9, {srd(S_X)}, s64 offen offset:1040""")
    for t in range(16):
        g(f"    buffer_load_dwordx4 v[{64+4*t}:{67+4*t}], v7, {srd(S_WQ)}, s56 offen{NT}")
        if t < 15: g("    s_add_u32 s56, s56, 8192")
    g("    s_barrier")
    selectors(g); tags(g)
    g(f"""    s_lshl_b32 s72, s53, 15
    s_lshl_b32 s73, s57, 1
    s_add_u32 s72, s72, s73
    s_add_u32 s72, s72, {WS_QP}
    s_add_u32 s73, s72, {D_QP}
    v_lshrrev_b32 v4, 5, v0
    v_lshlrev_b32 v4, 14, v4              ; b*4096*4""")
    pub_addr(g)
    proj(g, 16, 20, 28, 4)
    g(f"""    s_mov_b64 exec, s[70:71]
    buffer_store_dwordx4 v[36:39], v4, {srd(S_WS)}, s72 offen
    buffer_store_dwordx4 v[36:39], v4, {srd(S_WS)}, s73 offen sc1
    s_mov_b64 exec, -1""")
    g.stamp(2)
    g("L_qwait:")
    g(f"""    ; K read addresses v20..23 : L_K + w*4096 + i*256 + ((4t ^ g ^ i))*16
    v_xor_b32 v9, v3, v2                  ; g ^ i
    v_lshlrev_b32 v10, 8, v2              ; i*256
    s_lshl_b32 s72, s{S_WAVE}, 12
    s_add_u32 s72, s72, {L_K}
    v_add_u32 v10, s72, v10""")
    for t in range(4):
        g(f"""    v_xor_b32 v4, {4*t}, v9
    v_lshl_add_u32 v{20+t}, v4, 4, v10""")
    g(f"""    ; Q frag address v8: head*256 + (4t+g)*16 ; v4 = head*16 (MX/LW), v5 = v4 + 4w
    v_and_b32 v8, 3, v0
    v_lshlrev_b32 v4, 4, v8
    v_lshlrev_b32 v8, 8, v8
    v_lshl_add_u32 v8, v3, 4, v8
    s_lshl_b32 s72, s{S_WAVE}, 2
    v_add_u32 v5, s72, v4
    v_mov_b32 v9, 0""")
    for r in range(48, 64): g(f"    v_mov_b32 v{r}, 0")
    for T in range(3):
        g(f"    s_add_u32 s72, s{S_WAVE}, {4*T+1}")
        g.wait_prog("s72", 10)
        for t in range(4):
            r = 64 + T*16 + 4*t
            g(f"    ds_read_b128 v[{r}:{r+3}], v{20+t} offset:{T*16384}")
    g.wait_flag(L_S2, 2, 10, 9)
    g.stamp(3)
    for t in range(4):
        g(f"    ds_read_b128 v[{32+4*t}:{35+4*t}], v8 offset:{L_Q + t*64}")
    g(f"    s_add_u32 s72, s{S_WAVE}, 13")
    g.wait_prog("s72", 10)
    for t in range(4):
        r = 64 + 3*16 + 4*t
        g(f"    ds_read_b128 v[{r}:{r+3}], v{20+t} offset:{3*16384}")
    g("    s_waitcnt lgkmcnt(4)")
    for t in range(4):
        for T in range(3):
            r = 64 + T*16 + 4*t
            g(f"    v_mfma_f32_16x16x32_bf16 v[{48+4*T}:{51+4*T}], v[{r}:{r+3}], v[{32+4*t}:{35+4*t}], v[{48+4*T}:{51+4*T}]")
    g("    s_waitcnt lgkmcnt(0)")
    for t in range(4):
        r = 64 + 3*16 + 4*t
        g(f"    v_mfma_f32_16x16x32_bf16 v[60:63], v[{r}:{r+3}], v[{32+4*t}:{35+4*t}], v[60:63]")
    c = (128 ** -0.5) * math.log2(math.e)
    g(f"""    s_mov_b32 s61, {hex(f32bits(c))}
    v_max3_f32 v24, v48, v49, v50
    v_max3_f32 v25, v51, v52, v53
    v_max3_f32 v26, v54, v55, v56
    v_max3_f32 v27, v57, v58, v59
    v_max3_f32 v24, v24, v25, v26
    v_max3_f32 v28, v60, v61, v62
    v_max3_f32 v24, v24, v27, v63
    v_max_f32 v24, v24, v28
    v_mov_b32 v25, v24
    v_permlane16_swap_b32 v24, v25
    v_max_f32 v24, v24, v25
    v_mov_b32 v25, v24
    v_permlane32_swap_b32 v24, v25
    v_max_f32 v24, v24, v25
    v_or_b32 v24, 1, v24
    ds_write_b32 v5, v24 offset:{L_MX}""")
    g.wait_nonzero4(24, 4, L_MX, 28)
    g(f"""    v_max3_f32 v24, v24, v25, v26
    v_max_f32 v24, v24, v27
    v_mul_f32 v24, s61, v24""")
    for r in range(48, 64):
        g(f"    v_fma_f32 v{r}, v{r}, s61, -v24")
    for r in range(48, 64):
        g(f"    v_exp_f32 v{r}, v{r}")
    for T in range(4):
        g(f"    v_cvt_pk_bf16_f32 v{64+2*T}, v{48+4*T}, v{49+4*T}")
        g(f"    v_cvt_pk_bf16_f32 v{65+2*T}, v{50+4*T}, v{51+4*T}")
    g(f"""    v_and_b32 v6, 3, v0
    v_lshlrev_b32 v6, 6, v6
    v_lshl_add_u32 v6, v3, 4, v6
    s_lshr_b32 s72, s{S_WAVE}, 1
    s_lshl_b32 s72, s72, 8
    s_and_b32 s73, s{S_WAVE}, 1
    s_lshl_b32 s73, s73, 3
    s_add_u32 s72, s72, s73
    v_add_u32 v7, s72, v6""")
    for T in range(4):
        g(f"    ds_write_b64 v7, v[{64+2*T}:{65+2*T}] offset:{L_P + T*512}")
    g("""    v_add_f32 v25, v48, v49
    v_add_f32 v26, v50, v51
    v_add_f32 v27, v52, v53
    v_add_f32 v28, v54, v55
    v_add_f32 v29, v56, v57
    v_add_f32 v30, v58, v59
    v_add_f32 v31, v60, v61
    v_add_f32 v72, v62, v63
    v_add_f32 v25, v25, v26
    v_add_f32 v27, v27, v28
    v_add_f32 v29, v29, v30
    v_add_f32 v31, v31, v72
    v_add_f32 v25, v25, v27
    v_add_f32 v29, v29, v31
    v_add_f32 v25, v25, v29
    v_mov_b32 v26, v25
    v_permlane16_swap_b32 v25, v26
    v_add_f32 v25, v25, v26
    v_mov_b32 v26, v25
    v_permlane32_swap_b32 v25, v26
    v_add_f32 v25, v25, v26               ; l_w
    v_or_b32 v25, 1, v25""")
    g(f"    ds_write_b32 v5, v25 offset:{L_LW}")
    g(f"""    v_bfe_u32 v8, v0, 2, 2                ; r
    v_and_b32 v9, 3, v0                   ; c
    v_lshl_add_u32 v10, v3, 2, v8         ; 4g + r
    v_and_b32 v11, 7, v10                 ; k7
    v_lshlrev_b32 v10, 8, v10
    v_lshl_add_u32 v10, v9, 3, v10
    v_add_u32 v10, {L_V}, v10
    s_lshl_b32 s72, s{S_WAVE}, 1          ; dt0 = 2w
    v_xor_b32 v8, s72, v11
    v_lshl_add_u32 v20, v8, 5, v10
    s_add_u32 s72, s72, 1
    v_xor_b32 v8, s72, v11
    v_lshl_add_u32 v21, v8, 5, v10
    s_lshl_b32 s58, s{S_HKV}, 5
    s_add_u32 s58, s58, s{S_J}             ; producer
    s_lshl_b32 s58, s58, 11
    s_lshl_b32 s59, s{S_WAVE}, 7          ; 8w*16
    s_add_u32 s58, s58, s59
    s_add_u32 s58, s58, {WS_AP}
    s_add_u32 s59, s58, {D_AP}
    v_and_b32 v22, 3, v0
    v_lshlrev_b32 v22, 9, v22             ; head*512
    v_lshl_add_u32 v22, v3, 4, v22        ; + g'*16
    v_bfe_u32 v9, v0, 2, 1                ; dsel
    v_lshl_add_u32 v22, v9, 6, v22
    s_mov_b32 s54, 0x00f000f0
    s_mov_b32 s55, 0x00f000f0
    s_mov_b32 s56, 0x00ff00ff
    s_mov_b32 s57, 0x00ff00ff""")
    g.wait_nonzero4(28, 4, L_LW, 27)
    for u in range(8):
        g(f"    ds_read_b128 v[{32+4*u}:{35+4*u}], v6 offset:{L_P + u*256}")
    g(f"""    v_add_f32 v28, v28, v29
    v_add_f32 v30, v30, v31
    v_add_f32 v25, v28, v30               ; L
    v_rcp_f32 v26, v25                    ; v26 = 1/L
    v_log_f32 v27, v25
    v_add_f32 v27, v27, v24               ; v27 = lw
    v_xor_b32 v28, s{S_TAG}, v27""")
    for r in range(64, 72): g(f"    v_mov_b32 v{r}, 0")
    g.stamp(4)
    def pv_mfma(u):
        rb_ = 72 + (u & 1)*8
        for d in range(2):
            r = rb_ + d*4
            g(f"    v_mfma_f32_16x16x32_bf16 v[{64+4*d}:{67+4*d}], v[{r}:{r+3}], v[{32+4*u}:{35+4*u}], v[{64+4*d}:{67+4*d}]")
    for u in range(8):
        g.wait_prog(16 + 2*u + 2, 10)
        rb_ = 72 + (u & 1)*8
        for d in range(2):
            for h in range(2):
                r = rb_ + d*4 + 2*h
                g(f"    ds_read_b64_tr_b16 v[{r}:{r+1}], v{20+d} offset:{(2*u+h)*4096}")
        if u > 0:
            g("    s_waitcnt lgkmcnt(4)")
            pv_mfma(u - 1)
    g("    s_waitcnt lgkmcnt(0)")
    pv_mfma(7)
    g.stamp(5)
    g(f"""    v_cndmask_b32 v64, v64, v68, s[54:55]
    v_cndmask_b32 v65, v65, v69, s[54:55]
    v_cndmask_b32 v66, v66, v70, s[54:55]
    v_cndmask_b32 v67, v67, v71, s[54:55]
    v_mul_f32 v64, v64, v26
    v_mul_f32 v65, v65, v26
    v_mul_f32 v66, v66, v26
    v_mul_f32 v67, v67, v26
    v_cvt_pk_bf16_f32 v64, v64, v65
    v_cvt_pk_bf16_f32 v65, v66, v67
    v_mov_b32 v66, v27
    v_bitop3_b32 v67, v64, v65, v28 bitop3:0x96
    s_mov_b64 exec, s[56:57]
    buffer_store_dwordx4 v[64:67], v22, {srd(S_WS)}, s58 offen
    buffer_store_dwordx4 v[64:67], v22, {srd(S_WS)}, s59 offen sc1
    s_mov_b64 exec, -1""")
    g(f"""    ; lane (g, b'=(l>>3)&1, s8=l&7): granule index = 16*((j>>2)&1) + 4w + g  within head
    s_lshr_b32 s52, s{S_J}, 3              ; head4
    s_bfe_u32 s53, s{S_J}, 0x10002         ; (j>>2)&1
    v_and_b32 v8, 7, v0
    v_bfe_u32 v9, v0, 3, 1
    v_lshl_add_u32 v8, v9, 4, v8          ; b'*16 + s8
    v_lshlrev_b32 v8, 11, v8              ; *2048
    v_lshl_add_u32 v8, v3, 4, v8          ; + g*16
    s_lshl_b32 s72, s{S_HKV}, 16          ; hkv*32*2048
    s_lshl_b32 s73, s52, 9                ; head4*512
    s_add_u32 s72, s72, s73
    s_lshl_b32 s73, s53, 8
    s_add_u32 s72, s72, s73
    s_lshl_b32 s73, s{S_WAVE}, 6
    s_add_u32 s72, s72, s73
    s_add_u32 s72, s72, {WS_AP}
    s_add_u32 s73, s72, {8*2048}
    v_lshlrev_b32 v22, 10, v3             ; 4g*256
    v_lshl_add_u32 v22, v2, 4, v22        ; + j*16
    s_lshl_b32 s75, s{S_WAVE}, 12         ; 16w*256
    v_add_u32 v22, s75, v22               ; wo addr (+L_WO via offset)
    v_lshlrev_b32 v23, 8, v3              ; g*256
    v_lshl_add_u32 v23, v2, 4, v23
    s_lshl_b32 s75, s{S_WAVE}, 10         ; 4w*256
    v_add_u32 v23, s75, v23               ; w2 addr
    v_lshlrev_b32 v10, 6, v9
    v_lshl_add_u32 v10, v3, 1, v10
    s_lshl_b32 s75, s{S_WAVE}, 3
    v_add_u32 v10, s75, v10
    v_mov_b32 v11, 0""")
    for r in range(104, 112): g(f"    v_mov_b32 v{r}, 0")
    g.wait_flag(L_HF, 1, 12, 11)
    g(f"""    v_lshrrev_b32 v4, 5, v0
    v_lshlrev_b32 v4, 2, v4
    ds_read_b32 v30, v4 offset:{L_GATE}
    ds_read_u16 v40, v10 offset:{L_H}
    ds_read_u16 v41, v10 offset:{L_H + 32}
    s_waitcnt lgkmcnt(0)""")
    for q in range(2):
        for k in range(4):
            g(f"    v_perm_b32 v{96+4*q+k}, v{40+q}, v{40+q}, v{VSEL+2*k}")
    g.wait_prog(33, 49)
    for t in range(4):
        g(f"    ds_read_b128 v[{64+4*t}:{67+4*t}], v22 offset:{L_WO + t*256}")
    g(f"""    ds_read_b128 v[80:83], v23 offset:{L_W2}
    ds_read_b128 v[84:87], v23 offset:{L_W2 + 4096}
    s_waitcnt lgkmcnt(1)
    v_mfma_f32_16x16x32_bf16 v[108:111], v[96:99], v[80:83], v[108:111]
    s_waitcnt lgkmcnt(0)
    s_cmp_eq_u32 s{S_WAVE}, 3
    s_cbranch_scc1 L_now2b
    v_mfma_f32_16x16x32_bf16 v[108:111], v[100:103], v[84:87], v[108:111]
L_now2b:""")
    g.poll([f"buffer_load_dwordx4 v[32:35], v8, {srd(S_WS)}, s60 offen sc1",
            f"buffer_load_dwordx4 v[36:39], v8, {srd(S_WS)}, s61 offen sc1"], [32, 36], 48, mode="sum", tmp=49, sleep=cfg.sleep2,
           dual=([72, 73], [60, 61], D_AP, cfg.na2), nk=12)
    g.stamp(6)
    g("    v_max_f32 v48, v34, v38")
    g("""    v_lshlrev_b32 v50, 16, v32
    v_and_b32 v51, 0xffff0000, v32""")
    g(f"    v_max_f32_dpp v48, v48, v48 {DPP8[0]} row_mask:0xf bank_mask:0xf")
    g("""    v_lshlrev_b32 v52, 16, v33
    v_and_b32 v53, 0xffff0000, v33""")
    g(f"    v_max_f32_dpp v48, v48, v48 {DPP8[1]} row_mask:0xf bank_mask:0xf")
    g("""    v_lshlrev_b32 v54, 16, v36
    v_and_b32 v55, 0xffff0000, v36""")
    g(f"    v_max_f32_dpp v48, v48, v48 {DPP8[2]} row_mask:0xf bank_mask:0xf")
    g("""    v_lshlrev_b32 v56, 16, v37
    v_and_b32 v57, 0xffff0000, v37
    v_sub_f32 v40, v34, v48
    v_sub_f32 v44, v38, v48
    v_exp_f32 v40, v40
    v_exp_f32 v44, v44
    v_sub_f32 v31, 1.0, v30
    v_mul_f32 v32, v40, v50
    v_mul_f32 v33, v40, v51
    v_mul_f32 v34, v40, v52
    v_mul_f32 v35, v40, v53
    v_add_f32 v49, v40, v44
    v_fmac_f32 v32, v44, v54
    v_fmac_f32 v33, v44, v55
    v_fmac_f32 v34, v44, v56
    v_fmac_f32 v35, v44, v57""")
    for dp in DPP8:
        for r in (49, 32, 33, 34, 35):
            g(f"    v_add_f32_dpp v{r}, v{r}, v{r} {dp} row_mask:0xf bank_mask:0xf")
    g("""    v_rcp_f32 v49, v49
    v_mul_f32 v108, v108, v31
    v_mul_f32 v109, v109, v31
    v_mul_f32 v110, v110, v31
    v_mul_f32 v111, v111, v31
    v_mul_f32 v32, v32, v49
    v_mul_f32 v33, v33, v49
    v_mul_f32 v34, v34, v49
    v_mul_f32 v35, v35, v49
    v_cvt_pk_bf16_f32 v32, v32, v33
    v_cvt_pk_bf16_f32 v33, v34, v35""")
    for t in range(4):
        src = 32 + (t >> 1)
        for r in range(4):
            g(f"    v_perm_b32 v{112+4*t+r}, v{src}, v{src}, v{VSEL+2*r+(t&1)}")
    for t in range(4):
        g(f"    v_mfma_f32_16x16x32_bf16 v[104:107], v[{112+4*t}:{115+4*t}], v[{64+4*t}:{67+4*t}], v[104:107]")
    g(f"""    v_lshlrev_b32 v4, 4, v0               ; l*16
    s_lshl_b32 s72, s{S_WAVE}, 10
    s_add_u32 s72, s72, {L_P3P}
    v_add_u32 v5, s72, v4
    v_lshrrev_b32 v6, 5, v0
    v_lshlrev_b32 v6, 9, v6
    v_lshl_add_u32 v6, v2, 5, v6
    v_bfe_u32 v7, v0, 4, 1
    v_lshl_add_u32 v6, v7, 4, v6
    s_lshl_b32 s72, s{S_CBK}, 6
    s_add_u32 s72, s72, s{S_RB}
    s_lshl_b32 s72, s72, 10
    s_add_u32 s72, s72, {WS_OP}
    v_fmac_f32 v108, v104, v30
    v_fmac_f32 v109, v105, v30
    v_fmac_f32 v110, v106, v30
    v_fmac_f32 v111, v107, v30
    s_cmp_eq_u32 s{S_WAVE}, 0
    s_cbranch_scc1 L_w0bar
    ds_write_b128 v5, v[108:111]
    s_waitcnt lgkmcnt(0)
    s_barrier
    s_cmp_eq_u32 s{S_WAVE}, 1
    s_cbranch_scc1 L_fin
    s_branch L_stampout
L_w0bar:
    s_barrier
    v_add_u32 v5, {L_P3P}, v4
    ds_read_b128 v[32:35], v5 offset:1024
    ds_read_b128 v[36:39], v5 offset:2048
    ds_read_b128 v[40:43], v5 offset:3072
    s_waitcnt lgkmcnt(1)""")
    for k in range(4):
        g(f"""    v_add_f32 v{108+k}, v{108+k}, v{32+k}""")
    for k in range(4):
        g(f"""    v_add_f32 v{108+k}, v{108+k}, v{36+k}""")
    g("    s_waitcnt lgkmcnt(0)")
    for k in range(4):
        g(f"    v_add_f32 v{108+k}, v{108+k}, v{40+k}")
    for k in range(4):
        g(f"    v_bfi_b32 v{108+k}, s{S_FF}, v{16+k}, v{108+k}")
    g(f"    buffer_store_dwordx4 v[108:111], v6, {srd(S_WS)}, s72 offen sc1")
    g.stamp(7)
    g("    s_branch L_stampout")
    g(f"""L_fin:
    s_lshr_b32 s66, s{S_J}, 3
    s_lshl_b32 s66, s66, 3
    s_add_u32 s66, s66, s{S_HKV}
    s_lshl_b32 s66, s66, 3
    s_and_b32 s67, s{S_J}, 7
    s_add_u32 s66, s66, s67
    s_bfe_u32 s72, s66, 0x20005           ; cbk
    s_lshl_b32 s72, s72, 16
    s_lshr_b32 s73, s66, 7
    s_lshl_b32 s73, s73, 9
    s_add_u32 s72, s72, s73
    s_and_b32 s73, s66, 31
    s_lshl_b32 s73, s73, 4
    s_add_u32 s72, s72, s73
    s_add_u32 s72, s72, {WS_OP}
    v_lshlrev_b32 v6, 10, v0""")
    g.poll([f"buffer_load_dwordx4 v[32:35], v6, {srd(S_WS)}, s72 offen sc1"], [32], 48, sleep=cfg.sleep3, nk=13)
    g.stamp(8)
    g(f"""    v_permlane32_swap_b32 v32, v34
    v_permlane32_swap_b32 v33, v35
    v_add_f32 v32, v32, v34
    v_add_f32 v33, v33, v35
    v_permlane16_swap_b32 v32, v33
    v_add_f32 v32, v32, v33""")
    for k in (8, 4, 2, 1):
        g(f"    v_add_f32_dpp v32, v32, v32 row_ror:{k} row_mask:0xf bank_mask:0xf")
    g(f"""    v_cvt_pk_bf16_f32 v32, v32, v32
    v_lshlrev_b32 v6, 1, v3               ; row*2
    s_lshl_b32 s72, s66, 3
    v_cmp_eq_u32 vcc, 0, v2
    s_and_saveexec_b64 s[70:71], vcc
    buffer_store_short v32, v6, {srd(S_OUT)}, s72 offen
    s_cmp_eq_u32 s2, 0
    s_cbranch_scc0 L_noep
    s_mov_b64 exec, 1
    v_mov_b32 v7, s{S_TAG}
    v_mov_b32 v8, 0
    buffer_store_dword v7, v8, {srd(S_WS)}, 0 offen
L_noep:
    s_mov_b64 exec, s[70:71]""")
    g.stamp(9)
    g("L_stampout:")
    if cfg.stamps: stamp_out(g)
    g("    s_endpgm")
    g(f"""L_helper:
    s_mul_i32 s59, s2, 2341
    s_lshr_b32 s59, s59, 16               ; ks8 = c/28
    s_mul_i32 s60, s59, 28
    s_sub_u32 s60, s2, s60                ; fb
    s_lshl_b32 s61, s59, 6
    s_mul_i32 s62, s61, 3584
    s_lshl_b32 s63, s60, 7
    s_add_u32 s62, s62, s63               ; w1 soffset
    v_lshrrev_b32 v5, 3, v0               ; r8
    v_and_b32 v6, 7, v0
    v_lshlrev_b32 v6, 4, v6
    v_mul_u32_u24 v7, {8*3584}, v5
    v_add_u32 v7, v7, v6
    v_lshlrev_b32 v9, 4, v5               ; x voffset = 8*r8*2
    s_lshl_b32 s64, s61, 1
    v_lshlrev_b32 v11, 4, v0
    s_waitcnt lgkmcnt(0)
    s_load_dword s{S_TAG}, s[{S_WS}:{S_WS+1}], 0x0
    s_barrier
    buffer_load_dwordx4 v[112:115], v11, {srd(S_X)}, 0 offen
    buffer_load_dwordx4 v[116:119], v11, {srd(S_X)}, 0 offen offset:1024
    buffer_load_dwordx4 v[120:123], v11, {srd(S_GW)}, 0 offen
    buffer_load_dwordx4 v[20:23], v9, {srd(S_X)}, s64 offen
    buffer_load_dwordx4 v[28:31], v9, {srd(S_X)}, s64 offen offset:1024""")
    for t in range(8):
        g(f"    buffer_load_dwordx4 v[{64+4*t}:{67+4*t}], v7, {srd(S_W1)}, s62 offen{NT}")
        if t < 7: g("    s_add_u32 s62, s62, 3584")
    selectors(g); tags(g)
    g(f"""    s_mul_i32 s72, s59, {2*1792*4}
    s_lshl_b32 s73, s60, 8
    s_add_u32 s72, s72, s73
    s_add_u32 s72, s72, {WS_HP}
    v_lshrrev_b32 v4, 5, v0
    v_mul_u32_u24 v4, {1792*4}, v4        ; b*1792*4""")
    pub_addr(g)
    proj(g, 8, 20, 28, 2)
    g(f"""    s_cmp_ge_u32 s2, 224
    s_cbranch_scc1 L_nohpub
    s_mov_b64 exec, s[70:71]
    buffer_store_dwordx4 v[36:39], v4, {srd(S_WS)}, s72 offen sc1
    s_mov_b64 exec, -1
L_nohpub:""")
    g.stamp(2)
    for b in range(2):
        acc = 44 + b
        g(f"    v_mov_b32 v{acc}, 0")
        for r in range(4):
            xs = 112 + 4*b + r; gs = 120 + r
            g(f"""    v_lshlrev_b32 v46, 16, v{xs}
    v_lshlrev_b32 v47, 16, v{gs}
    v_and_b32 v48, 0xffff0000, v{xs}
    v_and_b32 v49, 0xffff0000, v{gs}
    v_mul_f32 v46, v46, v47
    v_mul_f32 v48, v48, v49
    v_cvt_pk_bf16_f32 v46, v46, v48
    v_lshlrev_b32 v47, 16, v46
    v_and_b32 v48, 0xffff0000, v46
    v_add_f32 v{acc}, v{acc}, v47
    v_add_f32 v{acc}, v{acc}, v48""")
    for k in (8, 4, 2, 1):
        g(f"""    v_add_f32_dpp v44, v44, v44 row_ror:{k} row_mask:0xf bank_mask:0xf
    v_add_f32_dpp v45, v45, v45 row_ror:{k} row_mask:0xf bank_mask:0xf""")
    for sw in ("v_permlane16_swap_b32", "v_permlane32_swap_b32"):
        g(f"""    v_mov_b32 v46, v44
    v_mov_b32 v47, v45
    {sw} v44, v46
    {sw} v45, v47
    v_add_f32 v44, v44, v46
    v_add_f32 v45, v45, v47""")
    g(f"""    v_cmp_gt_u32 vcc, 32, v0
    v_cndmask_b32 v44, v45, v44, vcc
    v_cvt_pk_bf16_f32 v44, v44, v44
    v_lshlrev_b32 v44, 16, v44
    v_mul_f32 v44, 0xbfb8aa3b, v44
    v_exp_f32 v44, v44
    v_add_f32 v44, 1.0, v44
    v_rcp_f32 v44, v44                    ; g
    v_lshrrev_b32 v4, 5, v0
    v_lshlrev_b32 v4, 2, v4
    ds_write_b32 v4, v44 offset:{L_GATE}
    v_and_b32 v8, 7, v0
    v_mul_u32_u24 v8, {2*1792*4}, v8
    v_bfe_u32 v9, v0, 3, 1
    v_mul_u32_u24 v10, {1792*4}, v9
    v_add_u32 v8, v8, v10
    v_lshl_add_u32 v8, v3, 4, v8          ; + qq*16
    v_add_u32 v11, 64, v8
    v_cmp_eq_u32 vcc, 3, v3
    v_cndmask_b32 v11, v11, v8, vcc
    s_mul_i32 s72, s{S_RB}, {28*4}
    s_add_u32 s72, s72, {WS_HP}""")
    g.wait_prog(cfg.hstart)
    g.poll([f"buffer_load_dwordx4 v[64:67], v8, {srd(S_WS)}, s72 offen sc1",
            f"buffer_load_dwordx4 v[68:71], v11, {srd(S_WS)}, s72 offen sc1"], [64, 68], 72, sleep=cfg.sleeph, nk=11)
    for dp in DPP8:
        for r in range(64, 72):
            g(f"    v_add_f32_dpp v{r}, v{r}, v{r} {dp} row_mask:0xf bank_mask:0xf")
    for q in range(2):
        r = 64 + 4*q
        g(f"""    v_cvt_pk_bf16_f32 v{r}, v{r}, v{r+1}
    v_cvt_pk_bf16_f32 v{r+2}, v{r+2}, v{r+3}
    v_and_b32 v{r+1}, 0xffff0000, v{r}
    v_lshlrev_b32 v{r}, 16, v{r}
    v_and_b32 v{r+3}, 0xffff0000, v{r+2}
    v_lshlrev_b32 v{r+2}, 16, v{r+2}""")
        for k in range(4):
            g(f"""    v_mul_f32 v{80+k}, 0xbfb8aa3b, v{r+k}
    v_exp_f32 v{80+k}, v{80+k}
    v_add_f32 v{80+k}, 1.0, v{80+k}
    v_rcp_f32 v{80+k}, v{80+k}
    v_mul_f32 v{r+k}, v{r+k}, v{80+k}""")
        g(f"""    v_cvt_pk_bf16_f32 v{r}, v{r}, v{r+1}
    v_cvt_pk_bf16_f32 v{r+1}, v{r+2}, v{r+3}""")
    g(f"""    v_lshlrev_b32 v4, 6, v9
    v_lshl_add_u32 v4, v3, 3, v4          ; b*64 + qq*8
    s_mov_b32 s70, 0x01010101
    s_mov_b32 s71, 0x01010101
    s_mov_b64 exec, s[70:71]
    ds_write_b64 v4, v[64:65] offset:{L_H}
    s_mov_b32 s71, 0x00000101
    s_mov_b64 exec, s[70:71]
    ds_write_b64 v4, v[68:69] offset:{L_H + 32}
    s_mov_b64 exec, -1
    v_mov_b32 v5, 1
    v_mov_b32 v4, 0
    ds_write_b32 v4, v5 offset:{L_HF}""")
    g.stamp(14)
    if cfg.stamps: stamp_out(g)
    g("    s_endpgm")
    g(f"""L_loader:
    s_setprio 3
    v_mov_b32 v10, 0
    ds_write_b32 v1, v10 offset:{L_PROG}
    ds_write_b32 v1, v10 offset:256
    ds_write_b32 v1, v10 offset:512
    s_lshr_b32 s52, s{S_J}, 4
    s_and_b32 s53, s{S_J}, 15
    s_lshl_b32 s54, s52, 3
    s_add_u32 s54, s54, s{S_HKV}
    s_lshl_b32 s54, s54, 23
    s_lshl_b32 s55, s53, 16
    s_add_u32 s54, s54, s55
    s_add_u32 s54, s54, {(32768-4096)*256}
    s_mul_i32 s56, s{S_J}, {cfg.rotmul}
    s_mul_i32 s57, s{S_HKV}, {cfg.rothkv}
    s_add_u32 s56, s56, s57
    v_lshlrev_b32 v4, 8, v3""")
    for n in range(4):
        g(f"""    v_add_u32 v5, {4*n}, v3
    v_xor_b32 v5, v5, v2
    v_lshl_add_u32 v{20+n}, v5, 4, v4""")
    g(f"""    v_lshlrev_b32 v5, 1, v3
    v_xor_b32 v5, v5, v2
    v_lshl_add_u32 v24, v5, 4, v4
    v_xor_b32 v25, 128, v24
    v_lshlrev_b32 v26, 10, v3
    v_lshl_add_u32 v26, v2, 4, v26
    s_lshl_b32 s60, s{S_RB}, 16            ; 64*rb*1024
    s_lshl_b32 s61, s{S_CBK}, 8
    s_add_u32 s60, s60, s61               ; wo soffset
    s_mul_i32 s62, s{S_RB}, {28*1024}
    s_add_u32 s62, s62, s61               ; w2 soffset
    s_mul_i32 s65, s{S_RB}, {cfg.wrot}
    s_waitcnt lgkmcnt(0)
    s_barrier""")
    seq = []
    for t in range(16):
        for n in range(4): seq.append(("k", t, n))
    for t in range(16):
        for n in range(4): seq.append(("v", t, n))
    wl = [("wo", n, 0) for n in range(16)]; w2l = [("w2", n, 0) for n in range(7)]
    seq += (w2l + wl) if cfg.w2first else (wl + w2l)
    N = len(seq)
    def post(done):
        val = done // 4 if done <= 128 else 33
        g(f"""    v_mov_b32 v10, {val}
    ds_write_b32 v1, v10 offset:{L_PROG}""")
        if done == 64: g.stamp(1)
        if done == 128: g.stamp(2)
        if done == N: g.stamp(3)
    def win(i): return cfg.wk if i < 64 else (cfg.wv if i < 128 else cfg.ww)
    miles = [d for d in range(1, N + 1) if (d <= 128 and d % 4 == 0) or d == N]
    st = {"issued": 0, "done": 0}
    def advance(need):
        while st["done"] < need:
            nxt = min([need] + [m for m in miles if m > st["done"]])
            g(f"    s_waitcnt vmcnt({st['issued'] - nxt})")
            st["done"] = nxt
            if nxt in miles: post(nxt)
    for i, (kind, t, n) in enumerate(seq):
        if kind in ("k", "v") and n == 0:
            g(f"""    s_add_u32 s63, s56, {t}
    s_and_b32 s63, s63, 15
    s_lshl_b32 s63, s63, 12
    s_add_u32 s63, s63, s54""")
        elif kind == "wo":
            g(f"""    s_add_u32 s63, s65, {t}
    s_and_b32 s63, s63, 15
    s_lshl_b32 s64, s63, 10
    s_lshl_b32 s63, s63, 12
    s_add_u32 s63, s63, s60""")
        elif kind == "w2":
            g(f"    s_add_u32 s63, s62, {t*4096}")
        advance(i + 1 - win(i))
        if kind in ("k", "v") and n == 0:
            g(f"    s_mov_b32 m0, {(L_K if kind == 'k' else L_V) + t*4096}")
            g("    s_nop 0")
        if kind == "k":
            g(f"    buffer_load_dwordx4 v{20+n}, {srd(S_K)}, s63 offen offset:{n*1024}{NT} lds")
        elif kind == "v":
            g(f"    buffer_load_dwordx4 v{24+(n&1)}, {srd(S_V)}, s63 offen offset:{n*1024}{NT} lds")
        elif kind == "wo":
            g(f"""    s_add_u32 m0, s64, {L_WO}
    s_nop 0
    buffer_load_dwordx4 v26, {srd(S_WO)}, s63 offen{NT} lds""")
        else:
            g(f"""    s_mov_b32 m0, {L_W2 + t*1024}
    s_nop 0
    buffer_load_dwordx4 v26, {srd(S_W2)}, s63 offen{NT} lds""")
        st["issued"] += 1
    advance(N)
    if cfg.stamps: stamp_out(g)
    g("""    s_endpgm
L_end:
    s_endpgm""")
    g(f""".section .rodata,"a"
.p2align 6
.amdhsa_kernel {KNAME}
  .amdhsa_next_free_vgpr {152 if cfg.stamps else 144}
  .amdhsa_next_free_sgpr 102
  .amdhsa_accum_offset {152 if cfg.stamps else 144}
  .amdhsa_group_segment_fixed_size 0
  .amdhsa_kernarg_size 96
  .amdhsa_user_sgpr_count 2
  .amdhsa_user_sgpr_kernarg_segment_ptr 1
  .amdhsa_system_sgpr_workgroup_id_x 1
.end_amdhsa_kernel
""")
    open(path, "w").write(hazard.fix(g.a.text(), True))

def parse(cfg, args):
    for a in args:
        k, v = a.split("=")
        cur = getattr(cfg, k)
        if isinstance(cur, bool): v = v in ("1", "True", "true")
        elif isinstance(cur, int): v = int(v)
        elif k == "nt": v = " " + v if v else ""
        setattr(cfg, k, v)
    return cfg

if __name__ == "__main__":
    gen(parse(Cfg(), sys.argv[2:]), sys.argv[1])
```

```python
import sys, math, struct
from asmlib import A
import hazard

KNAME = "gated_mix__sliding_block_cached__dense_activation_silu__decode_kernel"

class Cfg:
    wk = 20
    wv = 20
    ww = 20
    qstart = 4
    hstart = 10
    stamps = False
    spin_lds = 1 << 20
    spin_glb = 1 << 14
    nt = " nt"
    rotmul = 1
    rothkv = 0
    wrot = 1
    sleep1 = 0
    sleeph = 4
    sleep2 = 1
    sleep3 = 1
    na1 = 4
    na2 = 8
    w2first = True
    dbgst = False

WS_QP, WS_HP, WS_OP, WS_AP = 0x10000, 0x50000, 0x70000, 0x100000
D_QP, D_AP = 0x20000, 0x80000
WS_STAMP = 0x4000000

L_PROG, L_S2, L_HF, L_GATE, L_MX, L_LW, L_H = 0x000, 0x100, 0x110, 0x120, 0x140, 0x180, 0x1C0
L_Q, L_P, L_WO, L_W2, L_K, L_V = 0x280, 0x680, 0x1000, 0x5000, 0x7000, 0x17000
LDS_TOTAL = 0x27000
L_P3P = L_K
NW = 6

S_X, S_K, S_V, S_WQ, S_WO, S_W1, S_W2, S_GW, S_OUT, S_WS = 8, 12, 16, 20, 24, 28, 32, 36, 40, 44
def srd(b): return f"s[{b}:{b+3}]"
S_WAVE = 3
S_HKV, S_J = 48, 49
S_RB, S_CBK = 50, 51
S_T0 = 80
S_TAG = 84
S_PROG = 85
S_LIM = 86
S_FF = 87
VSEL = 136
VST = 144

def f32bits(x): return struct.unpack("<I", struct.pack("<f", x))[0]
DPP8 = ("quad_perm:[1,0,3,2]", "quad_perm:[2,3,0,1]", "row_half_mirror")

class G:
    def __init__(self, cfg):
        self.c = cfg; self.a = A(); self.lab = 0
    def __call__(self, s): self.a(s)
    def label(self, p="L"):
        self.lab += 1; return f"{p}_{self.lab}"
    def stamp(self, k):
        if self.c.stamps:
            self(f"""    s_memrealtime s[98:99]
    s_waitcnt lgkmcnt(0)
    v_writelane_b32 v{VST}, s98, {k}""")
    def note(self, k, sreg):
        if self.c.stamps:
            self(f"    v_writelane_b32 v{VST}, s{sreg}, {k}")
    def spin_tail(self, L):
        self(f"""    s_sub_u32 s{S_LIM}, s{S_LIM}, 1
    s_cmp_gt_i32 s{S_LIM}, 0
    s_cbranch_scc1 {L}""")
    def wait_prog(self, need, vtmp=10):
        L = self.label("Lp"); E = self.label("Lpe")
        self(f"""    s_cmp_ge_u32 s{S_PROG}, {need}
    s_cbranch_scc1 {E}
{L}:
    ds_read_b32 v{vtmp}, v1 offset:{L_PROG}
    s_waitcnt lgkmcnt(0)
    v_readfirstlane_b32 s{S_PROG}, v{vtmp}
    s_cmp_ge_u32 s{S_PROG}, {need}
    s_cbranch_scc1 {E}""")
        self.spin_tail(L)
        self(f"{E}:")
    def wait_nonzero4(self, dst, vaddr, off, tmp):
        L = self.label("Ls"); E = self.label("Lse")
        self(f"""{L}:
    ds_read_b128 v[{dst}:{dst+3}], v{vaddr} offset:{off}
    s_waitcnt lgkmcnt(0)
    v_min_u32 v{tmp}, v{dst}, v{dst+1}
    v_min3_u32 v{tmp}, v{tmp}, v{dst+2}, v{dst+3}
    v_cmp_eq_u32 vcc, 0, v{tmp}
    s_cbranch_vccz {E}""")
        self.spin_tail(L)
        self(f"{E}:")
    def wait_flag(self, off, n, vtmp, vzero):
        L = self.label("Lf"); E = self.label("Lfe")
        if n == 1:
            rd = f"ds_read_b32 v{vtmp}, v{vzero} offset:{off}"; comb = ""
        else:
            rd = f"ds_read_b64 v[{vtmp}:{vtmp+1}], v{vzero} offset:{off}"; comb = f"    v_min_u32 v{vtmp}, v{vtmp}, v{vtmp+1}\n"
        self(f"""{L}:
    {rd}
    s_waitcnt lgkmcnt(0)
{comb}    v_cmp_eq_u32 vcc, 0, v{vtmp}
    s_cbranch_vccz {E}""")
        self.spin_tail(L)
        self(f"{E}:")
    def poll(self, loads, granules, bad, mode="low", sleep=0, tmp=None, dual=None, nk=None):
        L = self.label("Lg"); E = self.label("Lge")
        self(f"    s_mov_b32 s101, {self.c.spin_glb}")
        self(f"{L}:")
        if dual:
            bases, tmps, delta, na = dual
            self(f"""    s_sub_u32 s100, {self.c.spin_glb - na}, s101
    s_cmp_ge_i32 s100, 0
    s_cselect_b32 s100, s101, 0
    s_and_b32 s100, s100, 1
    s_mul_i32 s100, s100, {delta}""")
            for bs, ts in zip(bases, tmps):
                self(f"    s_add_u32 s{ts}, s{bs}, s100")
        for ld in loads: self("    " + ld)
        self("    s_waitcnt vmcnt(0)")
        if mode == "low":
            for i, r in enumerate(granules):
                for k in range(4):
                    if i == 0 and k == 0:
                        self(f"    v_xor_b32 v{bad}, s{S_T0}, v{r}")
                    else:
                        self(f"    v_bitop3_b32 v{bad}, v{bad}, v{r+k}, s{S_T0+k} bitop3:0xf6")
            self(f"    v_and_b32 v{bad}, 0xff, v{bad}")
        else:
            for i, r in enumerate(granules):
                t = bad if i == 0 else tmp
                self(f"    v_bitop3_b32 v{t}, v{r}, v{r+1}, v{r+2} bitop3:0x96")
                self(f"    v_bitop3_b32 v{t}, v{t}, v{r+3}, s{S_TAG} bitop3:0x96")
                if i: self(f"    v_or_b32 v{bad}, v{bad}, v{t}")
        self(f"""    v_cmp_ne_u32 vcc, 0, v{bad}
    s_cbranch_vccz {E}""")
        if sleep: self(f"    s_sleep {sleep}")
        self(f"""    s_sub_u32 s101, s101, 1
    s_cmp_gt_i32 s101, 0
    s_cbranch_scc1 {L}
{E}:""")
        if nk is not None and self.c.stamps:
            self(f"    s_sub_u32 s100, {self.c.spin_glb}, s101")
            self.note(nk, 100)

def selectors(g):
    g(f"""    v_and_b32 v4, 1, v0                   ; e'&1
    v_bfe_u32 v5, v0, 1, 2                ; e'>>1
    v_mov_b32 v6, 0x0c0c0100
    v_mov_b32 v8, 0x01000c0c
    v_cmp_eq_u32 vcc, 1, v4
    v_cndmask_b32 v6, v6, v8, vcc
    v_mov_b32 v8, 0x0c0c0302
    v_mov_b32 v10, 0x03020c0c
    v_cndmask_b32 v8, v8, v10, vcc
    v_mov_b32 v10, 0x0c0c0c0c""")
    for r in range(4):
        g(f"""    v_cmp_eq_u32 vcc, {r}, v5
    v_cndmask_b32 v{VSEL+2*r}, v10, v6, vcc
    v_cndmask_b32 v{VSEL+1+2*r}, v10, v8, vcc""")

def tags(g):
    g(f"""    s_waitcnt lgkmcnt(0)
    s_add_u32 s{S_TAG}, s{S_TAG}, 0x01010101
    s_and_b32 s{S_T0}, s{S_TAG}, 0xff
    s_bfe_u32 s{S_T0+1}, s{S_TAG}, 0x80008
    s_bfe_u32 s{S_T0+2}, s{S_TAG}, 0x80010
    s_lshr_b32 s{S_T0+3}, s{S_TAG}, 24
    v_mov_b32 v16, s{S_T0}
    v_mov_b32 v17, s{S_T0+1}
    v_mov_b32 v18, s{S_T0+2}
    v_mov_b32 v19, s{S_T0+3}""")

def proj(g, n, x0, x1, nx):
    for r in range(128, 136): g(f"    v_mov_b32 v{r}, 0")
    g(f"    s_waitcnt vmcnt({n})")
    g.stamp(1)
    def build(t):
        base = 48 + (t & 1)*8
        for b, xb in ((0, x0), (1, x1)):
            for r in range(4):
                g(f"    v_perm_b32 v{base+4*b+r}, v{xb+(t>>1)}, v{xb+(t>>1)}, v{VSEL+2*r+(t&1)}")
    build(0)
    for t in range(n):
        if t + 1 < n: build(t + 1)
        base = 48 + (t & 1)*8
        g(f"    s_waitcnt vmcnt({n-1-t})")
        for b in range(2):
            g(f"    v_mfma_f32_16x16x32_bf16 v[{128+4*b}:{131+4*b}], v[{base+4*b}:{base+4*b+3}], v[{64+4*t}:{67+4*t}], v[{128+4*b}:{131+4*b}]")
    for k in range(4):
        g(f"    v_permlane32_swap_b32 v{128+k}, v{132+k}")
    for k in range(4):
        g(f"    v_add_f32_dpp v{36+k}, v{132+k}, v{128+k} row_ror:8 row_mask:0xf bank_mask:0xf")
    for k in range(4):
        g(f"    v_bfi_b32 v{36+k}, s{S_FF}, v{16+k}, v{36+k}")
def pub_addr(g):
    g("""    v_and_b32 v5, 7, v0
    v_lshl_add_u32 v4, v5, 5, v4          ; + cg*32
    v_bfe_u32 v5, v0, 4, 1
    v_lshl_add_u32 v4, v5, 4, v4          ; + half*16
    s_mov_b32 s70, 0x00ff00ff
    s_mov_b32 s71, 0x00ff00ff""")

def stamp_out(g):
    g(f"""    s_waitcnt vmcnt(0) lgkmcnt(0)
    s_mul_i32 s72, s2, {NW}
    s_add_u32 s72, s72, s{S_WAVE}
    s_lshl_b32 s72, s72, 6
    s_add_u32 s72, s72, {WS_STAMP}
    s_mov_b32 exec_lo, 0xffff
    s_mov_b32 exec_hi, 0
    buffer_store_dword v{VST}, v1, {srd(S_WS)}, s72 offen
    s_waitcnt vmcnt(0)""")

def gen(cfg, path):
    g = G(cfg)
    NT = cfg.nt
    g(f"""; @launch grid=(256,1,1) block=({NW*64},1,1) lds={LDS_TOTAL}
.amdgcn_target "amdgcn-amd-amdhsa--gfx950"
.text
.globl {KNAME}
.p2align 8
.type {KNAME},@function
{KNAME}:
    s_cmp_ge_u32 s2, 256
    s_cbranch_scc1 L_end""")
    if cfg.stamps:
        g(f"    s_memrealtime s[96:97]")
    if cfg.dbgst:
        g(f"    s_memrealtime s[94:95]")
        g(f"    s_load_dwordx2 s[88:89], s[0:1], 80")
        g(f"    s_mov_b32 s90, 256")
        g(f"    s_mov_b32 s91, 0x20000")
    tab = [(S_WS, 88, 1 << 29), (S_WQ, 24, 1 << 22), (S_X, 0, 2048), (S_W1, 48, 512*1792*2), (S_K, 8, 1 << 27), (S_V, 16, 1 << 27),
           (S_WO, 32, 1 << 22), (S_W2, 56, 512*1792*2), (S_GW, 64, 1024), (S_OUT, 72, 2048)]
    for b, off, sz in tab:
        g(f"    s_load_dwordx2 s[{b}:{b+1}], s[0:1], {off}")
    for b, off, sz in tab:
        g(f"    s_mov_b32 s{b+2}, {hex(sz)}")
        g(f"    s_mov_b32 s{b+3}, 0x20000")
    g(f"""    v_lshrrev_b32 v1, 6, v0
    v_and_b32 v0, 63, v0                  ; v0 = lane
    v_readfirstlane_b32 s{S_WAVE}, v1
    v_lshlrev_b32 v1, 2, v0               ; v1 = lane*4
    v_and_b32 v2, 15, v0                  ; v2 = l&15
    v_lshrrev_b32 v3, 4, v0               ; v3 = l>>4
    s_and_b32 s{S_HKV}, s2, 7
    s_lshr_b32 s{S_J}, s2, 3
    s_lshr_b32 s{S_RB}, s{S_J}, 2
    s_lshl_b32 s52, s{S_HKV}, 3
    s_add_u32 s{S_RB}, s{S_RB}, s52
    s_and_b32 s{S_CBK}, s{S_J}, 3
    s_mov_b32 s{S_PROG}, 0
    s_mov_b32 s{S_LIM}, {cfg.spin_lds}
    s_mov_b32 s{S_FF}, 0xff""")
    if cfg.stamps:
        g(f"""    s_waitcnt lgkmcnt(0)
    v_mov_b32 v{VST}, 0
    v_writelane_b32 v{VST}, s96, 0""")
    g(f"""    s_cmp_eq_u32 s{S_WAVE}, 4
    s_cbranch_scc1 L_loader
    s_cmp_eq_u32 s{S_WAVE}, 5
    s_cbranch_scc1 L_helper
    s_cmp_eq_u32 s{S_WAVE}, 0
    s_cbranch_scc1 L_p1q
    ; waves 1,2,3
    v_lshlrev_b32 v11, 4, v0              ; l*16
    s_waitcnt lgkmcnt(0)
    s_load_dword s{S_TAG}, s[{S_WS}:{S_WS+1}], 0x0
    s_barrier""")
    selectors(g); tags(g)
    g(f"""    s_cmp_eq_u32 s{S_WAVE}, 1
    s_cbranch_scc1 L_qwait""")
    g(f"""    s_lshr_b32 s72, s{S_J}, 4              ; b
    s_lshl_b32 s73, s72, 14               ; b*4096*4
    s_lshl_b32 s74, s{S_HKV}, 11          ; hkv*512*4
    s_add_u32 s73, s73, s74
    s_and_b32 s74, s{S_WAVE}, 1
    s_lshl_b32 s74, s74, 10
    s_add_u32 s73, s73, s74
    s_add_u32 s73, s73, {WS_QP}
    s_add_u32 s74, s73, {1*32768}
    s_add_u32 s75, s73, {2*32768}
    s_add_u32 s76, s73, {3*32768}""")
    g.wait_prog(cfg.qstart)
    g.stamp(15)
    g.poll([f"buffer_load_dwordx4 v[{32+4*k}:{35+4*k}], v11, {srd(S_WS)}, s{60+k} offen sc1" for k in range(4)], [32, 36, 40, 44], 48, sleep=cfg.sleep1,
           dual=([73, 74, 75, 76], [60, 61, 62, 63], D_QP, cfg.na1), nk=10)
    for k in range(4):
        g(f"""    v_add_f32 v{32+k}, v{32+k}, v{36+k}
    v_add_f32 v{40+k}, v{40+k}, v{44+k}""")
    for k in range(4):
        g(f"    v_add_f32 v{32+k}, v{32+k}, v{40+k}")
    g(f"""    v_cvt_pk_bf16_f32 v32, v32, v33
    v_cvt_pk_bf16_f32 v33, v34, v35
    v_lshlrev_b32 v4, 3, v0
    s_and_b32 s72, s{S_WAVE}, 1
    s_lshl_b32 s73, s72, 9
    v_add_u32 v4, s73, v4
    ds_write_b64 v4, v[32:33] offset:{L_Q}
    v_mov_b32 v5, 1
    s_lshl_b32 s72, s72, 2
    v_mov_b32 v4, s72
    ds_write_b32 v4, v5 offset:{L_S2}
    s_branch L_qwait""")
    g(f"""L_p1q:
    s_and_b32 s52, s{S_J}, 7               ; cb
    s_lshr_b32 s53, s{S_J}, 3              ; ks
    s_lshl_b32 s56, s53, 20               ; 128*ks*8192
    s_lshl_b32 s57, s{S_HKV}, 10
    s_lshl_b32 s58, s52, 7
    s_add_u32 s57, s57, s58
    s_add_u32 s56, s56, s57
    v_lshrrev_b32 v5, 3, v0               ; r8
    v_and_b32 v6, 7, v0
    v_lshlrev_b32 v6, 4, v6
    v_lshlrev_b32 v7, 17, v5
    v_add_u32 v7, v7, v6
    v_lshlrev_b32 v9, 5, v5               ; x voffset = 16*r8*2
    s_lshl_b32 s64, s53, 8                ; 128*ks*2
    s_waitcnt lgkmcnt(0)
    s_load_dword s{S_TAG}, s[{S_WS}:{S_WS+1}], 0x0
    buffer_load_dwordx4 v[20:23], v9, {srd(S_X)}, s64 offen
    buffer_load_dwordx4 v[24:27], v9, {srd(S_X)}, s64 offen offset:16
    buffer_load_dwordx4 v[28:31], v9, {srd(S_X)}, s64 offen offset:1024
    buffer_load_dwordx4 v[32:35], v9, {srd(S_X)}, s64 offen offset:1040""")
    for t in range(16):
        g(f"    buffer_load_dwordx4 v[{64+4*t}:{67+4*t}], v7, {srd(S_WQ)}, s56 offen{NT}")
        if t < 15: g("    s_add_u32 s56, s56, 8192")
    g("    s_barrier")
    selectors(g); tags(g)
    g(f"""    s_lshl_b32 s72, s53, 15
    s_lshl_b32 s73, s57, 1
    s_add_u32 s72, s72, s73
    s_add_u32 s72, s72, {WS_QP}
    s_add_u32 s73, s72, {D_QP}
    v_lshrrev_b32 v4, 5, v0
    v_lshlrev_b32 v4, 14, v4              ; b*4096*4""")
    pub_addr(g)
    proj(g, 16, 20, 28, 4)
    g(f"""    s_mov_b64 exec, s[70:71]
    buffer_store_dwordx4 v[36:39], v4, {srd(S_WS)}, s72 offen
    buffer_store_dwordx4 v[36:39], v4, {srd(S_WS)}, s73 offen sc1
    s_mov_b64 exec, -1""")
    g.stamp(2)
    g("L_qwait:")
    g(f"""    ; K read addresses v20..23 : L_K + w*4096 + i*256 + ((4t ^ g ^ i))*16
    v_xor_b32 v9, v3, v2                  ; g ^ i
    v_lshlrev_b32 v10, 8, v2              ; i*256
    s_lshl_b32 s72, s{S_WAVE}, 12
    s_add_u32 s72, s72, {L_K}
    v_add_u32 v10, s72, v10""")
    for t in range(4):
        g(f"""    v_xor_b32 v4, {4*t}, v9
    v_lshl_add_u32 v{20+t}, v4, 4, v10""")
    g(f"""    ; Q frag address v8: head*256 + (4t+g)*16 ; v4 = head*16 (MX/LW), v5 = v4 + 4w
    v_and_b32 v8, 3, v0
    v_lshlrev_b32 v4, 4, v8
    v_lshlrev_b32 v8, 8, v8
    v_lshl_add_u32 v8, v3, 4, v8
    s_lshl_b32 s72, s{S_WAVE}, 2
    v_add_u32 v5, s72, v4
    v_mov_b32 v9, 0""")
    for r in range(48, 64): g(f"    v_mov_b32 v{r}, 0")
    for T in range(3):
        g(f"    s_add_u32 s72, s{S_WAVE}, {4*T+1}")
        g.wait_prog("s72", 10)
        for t in range(4):
            r = 64 + T*16 + 4*t
            g(f"    ds_read_b128 v[{r}:{r+3}], v{20+t} offset:{T*16384}")
    g.wait_flag(L_S2, 2, 10, 9)
    g.stamp(3)
    for t in range(4):
        g(f"    ds_read_b128 v[{32+4*t}:{35+4*t}], v8 offset:{L_Q + t*64}")
    g(f"    s_add_u32 s72, s{S_WAVE}, 13")
    g.wait_prog("s72", 10)
    for t in range(4):
        r = 64 + 3*16 + 4*t
        g(f"    ds_read_b128 v[{r}:{r+3}], v{20+t} offset:{3*16384}")
    g("    s_waitcnt lgkmcnt(4)")
    for t in range(4):
        for T in range(3):
            r = 64 + T*16 + 4*t
            g(f"    v_mfma_f32_16x16x32_bf16 v[{48+4*T}:{51+4*T}], v[{r}:{r+3}], v[{32+4*t}:{35+4*t}], v[{48+4*T}:{51+4*T}]")
    g("    s_waitcnt lgkmcnt(0)")
    for t in range(4):
        r = 64 + 3*16 + 4*t
        g(f"    v_mfma_f32_16x16x32_bf16 v[60:63], v[{r}:{r+3}], v[{32+4*t}:{35+4*t}], v[60:63]")
    c = (128 ** -0.5) * math.log2(math.e)
    g(f"""    s_mov_b32 s61, {hex(f32bits(c))}
    v_max3_f32 v24, v48, v49, v50
    v_max3_f32 v25, v51, v52, v53
    v_max3_f32 v26, v54, v55, v56
    v_max3_f32 v27, v57, v58, v59
    v_max3_f32 v24, v24, v25, v26
    v_max3_f32 v28, v60, v61, v62
    v_max3_f32 v24, v24, v27, v63
    v_max_f32 v24, v24, v28
    v_mov_b32 v25, v24
    v_permlane16_swap_b32 v24, v25
    v_max_f32 v24, v24, v25
    v_mov_b32 v25, v24
    v_permlane32_swap_b32 v24, v25
    v_max_f32 v24, v24, v25
    v_or_b32 v24, 1, v24
    ds_write_b32 v5, v24 offset:{L_MX}""")
    g.wait_nonzero4(24, 4, L_MX, 28)
    g(f"""    v_max3_f32 v24, v24, v25, v26
    v_max_f32 v24, v24, v27
    v_mul_f32 v24, s61, v24""")
    for r in range(48, 64):
        g(f"    v_fma_f32 v{r}, v{r}, s61, -v24")
    for r in range(48, 64):
        g(f"    v_exp_f32 v{r}, v{r}")
    for T in range(4):
        g(f"    v_cvt_pk_bf16_f32 v{64+2*T}, v{48+4*T}, v{49+4*T}")
        g(f"    v_cvt_pk_bf16_f32 v{65+2*T}, v{50+4*T}, v{51+4*T}")
    g(f"""    v_and_b32 v6, 3, v0
    v_lshlrev_b32 v6, 6, v6
    v_lshl_add_u32 v6, v3, 4, v6
    s_lshr_b32 s72, s{S_WAVE}, 1
    s_lshl_b32 s72, s72, 8
    s_and_b32 s73, s{S_WAVE}, 1
    s_lshl_b32 s73, s73, 3
    s_add_u32 s72, s72, s73
    v_add_u32 v7, s72, v6""")
    for T in range(4):
        g(f"    ds_write_b64 v7, v[{64+2*T}:{65+2*T}] offset:{L_P + T*512}")
    g("""    v_add_f32 v25, v48, v49
    v_add_f32 v26, v50, v51
    v_add_f32 v27, v52, v53
    v_add_f32 v28, v54, v55
    v_add_f32 v29, v56, v57
    v_add_f32 v30, v58, v59
    v_add_f32 v31, v60, v61
    v_add_f32 v72, v62, v63
    v_add_f32 v25, v25, v26
    v_add_f32 v27, v27, v28
    v_add_f32 v29, v29, v30
    v_add_f32 v31, v31, v72
    v_add_f32 v25, v25, v27
    v_add_f32 v29, v29, v31
    v_add_f32 v25, v25, v29
    v_mov_b32 v26, v25
    v_permlane16_swap_b32 v25, v26
    v_add_f32 v25, v25, v26
    v_mov_b32 v26, v25
    v_permlane32_swap_b32 v25, v26
    v_add_f32 v25, v25, v26               ; l_w
    v_or_b32 v25, 1, v25""")
    g(f"    ds_write_b32 v5, v25 offset:{L_LW}")
    g(f"""    v_bfe_u32 v8, v0, 2, 2                ; r
    v_and_b32 v9, 3, v0                   ; c
    v_lshl_add_u32 v10, v3, 2, v8         ; 4g + r
    v_and_b32 v11, 7, v10                 ; k7
    v_lshlrev_b32 v10, 8, v10
    v_lshl_add_u32 v10, v9, 3, v10
    v_add_u32 v10, {L_V}, v10
    s_lshl_b32 s72, s{S_WAVE}, 1          ; dt0 = 2w
    v_xor_b32 v8, s72, v11
    v_lshl_add_u32 v20, v8, 5, v10
    s_add_u32 s72, s72, 1
    v_xor_b32 v8, s72, v11
    v_lshl_add_u32 v21, v8, 5, v10
    s_lshl_b32 s58, s{S_HKV}, 5
    s_add_u32 s58, s58, s{S_J}             ; producer
    s_lshl_b32 s58, s58, 11
    s_lshl_b32 s59, s{S_WAVE}, 7          ; 8w*16
    s_add_u32 s58, s58, s59
    s_add_u32 s58, s58, {WS_AP}
    s_add_u32 s59, s58, {D_AP}
    v_and_b32 v22, 3, v0
    v_lshlrev_b32 v22, 9, v22             ; head*512
    v_lshl_add_u32 v22, v3, 4, v22        ; + g'*16
    v_bfe_u32 v9, v0, 2, 1                ; dsel
    v_lshl_add_u32 v22, v9, 6, v22
    s_mov_b32 s54, 0x00f000f0
    s_mov_b32 s55, 0x00f000f0
    s_mov_b32 s56, 0x00ff00ff
    s_mov_b32 s57, 0x00ff00ff""")
    g.wait_nonzero4(28, 4, L_LW, 27)
    for u in range(8):
        g(f"    ds_read_b128 v[{32+4*u}:{35+4*u}], v6 offset:{L_P + u*256}")
    g(f"""    v_add_f32 v28, v28, v29
    v_add_f32 v30, v30, v31
    v_add_f32 v25, v28, v30               ; L
    v_rcp_f32 v26, v25                    ; v26 = 1/L
    v_log_f32 v27, v25
    v_add_f32 v27, v27, v24               ; v27 = lw
    v_xor_b32 v28, s{S_TAG}, v27""")
    for r in range(64, 72): g(f"    v_mov_b32 v{r}, 0")
    g.stamp(4)
    def pv_mfma(u):
        rb_ = 72 + (u & 1)*8
        for d in range(2):
            r = rb_ + d*4
            g(f"    v_mfma_f32_16x16x32_bf16 v[{64+4*d}:{67+4*d}], v[{r}:{r+3}], v[{32+4*u}:{35+4*u}], v[{64+4*d}:{67+4*d}]")
    for u in range(8):
        g.wait_prog(16 + 2*u + 2, 10)
        rb_ = 72 + (u & 1)*8
        for d in range(2):
            for h in range(2):
                r = rb_ + d*4 + 2*h
                g(f"    ds_read_b64_tr_b16 v[{r}:{r+1}], v{20+d} offset:{(2*u+h)*4096}")
        if u > 0:
            g("    s_waitcnt lgkmcnt(4)")
            pv_mfma(u - 1)
    g("    s_waitcnt lgkmcnt(0)")
    pv_mfma(7)
    g.stamp(5)
    g(f"""    v_cndmask_b32 v64, v64, v68, s[54:55]
    v_cndmask_b32 v65, v65, v69, s[54:55]
    v_cndmask_b32 v66, v66, v70, s[54:55]
    v_cndmask_b32 v67, v67, v71, s[54:55]
    v_mul_f32 v64, v64, v26
    v_mul_f32 v65, v65, v26
    v_mul_f32 v66, v66, v26
    v_mul_f32 v67, v67, v26
    v_cvt_pk_bf16_f32 v64, v64, v65
    v_cvt_pk_bf16_f32 v65, v66, v67
    v_mov_b32 v66, v27
    v_bitop3_b32 v67, v64, v65, v28 bitop3:0x96
    s_mov_b64 exec, s[56:57]
    buffer_store_dwordx4 v[64:67], v22, {srd(S_WS)}, s58 offen
    buffer_store_dwordx4 v[64:67], v22, {srd(S_WS)}, s59 offen sc1
    s_mov_b64 exec, -1""")
    g(f"""    ; lane (g, b'=(l>>3)&1, s8=l&7): granule index = 16*((j>>2)&1) + 4w + g  within head
    s_lshr_b32 s52, s{S_J}, 3              ; head4
    s_bfe_u32 s53, s{S_J}, 0x10002         ; (j>>2)&1
    v_and_b32 v8, 7, v0
    v_bfe_u32 v9, v0, 3, 1
    v_lshl_add_u32 v8, v9, 4, v8          ; b'*16 + s8
    v_lshlrev_b32 v8, 11, v8              ; *2048
    v_lshl_add_u32 v8, v3, 4, v8          ; + g*16
    s_lshl_b32 s72, s{S_HKV}, 16          ; hkv*32*2048
    s_lshl_b32 s73, s52, 9                ; head4*512
    s_add_u32 s72, s72, s73
    s_lshl_b32 s73, s53, 8
    s_add_u32 s72, s72, s73
    s_lshl_b32 s73, s{S_WAVE}, 6
    s_add_u32 s72, s72, s73
    s_add_u32 s72, s72, {WS_AP}
    s_add_u32 s73, s72, {8*2048}
    v_lshlrev_b32 v22, 10, v3             ; 4g*256
    v_lshl_add_u32 v22, v2, 4, v22        ; + j*16
    s_lshl_b32 s75, s{S_WAVE}, 12         ; 16w*256
    v_add_u32 v22, s75, v22               ; wo addr (+L_WO via offset)
    v_lshlrev_b32 v23, 8, v3              ; g*256
    v_lshl_add_u32 v23, v2, 4, v23
    s_lshl_b32 s75, s{S_WAVE}, 10         ; 4w*256
    v_add_u32 v23, s75, v23               ; w2 addr
    v_lshlrev_b32 v10, 6, v9
    v_lshl_add_u32 v10, v3, 1, v10
    s_lshl_b32 s75, s{S_WAVE}, 3
    v_add_u32 v10, s75, v10
    v_mov_b32 v11, 0""")
    for r in range(104, 112): g(f"    v_mov_b32 v{r}, 0")
    g.wait_flag(L_HF, 1, 12, 11)
    g(f"""    v_lshrrev_b32 v4, 5, v0
    v_lshlrev_b32 v4, 2, v4
    ds_read_b32 v30, v4 offset:{L_GATE}
    ds_read_u16 v40, v10 offset:{L_H}
    ds_read_u16 v41, v10 offset:{L_H + 32}
    s_waitcnt lgkmcnt(0)""")
    for q in range(2):
        for k in range(4):
            g(f"    v_perm_b32 v{96+4*q+k}, v{40+q}, v{40+q}, v{VSEL+2*k}")
    g.wait_prog(33, 49)
    for t in range(4):
        g(f"    ds_read_b128 v[{64+4*t}:{67+4*t}], v22 offset:{L_WO + t*256}")
    g(f"""    ds_read_b128 v[80:83], v23 offset:{L_W2}
    ds_read_b128 v[84:87], v23 offset:{L_W2 + 4096}
    s_waitcnt lgkmcnt(1)
    v_mfma_f32_16x16x32_bf16 v[108:111], v[96:99], v[80:83], v[108:111]
    s_waitcnt lgkmcnt(0)
    s_cmp_eq_u32 s{S_WAVE}, 3
    s_cbranch_scc1 L_now2b
    v_mfma_f32_16x16x32_bf16 v[108:111], v[100:103], v[84:87], v[108:111]
L_now2b:""")
    g.poll([f"buffer_load_dwordx4 v[32:35], v8, {srd(S_WS)}, s60 offen sc1",
            f"buffer_load_dwordx4 v[36:39], v8, {srd(S_WS)}, s61 offen sc1"], [32, 36], 48, mode="sum", tmp=49, sleep=cfg.sleep2,
           dual=([72, 73], [60, 61], D_AP, cfg.na2), nk=12)
    g.stamp(6)
    g("    v_max_f32 v48, v34, v38")
    g("""    v_lshlrev_b32 v50, 16, v32
    v_and_b32 v51, 0xffff0000, v32""")
    g(f"    v_max_f32_dpp v48, v48, v48 {DPP8[0]} row_mask:0xf bank_mask:0xf")
    g("""    v_lshlrev_b32 v52, 16, v33
    v_and_b32 v53, 0xffff0000, v33""")
    g(f"    v_max_f32_dpp v48, v48, v48 {DPP8[1]} row_mask:0xf bank_mask:0xf")
    g("""    v_lshlrev_b32 v54, 16, v36
    v_and_b32 v55, 0xffff0000, v36""")
    g(f"    v_max_f32_dpp v48, v48, v48 {DPP8[2]} row_mask:0xf bank_mask:0xf")
    g("""    v_lshlrev_b32 v56, 16, v37
    v_and_b32 v57, 0xffff0000, v37
    v_sub_f32 v40, v34, v48
    v_sub_f32 v44, v38, v48
    v_exp_f32 v40, v40
    v_exp_f32 v44, v44
    v_sub_f32 v31, 1.0, v30
    v_mul_f32 v32, v40, v50
    v_mul_f32 v33, v40, v51
    v_mul_f32 v34, v40, v52
    v_mul_f32 v35, v40, v53
    v_add_f32 v49, v40, v44
    v_fmac_f32 v32, v44, v54
    v_fmac_f32 v33, v44, v55
    v_fmac_f32 v34, v44, v56
    v_fmac_f32 v35, v44, v57""")
    for dp in DPP8:
        for r in (49, 32, 33, 34, 35):
            g(f"    v_add_f32_dpp v{r}, v{r}, v{r} {dp} row_mask:0xf bank_mask:0xf")
    g("""    v_rcp_f32 v49, v49
    v_mul_f32 v108, v108, v31
    v_mul_f32 v109, v109, v31
    v_mul_f32 v110, v110, v31
    v_mul_f32 v111, v111, v31
    v_mul_f32 v32, v32, v49
    v_mul_f32 v33, v33, v49
    v_mul_f32 v34, v34, v49
    v_mul_f32 v35, v35, v49
    v_cvt_pk_bf16_f32 v32, v32, v33
    v_cvt_pk_bf16_f32 v33, v34, v35""")
    for t in range(4):
        src = 32 + (t >> 1)
        for r in range(4):
            g(f"    v_perm_b32 v{112+4*t+r}, v{src}, v{src}, v{VSEL+2*r+(t&1)}")
    for t in range(4):
        g(f"    v_mfma_f32_16x16x32_bf16 v[104:107], v[{112+4*t}:{115+4*t}], v[{64+4*t}:{67+4*t}], v[104:107]")
    g(f"""    v_lshlrev_b32 v4, 4, v0               ; l*16
    s_lshl_b32 s72, s{S_WAVE}, 10
    s_add_u32 s72, s72, {L_P3P}
    v_add_u32 v5, s72, v4
    v_lshrrev_b32 v6, 5, v0
    v_lshlrev_b32 v6, 9, v6
    v_lshl_add_u32 v6, v2, 5, v6
    v_bfe_u32 v7, v0, 4, 1
    v_lshl_add_u32 v6, v7, 4, v6
    s_lshl_b32 s72, s{S_CBK}, 6
    s_add_u32 s72, s72, s{S_RB}
    s_lshl_b32 s72, s72, 10
    s_add_u32 s72, s72, {WS_OP}
    v_fmac_f32 v108, v104, v30
    v_fmac_f32 v109, v105, v30
    v_fmac_f32 v110, v106, v30
    v_fmac_f32 v111, v107, v30
    s_cmp_eq_u32 s{S_WAVE}, 0
    s_cbranch_scc1 L_w0bar
    ds_write_b128 v5, v[108:111]
    s_waitcnt lgkmcnt(0)
    s_barrier
    s_cmp_eq_u32 s{S_WAVE}, 1
    s_cbranch_scc1 L_fin
    s_branch L_stampout
L_w0bar:
    s_barrier
    v_add_u32 v5, {L_P3P}, v4
    ds_read_b128 v[32:35], v5 offset:1024
    ds_read_b128 v[36:39], v5 offset:2048
    ds_read_b128 v[40:43], v5 offset:3072
    s_waitcnt lgkmcnt(1)""")
    for k in range(4):
        g(f"""    v_add_f32 v{108+k}, v{108+k}, v{32+k}""")
    for k in range(4):
        g(f"""    v_add_f32 v{108+k}, v{108+k}, v{36+k}""")
    g("    s_waitcnt lgkmcnt(0)")
    for k in range(4):
        g(f"    v_add_f32 v{108+k}, v{108+k}, v{40+k}")
    for k in range(4):
        g(f"    v_bfi_b32 v{108+k}, s{S_FF}, v{16+k}, v{108+k}")
    g(f"    buffer_store_dwordx4 v[108:111], v6, {srd(S_WS)}, s72 offen sc1")
    g.stamp(7)
    g("    s_branch L_stampout")
    g(f"""L_fin:
    s_lshr_b32 s66, s{S_J}, 3
    s_lshl_b32 s66, s66, 3
    s_add_u32 s66, s66, s{S_HKV}
    s_lshl_b32 s66, s66, 3
    s_and_b32 s67, s{S_J}, 7
    s_add_u32 s66, s66, s67
    s_bfe_u32 s72, s66, 0x20005           ; cbk
    s_lshl_b32 s72, s72, 16
    s_lshr_b32 s73, s66, 7
    s_lshl_b32 s73, s73, 9
    s_add_u32 s72, s72, s73
    s_and_b32 s73, s66, 31
    s_lshl_b32 s73, s73, 4
    s_add_u32 s72, s72, s73
    s_add_u32 s72, s72, {WS_OP}
    v_lshlrev_b32 v6, 10, v0""")
    g.poll([f"buffer_load_dwordx4 v[32:35], v6, {srd(S_WS)}, s72 offen sc1"], [32], 48, sleep=cfg.sleep3, nk=13)
    g.stamp(8)
    g(f"""    v_permlane32_swap_b32 v32, v34
    v_permlane32_swap_b32 v33, v35
    v_add_f32 v32, v32, v34
    v_add_f32 v33, v33, v35
    v_permlane16_swap_b32 v32, v33
    v_add_f32 v32, v32, v33""")
    for k in (8, 4, 2, 1):
        g(f"    v_add_f32_dpp v32, v32, v32 row_ror:{k} row_mask:0xf bank_mask:0xf")
    g(f"""    v_cvt_pk_bf16_f32 v32, v32, v32
    v_lshlrev_b32 v6, 1, v3               ; row*2
    s_lshl_b32 s72, s66, 3
    v_cmp_eq_u32 vcc, 0, v2
    s_and_saveexec_b64 s[70:71], vcc
    buffer_store_short v32, v6, {srd(S_OUT)}, s72 offen
    s_cmp_eq_u32 s2, 0
    s_cbranch_scc0 L_noep
    s_mov_b64 exec, 1
    v_mov_b32 v7, s{S_TAG}
    v_mov_b32 v8, 0
    buffer_store_dword v7, v8, {srd(S_WS)}, 0 offen
L_noep:
    s_mov_b64 exec, s[70:71]""")
    if cfg.dbgst:
        g(f"""    s_cmp_lt_u32 s2, 8
    s_cbranch_scc0 L_nodbg
    s_memrealtime s[92:93]
    s_waitcnt lgkmcnt(0)
    v_mov_b32 v7, s94
    v_mov_b32 v8, s92
    s_lshl_b32 s72, s2, 2
    v_mov_b32 v9, 0
    s_mov_b64 exec, 1
    buffer_store_dword v7, v9, s[88:91], s72 offen
    buffer_store_dword v8, v9, s[88:91], s72 offen offset:32
    s_mov_b64 exec, -1
L_nodbg:""")
    g.stamp(9)
    g("L_stampout:")
    if cfg.stamps: stamp_out(g)
    g("    s_endpgm")
    g(f"""L_helper:
    s_mul_i32 s59, s2, 2341
    s_lshr_b32 s59, s59, 16               ; ks8 = c/28
    s_mul_i32 s60, s59, 28
    s_sub_u32 s60, s2, s60                ; fb
    s_lshl_b32 s61, s59, 6
    s_mul_i32 s62, s61, 3584
    s_lshl_b32 s63, s60, 7
    s_add_u32 s62, s62, s63               ; w1 soffset
    v_lshrrev_b32 v5, 3, v0               ; r8
    v_and_b32 v6, 7, v0
    v_lshlrev_b32 v6, 4, v6
    v_mul_u32_u24 v7, {8*3584}, v5
    v_add_u32 v7, v7, v6
    v_lshlrev_b32 v9, 4, v5               ; x voffset = 8*r8*2
    s_lshl_b32 s64, s61, 1
    v_lshlrev_b32 v11, 4, v0
    s_waitcnt lgkmcnt(0)
    s_load_dword s{S_TAG}, s[{S_WS}:{S_WS+1}], 0x0
    s_barrier
    buffer_load_dwordx4 v[112:115], v11, {srd(S_X)}, 0 offen
    buffer_load_dwordx4 v[116:119], v11, {srd(S_X)}, 0 offen offset:1024
    buffer_load_dwordx4 v[120:123], v11, {srd(S_GW)}, 0 offen
    buffer_load_dwordx4 v[20:23], v9, {srd(S_X)}, s64 offen
    buffer_load_dwordx4 v[28:31], v9, {srd(S_X)}, s64 offen offset:1024""")
    for t in range(8):
        g(f"    buffer_load_dwordx4 v[{64+4*t}:{67+4*t}], v7, {srd(S_W1)}, s62 offen{NT}")
        if t < 7: g("    s_add_u32 s62, s62, 3584")
    selectors(g); tags(g)
    g(f"""    s_mul_i32 s72, s59, {2*1792*4}
    s_lshl_b32 s73, s60, 8
    s_add_u32 s72, s72, s73
    s_add_u32 s72, s72, {WS_HP}
    v_lshrrev_b32 v4, 5, v0
    v_mul_u32_u24 v4, {1792*4}, v4        ; b*1792*4""")
    pub_addr(g)
    proj(g, 8, 20, 28, 2)
    g(f"""    s_cmp_ge_u32 s2, 224
    s_cbranch_scc1 L_nohpub
    s_mov_b64 exec, s[70:71]
    buffer_store_dwordx4 v[36:39], v4, {srd(S_WS)}, s72 offen sc1
    s_mov_b64 exec, -1
L_nohpub:""")
    g.stamp(2)
    for b in range(2):
        acc = 44 + b
        g(f"    v_mov_b32 v{acc}, 0")
        for r in range(4):
            xs = 112 + 4*b + r; gs = 120 + r
            g(f"""    v_lshlrev_b32 v46, 16, v{xs}
    v_lshlrev_b32 v47, 16, v{gs}
    v_and_b32 v48, 0xffff0000, v{xs}
    v_and_b32 v49, 0xffff0000, v{gs}
    v_mul_f32 v46, v46, v47
    v_mul_f32 v48, v48, v49
    v_cvt_pk_bf16_f32 v46, v46, v48
    v_lshlrev_b32 v47, 16, v46
    v_and_b32 v48, 0xffff0000, v46
    v_add_f32 v{acc}, v{acc}, v47
    v_add_f32 v{acc}, v{acc}, v48""")
    for k in (8, 4, 2, 1):
        g(f"""    v_add_f32_dpp v44, v44, v44 row_ror:{k} row_mask:0xf bank_mask:0xf
    v_add_f32_dpp v45, v45, v45 row_ror:{k} row_mask:0xf bank_mask:0xf""")
    for sw in ("v_permlane16_swap_b32", "v_permlane32_swap_b32"):
        g(f"""    v_mov_b32 v46, v44
    v_mov_b32 v47, v45
    {sw} v44, v46
    {sw} v45, v47
    v_add_f32 v44, v44, v46
    v_add_f32 v45, v45, v47""")
    g(f"""    v_cmp_gt_u32 vcc, 32, v0
    v_cndmask_b32 v44, v45, v44, vcc
    v_cvt_pk_bf16_f32 v44, v44, v44
    v_lshlrev_b32 v44, 16, v44
    v_mul_f32 v44, 0xbfb8aa3b, v44
    v_exp_f32 v44, v44
    v_add_f32 v44, 1.0, v44
    v_rcp_f32 v44, v44                    ; g
    v_lshrrev_b32 v4, 5, v0
    v_lshlrev_b32 v4, 2, v4
    ds_write_b32 v4, v44 offset:{L_GATE}
    v_and_b32 v8, 7, v0
    v_mul_u32_u24 v8, {2*1792*4}, v8
    v_bfe_u32 v9, v0, 3, 1
    v_mul_u32_u24 v10, {1792*4}, v9
    v_add_u32 v8, v8, v10
    v_lshl_add_u32 v8, v3, 4, v8          ; + qq*16
    v_add_u32 v11, 64, v8
    v_cmp_eq_u32 vcc, 3, v3
    v_cndmask_b32 v11, v11, v8, vcc
    s_mul_i32 s72, s{S_RB}, {28*4}
    s_add_u32 s72, s72, {WS_HP}""")
    g.wait_prog(cfg.hstart)
    g.poll([f"buffer_load_dwordx4 v[64:67], v8, {srd(S_WS)}, s72 offen sc1",
            f"buffer_load_dwordx4 v[68:71], v11, {srd(S_WS)}, s72 offen sc1"], [64, 68], 72, sleep=cfg.sleeph, nk=11)
    for dp in DPP8:
        for r in range(64, 72):
            g(f"    v_add_f32_dpp v{r}, v{r}, v{r} {dp} row_mask:0xf bank_mask:0xf")
    for q in range(2):
        r = 64 + 4*q
        g(f"""    v_cvt_pk_bf16_f32 v{r}, v{r}, v{r+1}
    v_cvt_pk_bf16_f32 v{r+2}, v{r+2}, v{r+3}
    v_and_b32 v{r+1}, 0xffff0000, v{r}
    v_lshlrev_b32 v{r}, 16, v{r}
    v_and_b32 v{r+3}, 0xffff0000, v{r+2}
    v_lshlrev_b32 v{r+2}, 16, v{r+2}""")
        for k in range(4):
            g(f"""    v_mul_f32 v{80+k}, 0xbfb8aa3b, v{r+k}
    v_exp_f32 v{80+k}, v{80+k}
    v_add_f32 v{80+k}, 1.0, v{80+k}
    v_rcp_f32 v{80+k}, v{80+k}
    v_mul_f32 v{r+k}, v{r+k}, v{80+k}""")
        g(f"""    v_cvt_pk_bf16_f32 v{r}, v{r}, v{r+1}
    v_cvt_pk_bf16_f32 v{r+1}, v{r+2}, v{r+3}""")
    g(f"""    v_lshlrev_b32 v4, 6, v9
    v_lshl_add_u32 v4, v3, 3, v4          ; b*64 + qq*8
    s_mov_b32 s70, 0x01010101
    s_mov_b32 s71, 0x01010101
    s_mov_b64 exec, s[70:71]
    ds_write_b64 v4, v[64:65] offset:{L_H}
    s_mov_b32 s71, 0x00000101
    s_mov_b64 exec, s[70:71]
    ds_write_b64 v4, v[68:69] offset:{L_H + 32}
    s_mov_b64 exec, -1
    v_mov_b32 v5, 1
    v_mov_b32 v4, 0
    ds_write_b32 v4, v5 offset:{L_HF}""")
    g.stamp(14)
    if cfg.stamps: stamp_out(g)
    g("    s_endpgm")
    g(f"""L_loader:
    s_setprio 3
    v_mov_b32 v10, 0
    ds_write_b32 v1, v10 offset:{L_PROG}
    ds_write_b32 v1, v10 offset:256
    ds_write_b32 v1, v10 offset:512
    s_lshr_b32 s52, s{S_J}, 4
    s_and_b32 s53, s{S_J}, 15
    s_lshl_b32 s54, s52, 3
    s_add_u32 s54, s54, s{S_HKV}
    s_lshl_b32 s54, s54, 23
    s_lshl_b32 s55, s53, 16
    s_add_u32 s54, s54, s55
    s_add_u32 s54, s54, {(32768-4096)*256}
    s_mul_i32 s56, s{S_J}, {cfg.rotmul}
    s_mul_i32 s57, s{S_HKV}, {cfg.rothkv}
    s_add_u32 s56, s56, s57
    v_lshlrev_b32 v4, 8, v3""")
    for n in range(4):
        g(f"""    v_add_u32 v5, {4*n}, v3
    v_xor_b32 v5, v5, v2
    v_lshl_add_u32 v{20+n}, v5, 4, v4""")
    g(f"""    v_lshlrev_b32 v5, 1, v3
    v_xor_b32 v5, v5, v2
    v_lshl_add_u32 v24, v5, 4, v4
    v_xor_b32 v25, 128, v24
    v_lshlrev_b32 v26, 10, v3
    v_lshl_add_u32 v26, v2, 4, v26
    s_lshl_b32 s60, s{S_RB}, 16            ; 64*rb*1024
    s_lshl_b32 s61, s{S_CBK}, 8
    s_add_u32 s60, s60, s61               ; wo soffset
    s_mul_i32 s62, s{S_RB}, {28*1024}
    s_add_u32 s62, s62, s61               ; w2 soffset
    s_mul_i32 s65, s{S_RB}, {cfg.wrot}
    s_waitcnt lgkmcnt(0)
    s_barrier""")
    seq = []
    for t in range(16):
        for n in range(4): seq.append(("k", t, n))
    for t in range(16):
        for n in range(4): seq.append(("v", t, n))
    wl = [("wo", n, 0) for n in range(16)]; w2l = [("w2", n, 0) for n in range(7)]
    seq += (w2l + wl) if cfg.w2first else (wl + w2l)
    N = len(seq)
    def post(done):
        val = done // 4 if done <= 128 else 33
        g(f"""    v_mov_b32 v10, {val}
    ds_write_b32 v1, v10 offset:{L_PROG}""")
        if done == 64: g.stamp(1)
        if done == 128: g.stamp(2)
        if done == N: g.stamp(3)
    def win(i): return cfg.wk if i < 64 else (cfg.wv if i < 128 else cfg.ww)
    miles = [d for d in range(1, N + 1) if (d <= 128 and d % 4 == 0) or d == N]
    st = {"issued": 0, "done": 0}
    def advance(need):
        while st["done"] < need:
            nxt = min([need] + [m for m in miles if m > st["done"]])
            g(f"    s_waitcnt vmcnt({st['issued'] - nxt})")
            st["done"] = nxt
            if nxt in miles: post(nxt)
    for i, (kind, t, n) in enumerate(seq):
        if kind in ("k", "v") and n == 0:
            g(f"""    s_add_u32 s63, s56, {t}
    s_and_b32 s63, s63, 15
    s_lshl_b32 s63, s63, 12
    s_add_u32 s63, s63, s54""")
        elif kind == "wo":
            g(f"""    s_add_u32 s63, s65, {t}
    s_and_b32 s63, s63, 15
    s_lshl_b32 s64, s63, 10
    s_lshl_b32 s63, s63, 12
    s_add_u32 s63, s63, s60""")
        elif kind == "w2":
            g(f"    s_add_u32 s63, s62, {t*4096}")
        advance(i + 1 - win(i))
        if kind in ("k", "v") and n == 0:
            g(f"    s_mov_b32 m0, {(L_K if kind == 'k' else L_V) + t*4096}")
            g("    s_nop 0")
        if kind == "k":
            g(f"    buffer_load_dwordx4 v{20+n}, {srd(S_K)}, s63 offen offset:{n*1024}{NT} lds")
        elif kind == "v":
            g(f"    buffer_load_dwordx4 v{24+(n&1)}, {srd(S_V)}, s63 offen offset:{n*1024}{NT} lds")
        elif kind == "wo":
            g(f"""    s_add_u32 m0, s64, {L_WO}
    s_nop 0
    buffer_load_dwordx4 v26, {srd(S_WO)}, s63 offen{NT} lds""")
        else:
            g(f"""    s_mov_b32 m0, {L_W2 + t*1024}
    s_nop 0
    buffer_load_dwordx4 v26, {srd(S_W2)}, s63 offen{NT} lds""")
        st["issued"] += 1
    advance(N)
    if cfg.stamps: stamp_out(g)
    g("""    s_endpgm
L_end:
    s_endpgm""")
    g(f""".section .rodata,"a"
.p2align 6
.amdhsa_kernel {KNAME}
  .amdhsa_next_free_vgpr {152 if cfg.stamps else 144}
  .amdhsa_next_free_sgpr 102
  .amdhsa_accum_offset {152 if cfg.stamps else 144}
  .amdhsa_group_segment_fixed_size 0
  .amdhsa_kernarg_size 96
  .amdhsa_user_sgpr_count 2
  .amdhsa_user_sgpr_kernarg_segment_ptr 1
  .amdhsa_system_sgpr_workgroup_id_x 1
.end_amdhsa_kernel
""")
    open(path, "w").write(hazard.fix(g.a.text(), True))

def parse(cfg, args):
    for a in args:
        k, v = a.split("=")
        cur = getattr(cfg, k)
        if isinstance(cur, bool): v = v in ("1", "True", "true")
        elif isinstance(cur, int): v = int(v)
        elif k == "nt": v = " " + v if v else ""
        setattr(cfg, k, v)
    return cfg

if __name__ == "__main__":
    gen(parse(Cfg(), sys.argv[2:]), sys.argv[1])
```

```python
import sys, math, struct
from asmlib import A
import hazard

KNAME = "gated_mix__sliding_block_cached__dense_activation_silu__decode_kernel"

class Cfg:
    wk = 20
    wv = 20
    ww = 20
    qstart = 4
    hstart = 20
    stamps = False
    spin_lds = 1 << 20
    spin_glb = 1 << 14
    nt = " nt"
    rotmul = 1
    rothkv = 0
    wrot = 1
    sleep1 = 0
    sleeph = 4
    sleep2 = 1
    sleep3 = 1
    na1 = 4
    na2 = 8
    w2first = True
    dbgst = False
    pretouch = True
    wdelay = False
    order = 'kvw'
    earlyld = False
    earlyn = 8
    qk = 3
    npoll3 = 1
    pre3 = 0
    stag3 = 2
    tlb = False
    pollfirst = True

WS_QP, WS_HP, WS_OP, WS_AP = 0x10000, 0x50000, 0x70000, 0x100000
D_QP, D_AP = 0x20000, 0x80000
WS_STAMP = 0x4000000

L_PROG, L_S2, L_HF, L_GATE, L_PUB, L_MX, L_LW, L_H = 0x000, 0x100, 0x110, 0x120, 0x130, 0x140, 0x180, 0x1C0
L_WF = 0x118
L_O = 0xE80
L_QF = 0x11C
L_Q, L_P, L_WO, L_W2, L_K, L_V = 0x280, 0x680, 0x1000, 0x5000, 0x7000, 0x17000
LDS_TOTAL = 0x27000
L_P3P = L_K
NW = 6

S_X, S_K, S_V, S_WQ, S_WO, S_W1, S_W2, S_GW, S_OUT, S_WS = 8, 12, 16, 20, 24, 28, 32, 36, 40, 44
def srd(b): return f"s[{b}:{b+3}]"
S_WAVE = 3
S_HKV, S_J = 48, 49
S_RB, S_CBK = 50, 51
S_T0 = 80
S_TAG = 84
S_PROG = 85
S_LIM = 86
S_FF = 87
VSEL = 136
VST = 144

def f32bits(x): return struct.unpack("<I", struct.pack("<f", x))[0]
DPP8 = ("quad_perm:[1,0,3,2]", "quad_perm:[2,3,0,1]", "row_half_mirror")

class G:
    def __init__(self, cfg):
        self.c = cfg; self.a = A(); self.lab = 0
    def __call__(self, s): self.a(s)
    def label(self, p="L"):
        self.lab += 1; return f"{p}_{self.lab}"
    def stamp(self, k):
        if self.c.stamps:
            self(f"""    s_memrealtime s[98:99]
    s_waitcnt lgkmcnt(0)
    v_writelane_b32 v{VST}, s98, {k}""")
    def note(self, k, sreg):
        if self.c.stamps:
            self(f"    v_writelane_b32 v{VST}, s{sreg}, {k}")
    def spin_tail(self, L):
        self(f"""    s_sub_u32 s{S_LIM}, s{S_LIM}, 1
    s_cmp_gt_i32 s{S_LIM}, 0
    s_cbranch_scc1 {L}""")
    def wait_prog(self, need, vtmp=10):
        L = self.label("Lp"); E = self.label("Lpe")
        self(f"""    s_cmp_ge_u32 s{S_PROG}, {need}
    s_cbranch_scc1 {E}
{L}:
    ds_read_b32 v{vtmp}, v1 offset:{L_PROG}
    s_waitcnt lgkmcnt(0)
    v_readfirstlane_b32 s{S_PROG}, v{vtmp}
    s_cmp_ge_u32 s{S_PROG}, {need}
    s_cbranch_scc1 {E}""")
        self.spin_tail(L)
        self(f"{E}:")
    def wait_nonzero4(self, dst, vaddr, off, tmp):
        L = self.label("Ls"); E = self.label("Lse")
        self(f"""{L}:
    ds_read_b128 v[{dst}:{dst+3}], v{vaddr} offset:{off}
    s_waitcnt lgkmcnt(0)
    v_min_u32 v{tmp}, v{dst}, v{dst+1}
    v_min3_u32 v{tmp}, v{tmp}, v{dst+2}, v{dst+3}
    v_cmp_eq_u32 vcc, 0, v{tmp}
    s_cbranch_vccz {E}""")
        self.spin_tail(L)
        self(f"{E}:")
    def wait_flag(self, off, n, vtmp, vzero):
        L = self.label("Lf"); E = self.label("Lfe")
        if n == 1:
            rd = f"ds_read_b32 v{vtmp}, v{vzero} offset:{off}"; comb = ""
        else:
            rd = f"ds_read_b64 v[{vtmp}:{vtmp+1}], v{vzero} offset:{off}"; comb = f"    v_min_u32 v{vtmp}, v{vtmp}, v{vtmp+1}\n"
        self(f"""{L}:
    {rd}
    s_waitcnt lgkmcnt(0)
{comb}    v_cmp_eq_u32 vcc, 0, v{vtmp}
    s_cbranch_vccz {E}""")
        self.spin_tail(L)
        self(f"{E}:")
    def poll(self, loads, granules, bad, mode="low", sleep=0, tmp=None, dual=None, nk=None):
        L = self.label("Lg"); E = self.label("Lge")
        self(f"    s_mov_b32 s101, {self.c.spin_glb}")
        self(f"{L}:")
        if dual:
            bases, tmps, delta, na = dual
            self(f"""    s_sub_u32 s100, {self.c.spin_glb - na}, s101
    s_cmp_ge_i32 s100, 0
    s_cselect_b32 s100, s101, 0
    s_and_b32 s100, s100, 1
    s_mul_i32 s100, s100, {delta}""")
            for bs, ts in zip(bases, tmps):
                self(f"    s_add_u32 s{ts}, s{bs}, s100")
        for ld in loads: self("    " + ld)
        self("    s_waitcnt vmcnt(0)")
        if mode == "low":
            for i, r in enumerate(granules):
                for k in range(4):
                    if i == 0 and k == 0:
                        self(f"    v_xor_b32 v{bad}, s{S_T0}, v{r}")
                    else:
                        self(f"    v_bitop3_b32 v{bad}, v{bad}, v{r+k}, s{S_T0+k} bitop3:0xf6")
            self(f"    v_and_b32 v{bad}, 0xff, v{bad}")
        else:
            for i, r in enumerate(granules):
                t = bad if i == 0 else tmp
                self(f"    v_bitop3_b32 v{t}, v{r}, v{r+1}, v{r+2} bitop3:0x96")
                self(f"    v_bitop3_b32 v{t}, v{t}, v{r+3}, s{S_TAG} bitop3:0x96")
                if i: self(f"    v_or_b32 v{bad}, v{bad}, v{t}")
        self(f"""    v_cmp_ne_u32 vcc, 0, v{bad}
    s_cbranch_vccz {E}""")
        if sleep: self(f"    s_sleep {sleep}")
        self(f"""    s_sub_u32 s101, s101, 1
    s_cmp_gt_i32 s101, 0
    s_cbranch_scc1 {L}
{E}:""")
        if nk is not None and self.c.stamps:
            self(f"    s_sub_u32 s100, {self.c.spin_glb}, s101")
            self.note(nk, 100)

def selectors(g):
    g(f"""    v_and_b32 v4, 1, v0                   ; e'&1
    v_bfe_u32 v5, v0, 1, 2                ; e'>>1
    v_mov_b32 v6, 0x0c0c0100
    v_mov_b32 v8, 0x01000c0c
    v_cmp_eq_u32 vcc, 1, v4
    v_cndmask_b32 v6, v6, v8, vcc
    v_mov_b32 v8, 0x0c0c0302
    v_mov_b32 v10, 0x03020c0c
    v_cndmask_b32 v8, v8, v10, vcc
    v_mov_b32 v10, 0x0c0c0c0c""")
    for r in range(4):
        g(f"""    v_cmp_eq_u32 vcc, {r}, v5
    v_cndmask_b32 v{VSEL+2*r}, v10, v6, vcc
    v_cndmask_b32 v{VSEL+1+2*r}, v10, v8, vcc""")

def tags(g):
    g(f"""    s_waitcnt lgkmcnt(0)
    s_add_u32 s{S_TAG}, s{S_TAG}, 0x01010101
    s_and_b32 s{S_T0}, s{S_TAG}, 0xff
    s_bfe_u32 s{S_T0+1}, s{S_TAG}, 0x80008
    s_bfe_u32 s{S_T0+2}, s{S_TAG}, 0x80010
    s_lshr_b32 s{S_T0+3}, s{S_TAG}, 24
    v_mov_b32 v16, s{S_T0}
    v_mov_b32 v17, s{S_T0+1}
    v_mov_b32 v18, s{S_T0+2}
    v_mov_b32 v19, s{S_T0+3}""")

def proj(g, n, x0, x1, nx):
    for r in range(128, 136): g(f"    v_mov_b32 v{r}, 0")
    g(f"    s_waitcnt vmcnt({n})")
    g.stamp(1)
    def build(t):
        base = 48 + (t & 1)*8
        for b, xb in ((0, x0), (1, x1)):
            for r in range(4):
                g(f"    v_perm_b32 v{base+4*b+r}, v{xb+(t>>1)}, v{xb+(t>>1)}, v{VSEL+2*r+(t&1)}")
    build(0)
    for t in range(n):
        if t + 1 < n: build(t + 1)
        base = 48 + (t & 1)*8
        g(f"    s_waitcnt vmcnt({n-1-t})")
        for b in range(2):
            g(f"    v_mfma_f32_16x16x32_bf16 v[{128+4*b}:{131+4*b}], v[{base+4*b}:{base+4*b+3}], v[{64+4*t}:{67+4*t}], v[{128+4*b}:{131+4*b}]")
    for k in range(4):
        g(f"    v_permlane32_swap_b32 v{128+k}, v{132+k}")
    for k in range(4):
        g(f"    v_add_f32_dpp v{36+k}, v{132+k}, v{128+k} row_ror:8 row_mask:0xf bank_mask:0xf")
    for k in range(4):
        g(f"    v_bfi_b32 v{36+k}, s{S_FF}, v{16+k}, v{36+k}")
def pub_addr(g):
    g("""    v_and_b32 v5, 7, v0
    v_lshl_add_u32 v4, v5, 5, v4          ; + cg*32
    v_bfe_u32 v5, v0, 4, 1
    v_lshl_add_u32 v4, v5, 4, v4          ; + half*16
    s_mov_b32 s70, 0x00ff00ff
    s_mov_b32 s71, 0x00ff00ff""")

def emit_w(g, cfg):
    g.wait_flag(L_WF, 1, 58, 11)
    g(f"""    ds_read_b128 v[80:83], v23 offset:{L_W2}
    ds_read_b128 v[84:87], v23 offset:{L_W2 + 4096}""")
    for t in range(4):
        g(f"    ds_read_b128 v[{64+4*t}:{67+4*t}], v22 offset:{L_WO + t*256}")
    lab = g.label("Lnw")
    g(f"""    s_waitcnt lgkmcnt(5)
    v_mfma_f32_16x16x32_bf16 v[108:111], v[96:99], v[80:83], v[108:111]
    s_waitcnt lgkmcnt(4)
    s_cmp_eq_u32 s{S_WAVE}, 3
    s_cbranch_scc1 {lab}
    v_mfma_f32_16x16x32_bf16 v[108:111], v[100:103], v[84:87], v[108:111]
{lab}:
    s_waitcnt lgkmcnt(0)""")

def stamp_out(g):
    g(f"""    s_waitcnt vmcnt(0) lgkmcnt(0)
    s_mul_i32 s72, s2, {NW}
    s_add_u32 s72, s72, s{S_WAVE}
    s_lshl_b32 s72, s72, 6
    s_add_u32 s72, s72, {WS_STAMP}
    s_mov_b32 exec_lo, 0xffff
    s_mov_b32 exec_hi, 0
    buffer_store_dword v{VST}, v1, {srd(S_WS)}, s72 offen
    s_waitcnt vmcnt(0)""")

def gen(cfg, path):
    g = G(cfg)
    NT = cfg.nt
    g(f"""; @launch grid=(256,1,1) block=({NW*64},1,1) lds={LDS_TOTAL}
.amdgcn_target "amdgcn-amd-amdhsa--gfx950"
.text
.globl {KNAME}
.p2align 8
.type {KNAME},@function
{KNAME}:
    s_cmp_ge_u32 s2, 256
    s_cbranch_scc1 L_end""")
    if cfg.stamps:
        g(f"    s_memrealtime s[96:97]")
    if cfg.dbgst:
        g(f"    s_memrealtime s[94:95]")
        g(f"    s_load_dwordx2 s[88:89], s[0:1], 80")
        g(f"    s_mov_b32 s90, 256")
        g(f"    s_mov_b32 s91, 0x20000")
    tab = [(S_WS, 88, 1 << 29), (S_WQ, 24, 1 << 22), (S_X, 0, 2048), (S_W1, 48, 512*1792*2), (S_K, 8, 1 << 27), (S_V, 16, 1 << 27),
           (S_WO, 32, 1 << 22), (S_W2, 56, 512*1792*2), (S_GW, 64, 1024), (S_OUT, 72, 2048)]
    for b, off, sz in tab:
        g(f"    s_load_dwordx2 s[{b}:{b+1}], s[0:1], {off}")
    for b, off, sz in tab:
        g(f"    s_mov_b32 s{b+2}, {hex(sz)}")
        g(f"    s_mov_b32 s{b+3}, 0x20000")
    g(f"""    v_lshrrev_b32 v1, 6, v0
    v_and_b32 v0, 63, v0                  ; v0 = lane
    v_readfirstlane_b32 s{S_WAVE}, v1
    v_lshlrev_b32 v1, 2, v0               ; v1 = lane*4
    v_and_b32 v2, 15, v0                  ; v2 = l&15
    v_lshrrev_b32 v3, 4, v0               ; v3 = l>>4
    s_and_b32 s{S_HKV}, s2, 7
    s_lshr_b32 s{S_J}, s2, 3
    s_lshr_b32 s{S_RB}, s{S_J}, 2
    s_lshl_b32 s52, s{S_HKV}, 3
    s_add_u32 s{S_RB}, s{S_RB}, s52
    s_and_b32 s{S_CBK}, s{S_J}, 3
    s_mov_b32 s{S_PROG}, 0
    s_mov_b32 s{S_LIM}, {cfg.spin_lds}
    s_mov_b32 s{S_FF}, 0xff""")
    if cfg.stamps:
        g(f"""    s_waitcnt lgkmcnt(0)
    v_mov_b32 v{VST}, 0
    v_writelane_b32 v{VST}, s96, 0""")
    g(f"""    s_cmp_eq_u32 s{S_WAVE}, 4
    s_cbranch_scc1 L_loader
    s_cmp_eq_u32 s{S_WAVE}, 5
    s_cbranch_scc1 L_helper
    s_cmp_eq_u32 s{S_WAVE}, 0
    s_cbranch_scc1 L_p1q
    ; waves 1,2,3
    v_lshlrev_b32 v11, 4, v0              ; l*16
    s_waitcnt lgkmcnt(0)
    s_load_dword s{S_TAG}, s[{S_WS}:{S_WS+1}], 0x0
    s_barrier""")
    selectors(g); tags(g)
    if cfg.tlb:
        g(f"""    s_cmp_eq_u32 s{S_WAVE}, 1
    s_cbranch_scc0 L_notw1
    ; translation warm-up: one dword from buffers first touched late (values unused)
    s_lshr_b32 s52, s{S_J}, 4
    s_lshl_b32 s54, s52, 3
    s_add_u32 s54, s54, s{S_HKV}
    s_lshl_b32 s54, s54, 23
    s_add_u32 s54, s54, {(32768-4096)*256}
    s_lshl_b32 s60, s{S_RB}, 16
    s_mul_i32 s62, s{S_RB}, {28*1024}
    v_mov_b32 v9, 0
    s_mov_b64 exec, 1
    buffer_load_dword v32, v9, {srd(S_V)}, s54 offen
    buffer_load_dword v33, v9, {srd(S_WO)}, s60 offen
    buffer_load_dword v34, v9, {srd(S_W2)}, s62 offen
    buffer_load_dword v35, v9, {srd(S_OUT)}, 0 offen
    s_mov_b64 exec, -1
    s_waitcnt vmcnt(0)
    s_branch L_qwait
L_notw1:""")
    else:
        g(f"""    s_cmp_eq_u32 s{S_WAVE}, 1
    s_cbranch_scc1 L_qwait""")
    g(f"""    s_lshr_b32 s72, s{S_J}, 4              ; b
    s_lshl_b32 s73, s72, 14               ; b*4096*4
    s_lshl_b32 s74, s{S_HKV}, 11          ; hkv*512*4
    s_add_u32 s73, s73, s74
    s_and_b32 s74, s{S_WAVE}, 1
    s_lshl_b32 s74, s74, 10
    s_add_u32 s73, s73, s74
    s_add_u32 s73, s73, {WS_QP}
    s_add_u32 s74, s73, {1*32768}
    s_add_u32 s75, s73, {2*32768}
    s_add_u32 s76, s73, {3*32768}""")
    if cfg.qk >= 0:
        g("    v_mov_b32 v9, 0")
        g.wait_flag(L_QF, 1, 10, 9)
        g(f"""    ds_read_b32 v10, v1 offset:{L_PROG}
    s_waitcnt lgkmcnt(0)
    v_readfirstlane_b32 s72, v10
    s_add_u32 s72, s72, {cfg.qk}
    s_min_u32 s72, s72, 16""")
        g.wait_prog("s72")
    else:
        g.wait_prog(cfg.qstart)
    g.stamp(15)
    g.poll([f"buffer_load_dwordx4 v[{32+4*k}:{35+4*k}], v11, {srd(S_WS)}, s{60+k} offen sc1" for k in range(4)], [32, 36, 40, 44], 48, sleep=cfg.sleep1,
           dual=([73, 74, 75, 76], [60, 61, 62, 63], D_QP, cfg.na1), nk=10)
    for k in range(4):
        g(f"""    v_add_f32 v{32+k}, v{32+k}, v{36+k}
    v_add_f32 v{40+k}, v{40+k}, v{44+k}""")
    for k in range(4):
        g(f"    v_add_f32 v{32+k}, v{32+k}, v{40+k}")
    g(f"""    v_cvt_pk_bf16_f32 v32, v32, v33
    v_cvt_pk_bf16_f32 v33, v34, v35
    v_lshlrev_b32 v4, 3, v0
    s_and_b32 s72, s{S_WAVE}, 1
    s_lshl_b32 s73, s72, 9
    v_add_u32 v4, s73, v4
    ds_write_b64 v4, v[32:33] offset:{L_Q}
    v_mov_b32 v5, 1
    s_lshl_b32 s72, s72, 2
    v_mov_b32 v4, s72
    ds_write_b32 v4, v5 offset:{L_S2}
    s_branch L_qwait""")
    g(f"""L_p1q:
    s_and_b32 s52, s{S_J}, 7               ; cb
    s_lshr_b32 s53, s{S_J}, 3              ; ks
    s_lshl_b32 s56, s53, 20               ; 128*ks*8192
    s_lshl_b32 s57, s{S_HKV}, 10
    s_lshl_b32 s58, s52, 7
    s_add_u32 s57, s57, s58
    s_add_u32 s56, s56, s57
    v_lshrrev_b32 v5, 3, v0               ; r8
    v_and_b32 v6, 7, v0
    v_lshlrev_b32 v6, 4, v6
    v_lshlrev_b32 v7, 17, v5
    v_add_u32 v7, v7, v6
    v_lshlrev_b32 v9, 5, v5               ; x voffset = 16*r8*2
    s_lshl_b32 s64, s53, 8                ; 128*ks*2
    s_waitcnt lgkmcnt(0)
    s_load_dword s{S_TAG}, s[{S_WS}:{S_WS+1}], 0x0
    buffer_load_dwordx4 v[20:23], v9, {srd(S_X)}, s64 offen
    buffer_load_dwordx4 v[24:27], v9, {srd(S_X)}, s64 offen offset:16
    buffer_load_dwordx4 v[28:31], v9, {srd(S_X)}, s64 offen offset:1024
    buffer_load_dwordx4 v[32:35], v9, {srd(S_X)}, s64 offen offset:1040""")
    for t in range(16):
        g(f"    buffer_load_dwordx4 v[{64+4*t}:{67+4*t}], v7, {srd(S_WQ)}, s56 offen{NT}")
        if t < 15: g("    s_add_u32 s56, s56, 8192")
    g("    s_barrier")
    selectors(g); tags(g)
    g(f"""    s_lshl_b32 s72, s53, 15
    s_lshl_b32 s73, s57, 1
    s_add_u32 s72, s72, s73
    s_add_u32 s72, s72, {WS_QP}
    s_add_u32 s73, s72, {D_QP}
    v_lshrrev_b32 v4, 5, v0
    v_lshlrev_b32 v4, 14, v4              ; b*4096*4""")
    pub_addr(g)
    proj(g, 16, 20, 28, 4)
    g(f"""    s_mov_b64 exec, s[70:71]
    buffer_store_dwordx4 v[36:39], v4, {srd(S_WS)}, s72 offen
    buffer_store_dwordx4 v[36:39], v4, {srd(S_WS)}, s73 offen sc1
    s_mov_b64 exec, -1
    v_mov_b32 v5, 1
    v_mov_b32 v4, 0
    ds_write_b32 v4, v5 offset:{L_QF}""")
    g.stamp(2)
    g("L_qwait:")
    g(f"""    ; K read addresses v20..23 : L_K + w*4096 + i*256 + ((4t ^ g ^ i))*16
    v_xor_b32 v9, v3, v2                  ; g ^ i
    v_lshlrev_b32 v10, 8, v2              ; i*256
    s_lshl_b32 s72, s{S_WAVE}, 12
    s_add_u32 s72, s72, {L_K}
    v_add_u32 v10, s72, v10""")
    for t in range(4):
        g(f"""    v_xor_b32 v4, {4*t}, v9
    v_lshl_add_u32 v{20+t}, v4, 4, v10""")
    g(f"""    ; Q frag address v8: head*256 + (4t+g)*16 ; v4 = head*16 (MX/LW), v5 = v4 + 4w
    v_and_b32 v8, 3, v0
    v_lshlrev_b32 v4, 4, v8
    v_lshlrev_b32 v8, 8, v8
    v_lshl_add_u32 v8, v3, 4, v8
    s_lshl_b32 s72, s{S_WAVE}, 2
    v_add_u32 v5, s72, v4
    v_mov_b32 v9, 0""")
    for r in range(48, 64): g(f"    v_mov_b32 v{r}, 0")
    for T in range(3):
        g(f"    s_add_u32 s72, s{S_WAVE}, {4*T+1}")
        g.wait_prog("s72", 10)
        for t in range(4):
            r = 64 + T*16 + 4*t
            g(f"    ds_read_b128 v[{r}:{r+3}], v{20+t} offset:{T*16384}")
    g.wait_flag(L_S2, 2, 10, 9)
    g.stamp(3)
    for t in range(4):
        g(f"    ds_read_b128 v[{32+4*t}:{35+4*t}], v8 offset:{L_Q + t*64}")
    g(f"    s_add_u32 s72, s{S_WAVE}, 13")
    g.wait_prog("s72", 10)
    for t in range(4):
        r = 64 + 3*16 + 4*t
        g(f"    ds_read_b128 v[{r}:{r+3}], v{20+t} offset:{3*16384}")
    g("    s_waitcnt lgkmcnt(4)")
    for t in range(4):
        for T in range(3):
            r = 64 + T*16 + 4*t
            g(f"    v_mfma_f32_16x16x32_bf16 v[{48+4*T}:{51+4*T}], v[{r}:{r+3}], v[{32+4*t}:{35+4*t}], v[{48+4*T}:{51+4*T}]")
    g("    s_waitcnt lgkmcnt(0)")
    for t in range(4):
        r = 64 + 3*16 + 4*t
        g(f"    v_mfma_f32_16x16x32_bf16 v[60:63], v[{r}:{r+3}], v[{32+4*t}:{35+4*t}], v[60:63]")
    c = (128 ** -0.5) * math.log2(math.e)
    g(f"""    s_mov_b32 s61, {hex(f32bits(c))}
    v_max3_f32 v24, v48, v49, v50
    v_max3_f32 v25, v51, v52, v53
    v_max3_f32 v26, v54, v55, v56
    v_max3_f32 v27, v57, v58, v59
    v_max3_f32 v24, v24, v25, v26
    v_max3_f32 v28, v60, v61, v62
    v_max3_f32 v24, v24, v27, v63
    v_max_f32 v24, v24, v28
    v_mov_b32 v25, v24
    v_permlane16_swap_b32 v24, v25
    v_max_f32 v24, v24, v25
    v_mov_b32 v25, v24
    v_permlane32_swap_b32 v24, v25
    v_max_f32 v24, v24, v25
    v_or_b32 v24, 1, v24
    ds_write_b32 v5, v24 offset:{L_MX}""")
    g.wait_nonzero4(24, 4, L_MX, 28)
    g(f"""    v_max3_f32 v24, v24, v25, v26
    v_max_f32 v24, v24, v27
    v_mul_f32 v24, s61, v24""")
    for r in range(48, 64):
        g(f"    v_fma_f32 v{r}, v{r}, s61, -v24")
    for r in range(48, 64):
        g(f"    v_exp_f32 v{r}, v{r}")
    for T in range(4):
        g(f"    v_cvt_pk_bf16_f32 v{64+2*T}, v{48+4*T}, v{49+4*T}")
        g(f"    v_cvt_pk_bf16_f32 v{65+2*T}, v{50+4*T}, v{51+4*T}")
    g(f"""    v_and_b32 v6, 3, v0
    v_lshlrev_b32 v6, 6, v6
    v_lshl_add_u32 v6, v3, 4, v6
    s_lshr_b32 s72, s{S_WAVE}, 1
    s_lshl_b32 s72, s72, 8
    s_and_b32 s73, s{S_WAVE}, 1
    s_lshl_b32 s73, s73, 3
    s_add_u32 s72, s72, s73
    v_add_u32 v7, s72, v6""")
    for T in range(4):
        g(f"    ds_write_b64 v7, v[{64+2*T}:{65+2*T}] offset:{L_P + T*512}")
    g("""    v_add_f32 v25, v48, v49
    v_add_f32 v26, v50, v51
    v_add_f32 v27, v52, v53
    v_add_f32 v28, v54, v55
    v_add_f32 v29, v56, v57
    v_add_f32 v30, v58, v59
    v_add_f32 v31, v60, v61
    v_add_f32 v72, v62, v63
    v_add_f32 v25, v25, v26
    v_add_f32 v27, v27, v28
    v_add_f32 v29, v29, v30
    v_add_f32 v31, v31, v72
    v_add_f32 v25, v25, v27
    v_add_f32 v29, v29, v31
    v_add_f32 v25, v25, v29
    v_mov_b32 v26, v25
    v_permlane16_swap_b32 v25, v26
    v_add_f32 v25, v25, v26
    v_mov_b32 v26, v25
    v_permlane32_swap_b32 v25, v26
    v_add_f32 v25, v25, v26               ; l_w
    v_or_b32 v25, 1, v25""")
    g(f"    ds_write_b32 v5, v25 offset:{L_LW}")
    g(f"""    v_bfe_u32 v8, v0, 2, 2                ; r
    v_and_b32 v9, 3, v0                   ; c
    v_lshl_add_u32 v10, v3, 2, v8         ; 4g + r
    v_and_b32 v11, 7, v10                 ; k7
    v_lshlrev_b32 v10, 8, v10
    v_lshl_add_u32 v10, v9, 3, v10
    v_add_u32 v10, {L_V}, v10
    s_lshl_b32 s72, s{S_WAVE}, 1          ; dt0 = 2w
    v_xor_b32 v8, s72, v11
    v_lshl_add_u32 v20, v8, 5, v10
    s_add_u32 s72, s72, 1
    v_xor_b32 v8, s72, v11
    v_lshl_add_u32 v21, v8, 5, v10
    s_lshl_b32 s58, s{S_HKV}, 5
    s_add_u32 s58, s58, s{S_J}             ; producer
    s_lshl_b32 s58, s58, 11
    s_lshl_b32 s59, s{S_WAVE}, 7          ; 8w*16
    s_add_u32 s58, s58, s59
    s_add_u32 s58, s58, {WS_AP}
    s_add_u32 s59, s58, {D_AP}
    v_and_b32 v22, 3, v0
    v_lshlrev_b32 v22, 9, v22             ; head*512
    v_lshl_add_u32 v22, v3, 4, v22        ; + g'*16
    v_bfe_u32 v9, v0, 2, 1                ; dsel
    v_lshl_add_u32 v22, v9, 6, v22
    s_mov_b32 s54, 0x00f000f0
    s_mov_b32 s55, 0x00f000f0
    s_mov_b32 s56, 0x00ff00ff
    s_mov_b32 s57, 0x00ff00ff""")
    g.wait_nonzero4(28, 4, L_LW, 27)
    for u in range(8):
        g(f"    ds_read_b128 v[{32+4*u}:{35+4*u}], v6 offset:{L_P + u*256}")
    g(f"""    v_add_f32 v28, v28, v29
    v_add_f32 v30, v30, v31
    v_add_f32 v25, v28, v30               ; L
    v_rcp_f32 v26, v25                    ; v26 = 1/L
    v_log_f32 v27, v25
    v_add_f32 v27, v27, v24               ; v27 = lw
    v_xor_b32 v28, s{S_TAG}, v27""")
    for r in range(64, 72): g(f"    v_mov_b32 v{r}, 0")
    if cfg.pretouch:
        g(f"""    v_mov_b32 v72, 0
    v_mov_b32 v73, 0
    v_mov_b32 v74, 0
    v_xor_b32 v75, 1, v72
    v_xor_b32 v75, s{S_TAG}, v75
    s_mov_b64 exec, s[56:57]
    buffer_store_dwordx4 v[72:75], v22, {srd(S_WS)}, s58 offen
    s_mov_b64 exec, -1""")
    g.stamp(4)
    def pv_mfma(u):
        rb_ = 72 + (u & 1)*8
        for d in range(2):
            r = rb_ + d*4
            g(f"    v_mfma_f32_16x16x32_bf16 v[{64+4*d}:{67+4*d}], v[{r}:{r+3}], v[{32+4*u}:{35+4*u}], v[{64+4*d}:{67+4*d}]")
    for u in range(8):
        g.wait_prog(16 + 2*u + 2, 10)
        rb_ = 72 + (u & 1)*8
        for d in range(2):
            for h in range(2):
                r = rb_ + d*4 + 2*h
                g(f"    ds_read_b64_tr_b16 v[{r}:{r+1}], v{20+d} offset:{(2*u+h)*4096}")
        if u > 0:
            g("    s_waitcnt lgkmcnt(4)")
            pv_mfma(u - 1)
    g("    s_waitcnt lgkmcnt(0)")
    pv_mfma(7)
    g.stamp(5)
    g(f"""    v_cndmask_b32 v64, v64, v68, s[54:55]
    v_cndmask_b32 v65, v65, v69, s[54:55]
    v_cndmask_b32 v66, v66, v70, s[54:55]
    v_cndmask_b32 v67, v67, v71, s[54:55]
    v_mul_f32 v64, v64, v26
    v_mul_f32 v65, v65, v26
    v_mul_f32 v66, v66, v26
    v_mul_f32 v67, v67, v26
    v_cvt_pk_bf16_f32 v64, v64, v65
    v_cvt_pk_bf16_f32 v65, v66, v67
    v_mov_b32 v66, v27
    v_bitop3_b32 v67, v64, v65, v28 bitop3:0x96
    s_mov_b64 exec, s[56:57]
    buffer_store_dwordx4 v[64:67], v22, {srd(S_WS)}, s58 offen
    buffer_store_dwordx4 v[64:67], v22, {srd(S_WS)}, s59 offen sc1
    s_mov_b64 exec, -1""")
    if cfg.wdelay:
        g(f"""    v_mov_b32 v9, 1
    s_lshl_b32 s72, s{S_WAVE}, 2
    v_mov_b32 v8, s72
    ds_write_b32 v8, v9 offset:{L_PUB}""")
    g(f"""    ; lane (g, b'=(l>>3)&1, s8=l&7): granule index = 16*((j>>2)&1) + 4w + g  within head
    s_lshr_b32 s52, s{S_J}, 3              ; head4
    s_bfe_u32 s53, s{S_J}, 0x10002         ; (j>>2)&1
    v_and_b32 v8, 7, v0
    v_bfe_u32 v9, v0, 3, 1
    v_lshl_add_u32 v8, v9, 4, v8          ; b'*16 + s8
    v_lshlrev_b32 v8, 11, v8              ; *2048
    v_lshl_add_u32 v8, v3, 4, v8          ; + g*16
    s_lshl_b32 s72, s{S_HKV}, 16          ; hkv*32*2048
    s_lshl_b32 s73, s52, 9                ; head4*512
    s_add_u32 s72, s72, s73
    s_lshl_b32 s73, s53, 8
    s_add_u32 s72, s72, s73
    s_lshl_b32 s73, s{S_WAVE}, 6
    s_add_u32 s72, s72, s73
    s_add_u32 s72, s72, {WS_AP}
    s_add_u32 s73, s72, {8*2048}
    v_add_u32 v20, {(L_WO - L_V) & 0xffffffff:#x}, v20
    v_add_u32 v21, {(L_WO - L_V) & 0xffffffff:#x}, v21
    v_lshlrev_b32 v10, 5, v3
    v_lshl_add_u32 v10, v9, 4, v10
    s_lshr_b32 s74, s{S_WAVE}, 1
    s_lshl_b32 s74, s74, 7
    s_and_b32 s75, s{S_WAVE}, 1
    s_lshl_b32 s75, s75, 3
    s_add_u32 s74, s74, s75
    v_add_u32 v10, s74, v10
    v_and_b32 v11, 1, v0
    v_lshlrev_b32 v12, 2, v11
    v_lshlrev_b32 v11, 4, v11
    v_lshl_add_u32 v11, v3, 5, v11        ; v11
    v_and_b32 v13, 1, v0
    v_lshlrev_b32 v13, 9, v13             ; b*512
    v_bfe_u32 v14, v0, 1, 1               ; ct
    v_lshl_add_u32 v13, v14, 6, v13
    v_lshl_add_u32 v13, v3, 4, v13        ; + g'*16
    s_lshl_b32 s76, s{S_CBK}, 6
    s_add_u32 s76, s76, s{S_RB}
    s_lshl_b32 s76, s76, 10
    s_lshl_b32 s77, s{S_WAVE}, 7
    s_add_u32 s76, s76, s77
    s_add_u32 s76, s76, {WS_OP}
    s_mov_b32 s54, 0xcccccccc
    s_mov_b32 s55, 0xcccccccc
    s_mov_b32 s56, 0x000f000f             ; lanes j<4
    s_mov_b32 s57, 0x000f000f
    s_mov_b32 s78, 0x01010101             ; lanes s8==0
    s_mov_b32 s79, 0x01010101""")
    for r in range(96, 112): g(f"    v_mov_b32 v{r}, 0")
    g.poll([f"buffer_load_dwordx4 v[32:35], v8, {srd(S_WS)}, s60 offen sc1",
            f"buffer_load_dwordx4 v[36:39], v8, {srd(S_WS)}, s61 offen sc1"], [32, 36], 48, mode="sum", tmp=49, sleep=cfg.sleep2,
           dual=([72, 73], [60, 61], D_AP, cfg.na2), nk=12)
    g.stamp(6)
    g("    v_max_f32 v48, v34, v38")
    g("""    v_lshlrev_b32 v50, 16, v32
    v_and_b32 v51, 0xffff0000, v32""")
    g(f"    v_max_f32_dpp v48, v48, v48 {DPP8[0]} row_mask:0xf bank_mask:0xf")
    g("""    v_lshlrev_b32 v52, 16, v33
    v_and_b32 v53, 0xffff0000, v33""")
    g(f"    v_max_f32_dpp v48, v48, v48 {DPP8[1]} row_mask:0xf bank_mask:0xf")
    g("""    v_lshlrev_b32 v54, 16, v36
    v_and_b32 v55, 0xffff0000, v36""")
    g(f"    v_max_f32_dpp v48, v48, v48 {DPP8[2]} row_mask:0xf bank_mask:0xf")
    g("""    v_lshlrev_b32 v56, 16, v37
    v_and_b32 v57, 0xffff0000, v37
    v_sub_f32 v40, v34, v48
    v_sub_f32 v44, v38, v48
    v_exp_f32 v40, v40
    v_exp_f32 v44, v44
    v_mul_f32 v32, v40, v50
    v_mul_f32 v33, v40, v51
    v_mul_f32 v34, v40, v52
    v_mul_f32 v35, v40, v53
    v_add_f32 v49, v40, v44
    v_fmac_f32 v32, v44, v54
    v_fmac_f32 v33, v44, v55
    v_fmac_f32 v34, v44, v56
    v_fmac_f32 v35, v44, v57""")
    for dp in DPP8:
        for r in (49, 32, 33, 34, 35):
            g(f"    v_add_f32_dpp v{r}, v{r}, v{r} {dp} row_mask:0xf bank_mask:0xf")
    g(f"""    v_rcp_f32 v49, v49
    v_mul_f32 v32, v32, v49
    v_mul_f32 v33, v33, v49
    v_mul_f32 v34, v34, v49
    v_mul_f32 v35, v35, v49
    v_cvt_pk_bf16_f32 v32, v32, v33
    v_cvt_pk_bf16_f32 v33, v34, v35
    s_mov_b64 exec, s[78:79]
    ds_write_b64 v10, v[32:33] offset:{L_O}
    s_mov_b64 exec, -1
    s_waitcnt lgkmcnt(0)
    s_barrier
    ds_read_b128 v[32:35], v11 offset:{L_O}
    ds_read_b128 v[36:39], v11 offset:{L_O + 128}""")
    for ks in range(2):
        for d in range(2):
            for h in range(2):
                r = 64 + (ks*2 + d)*4 + 2*h
                g(f"    ds_read_b64_tr_b16 v[{r}:{r+1}], v{20+d} offset:{(32*ks + 16*h)*256}")
    g(f"    ds_read_b128 v[40:43], v11 offset:{L_H}")
    for d in range(2):
        for h in range(2):
            r = 80 + d*4 + 2*h
            g(f"    ds_read_b64_tr_b16 v[{r}:{r+1}], v{20+d} offset:{L_W2 - L_WO + 16*h*256}")
    g(f"""    s_waitcnt lgkmcnt(11)
    v_mfma_f32_16x16x32_bf16 v[96:99], v[64:67], v[32:35], v[96:99]
    ds_read_b32 v30, v12 offset:{L_GATE}
    s_waitcnt lgkmcnt(10)
    v_mfma_f32_16x16x32_bf16 v[100:103], v[68:71], v[32:35], v[100:103]
    s_waitcnt lgkmcnt(8)
    v_mfma_f32_16x16x32_bf16 v[96:99], v[72:75], v[36:39], v[96:99]
    s_waitcnt lgkmcnt(6)
    v_mfma_f32_16x16x32_bf16 v[100:103], v[76:79], v[36:39], v[100:103]
    s_waitcnt lgkmcnt(3)
    v_mfma_f32_16x16x32_bf16 v[104:107], v[80:83], v[40:43], v[104:107]
    s_waitcnt lgkmcnt(1)
    v_mfma_f32_16x16x32_bf16 v[108:111], v[84:87], v[40:43], v[108:111]
    s_waitcnt lgkmcnt(0)
    v_sub_f32 v31, 1.0, v30
    v_cndmask_b32 v96, v96, v100, s[54:55]
    v_cndmask_b32 v97, v97, v101, s[54:55]
    v_cndmask_b32 v98, v98, v102, s[54:55]
    v_cndmask_b32 v99, v99, v103, s[54:55]
    v_mul_f32 v96, v96, v30
    v_mul_f32 v97, v97, v30
    v_mul_f32 v98, v98, v30
    v_mul_f32 v99, v99, v30
    v_cndmask_b32 v104, v104, v108, s[54:55]
    v_cndmask_b32 v105, v105, v109, s[54:55]
    v_cndmask_b32 v106, v106, v110, s[54:55]
    v_cndmask_b32 v107, v107, v111, s[54:55]
    v_fmac_f32 v96, v104, v31
    v_fmac_f32 v97, v105, v31
    v_fmac_f32 v98, v106, v31
    v_fmac_f32 v99, v107, v31""")
    for k in range(4):
        g(f"    v_bfi_b32 v{96+k}, s{S_FF}, v{16+k}, v{96+k}")
    g(f"""    s_mov_b64 exec, s[56:57]
    buffer_store_dwordx4 v[96:99], v13, {srd(S_WS)}, s76 offen sc1
    s_mov_b64 exec, -1""")
    g.stamp(7)
    g(f"""    s_cmp_ge_u32 s{S_WAVE}, {cfg.npoll3}
    s_cbranch_scc1 L_stampout""")
    if cfg.npoll3 > 1:
        for w in range(1, cfg.npoll3):
            lab = g.label("Lstg")
            g(f"""    s_cmp_lt_u32 s{S_WAVE}, {w}
    s_cbranch_scc1 {lab}
    s_sleep {cfg.stag3}
{lab}:""")
    g(f"""    ; Q = G*8 + (j&7), G = (j>>3)*8 + hkv   (G = b*16 + cbk*4 + qh)
    s_lshr_b32 s66, s{S_J}, 3
    s_lshl_b32 s66, s66, 3
    s_add_u32 s66, s66, s{S_HKV}
    s_lshl_b32 s66, s66, 3
    s_and_b32 s67, s{S_J}, 7
    s_add_u32 s66, s66, s67
    s_bfe_u32 s72, s66, 0x20005           ; cbk
    s_lshl_b32 s72, s72, 16
    s_lshr_b32 s73, s66, 7
    s_lshl_b32 s73, s73, 9
    s_add_u32 s72, s72, s73
    s_and_b32 s73, s66, 31
    s_lshl_b32 s73, s73, 4
    s_add_u32 s72, s72, s73
    s_add_u32 s72, s72, {WS_OP}
    v_lshlrev_b32 v6, 10, v0""")
    if cfg.pre3: g(f"    s_sleep {cfg.pre3}")
    g.poll([f"buffer_load_dwordx4 v[32:35], v6, {srd(S_WS)}, s72 offen sc1"], [32], 48, sleep=cfg.sleep3, nk=13)
    g.stamp(8)
    g(f"""    v_permlane32_swap_b32 v32, v34
    v_permlane32_swap_b32 v33, v35
    v_add_f32 v32, v32, v34
    v_add_f32 v33, v33, v35
    v_permlane16_swap_b32 v32, v33
    v_add_f32 v32, v32, v33""")
    for k in (8, 4, 2, 1):
        g(f"    v_add_f32_dpp v32, v32, v32 row_ror:{k} row_mask:0xf bank_mask:0xf")
    g(f"""    v_cvt_pk_bf16_f32 v32, v32, v32
    v_lshlrev_b32 v6, 1, v3               ; row*2
    s_lshl_b32 s72, s66, 3
    v_cmp_eq_u32 vcc, 0, v2
    s_and_saveexec_b64 s[70:71], vcc
    buffer_store_short v32, v6, {srd(S_OUT)}, s72 offen
    s_cmp_eq_u32 s2, 0
    s_cbranch_scc0 L_noep
    s_mov_b64 exec, 1
    v_mov_b32 v7, s{S_TAG}
    v_mov_b32 v8, 0
    buffer_store_dword v7, v8, {srd(S_WS)}, 0 offen
L_noep:
    s_mov_b64 exec, s[70:71]""")
    if cfg.dbgst:
        g(f"""    s_cmp_lt_u32 s2, 8
    s_cbranch_scc0 L_nodbg
    s_memrealtime s[92:93]
    s_waitcnt lgkmcnt(0)
    v_mov_b32 v7, s94
    v_mov_b32 v8, s92
    s_lshl_b32 s72, s2, 2
    v_mov_b32 v9, 0
    s_mov_b64 exec, 1
    buffer_store_dword v7, v9, s[88:91], s72 offen
    buffer_store_dword v8, v9, s[88:91], s72 offen offset:32
    s_mov_b64 exec, -1
L_nodbg:""")
    g.stamp(9)
    g("L_stampout:")
    if cfg.stamps: stamp_out(g)
    g("    s_endpgm")
    g(f"""L_helper:
    s_mul_i32 s59, s2, 2341
    s_lshr_b32 s59, s59, 16               ; ks8 = c/28
    s_mul_i32 s60, s59, 28
    s_sub_u32 s60, s2, s60                ; fb
    s_lshl_b32 s61, s59, 6
    s_mul_i32 s62, s61, 3584
    s_lshl_b32 s63, s60, 7
    s_add_u32 s62, s62, s63               ; w1 soffset
    v_lshrrev_b32 v5, 3, v0               ; r8
    v_and_b32 v6, 7, v0
    v_lshlrev_b32 v6, 4, v6
    v_mul_u32_u24 v7, {8*3584}, v5
    v_add_u32 v7, v7, v6
    v_lshlrev_b32 v9, 4, v5               ; x voffset = 8*r8*2
    s_lshl_b32 s64, s61, 1
    v_lshlrev_b32 v11, 4, v0
    s_waitcnt lgkmcnt(0)
    s_load_dword s{S_TAG}, s[{S_WS}:{S_WS+1}], 0x0
    s_barrier
    buffer_load_dwordx4 v[112:115], v11, {srd(S_X)}, 0 offen
    buffer_load_dwordx4 v[116:119], v11, {srd(S_X)}, 0 offen offset:1024
    buffer_load_dwordx4 v[120:123], v11, {srd(S_GW)}, 0 offen
    buffer_load_dwordx4 v[20:23], v9, {srd(S_X)}, s64 offen
    buffer_load_dwordx4 v[28:31], v9, {srd(S_X)}, s64 offen offset:1024""")
    for t in range(8):
        g(f"    buffer_load_dwordx4 v[{64+4*t}:{67+4*t}], v7, {srd(S_W1)}, s62 offen{NT}")
        if t < 7: g("    s_add_u32 s62, s62, 3584")
    selectors(g); tags(g)
    g(f"""    s_mul_i32 s72, s59, {2*1792*4}
    s_lshl_b32 s73, s60, 8
    s_add_u32 s72, s72, s73
    s_add_u32 s72, s72, {WS_HP}
    v_lshrrev_b32 v4, 5, v0
    v_mul_u32_u24 v4, {1792*4}, v4        ; b*1792*4""")
    pub_addr(g)
    proj(g, 8, 20, 28, 2)
    g(f"""    s_cmp_ge_u32 s2, 224
    s_cbranch_scc1 L_nohpub
    s_mov_b64 exec, s[70:71]
    buffer_store_dwordx4 v[36:39], v4, {srd(S_WS)}, s72 offen sc1
    s_mov_b64 exec, -1
L_nohpub:""")
    g.stamp(2)
    for b in range(2):
        acc = 44 + b
        g(f"    v_mov_b32 v{acc}, 0")
        for r in range(4):
            xs = 112 + 4*b + r; gs = 120 + r
            g(f"""    v_lshlrev_b32 v46, 16, v{xs}
    v_lshlrev_b32 v47, 16, v{gs}
    v_and_b32 v48, 0xffff0000, v{xs}
    v_and_b32 v49, 0xffff0000, v{gs}
    v_mul_f32 v46, v46, v47
    v_mul_f32 v48, v48, v49
    v_cvt_pk_bf16_f32 v46, v46, v48
    v_lshlrev_b32 v47, 16, v46
    v_and_b32 v48, 0xffff0000, v46
    v_add_f32 v{acc}, v{acc}, v47
    v_add_f32 v{acc}, v{acc}, v48""")
    for k in (8, 4, 2, 1):
        g(f"""    v_add_f32_dpp v44, v44, v44 row_ror:{k} row_mask:0xf bank_mask:0xf
    v_add_f32_dpp v45, v45, v45 row_ror:{k} row_mask:0xf bank_mask:0xf""")
    for sw in ("v_permlane16_swap_b32", "v_permlane32_swap_b32"):
        g(f"""    v_mov_b32 v46, v44
    v_mov_b32 v47, v45
    {sw} v44, v46
    {sw} v45, v47
    v_add_f32 v44, v44, v46
    v_add_f32 v45, v45, v47""")
    g(f"""    v_cmp_gt_u32 vcc, 32, v0
    v_cndmask_b32 v44, v45, v44, vcc
    v_cvt_pk_bf16_f32 v44, v44, v44
    v_lshlrev_b32 v44, 16, v44
    v_mul_f32 v44, 0xbfb8aa3b, v44
    v_exp_f32 v44, v44
    v_add_f32 v44, 1.0, v44
    v_rcp_f32 v44, v44                    ; g
    v_lshrrev_b32 v4, 5, v0
    v_lshlrev_b32 v4, 2, v4
    ds_write_b32 v4, v44 offset:{L_GATE}
    v_and_b32 v8, 7, v0
    v_mul_u32_u24 v8, {2*1792*4}, v8
    v_bfe_u32 v9, v0, 3, 1
    v_mul_u32_u24 v10, {1792*4}, v9
    v_add_u32 v8, v8, v10
    v_lshl_add_u32 v8, v3, 4, v8          ; + qq*16
    v_add_u32 v11, 64, v8
    v_cmp_eq_u32 vcc, 3, v3
    v_cndmask_b32 v11, v11, v8, vcc
    s_mul_i32 s72, s{S_RB}, {28*4}
    s_add_u32 s72, s72, {WS_HP}""")
    g.wait_prog(cfg.hstart)
    g.poll([f"buffer_load_dwordx4 v[64:67], v8, {srd(S_WS)}, s72 offen sc1",
            f"buffer_load_dwordx4 v[68:71], v11, {srd(S_WS)}, s72 offen sc1"], [64, 68], 72, sleep=cfg.sleeph, nk=11)
    for dp in DPP8:
        for r in range(64, 72):
            g(f"    v_add_f32_dpp v{r}, v{r}, v{r} {dp} row_mask:0xf bank_mask:0xf")
    for q in range(2):
        r = 64 + 4*q
        g(f"""    v_cvt_pk_bf16_f32 v{r}, v{r}, v{r+1}
    v_cvt_pk_bf16_f32 v{r+2}, v{r+2}, v{r+3}
    v_and_b32 v{r+1}, 0xffff0000, v{r}
    v_lshlrev_b32 v{r}, 16, v{r}
    v_and_b32 v{r+3}, 0xffff0000, v{r+2}
    v_lshlrev_b32 v{r+2}, 16, v{r+2}""")
        for k in range(4):
            g(f"""    v_mul_f32 v{80+k}, 0xbfb8aa3b, v{r+k}
    v_exp_f32 v{80+k}, v{80+k}
    v_add_f32 v{80+k}, 1.0, v{80+k}
    v_rcp_f32 v{80+k}, v{80+k}
    v_mul_f32 v{r+k}, v{r+k}, v{80+k}""")
        g(f"""    v_cvt_pk_bf16_f32 v{r}, v{r}, v{r+1}
    v_cvt_pk_bf16_f32 v{r+1}, v{r+2}, v{r+3}""")
    g(f"""    v_lshlrev_b32 v4, 4, v9
    v_lshl_add_u32 v4, v3, 5, v4          ; qq*32 + b*16
    s_mov_b32 s70, 0x01010101
    s_mov_b32 s71, 0x01010101
    s_mov_b64 exec, s[70:71]
    ds_write_b64 v4, v[64:65] offset:{L_H}
    s_mov_b32 s71, 0x00000101
    s_mov_b64 exec, s[70:71]
    ds_write_b64 v4, v[68:69] offset:{L_H + 8}
    s_mov_b64 exec, -1
    v_mov_b32 v5, 1
    v_mov_b32 v4, 0
    ds_write_b32 v4, v5 offset:{L_HF}""")
    g.stamp(14)
    if cfg.stamps: stamp_out(g)
    g("    s_endpgm")
    g(f"""L_loader:
    s_setprio 3
    v_mov_b32 v10, 0
    ds_write_b32 v1, v10 offset:{L_PROG}
    ds_write_b32 v1, v10 offset:256
    ds_write_b32 v1, v10 offset:512
    s_lshr_b32 s52, s{S_J}, 4
    s_and_b32 s53, s{S_J}, 15
    s_lshl_b32 s54, s52, 3
    s_add_u32 s54, s54, s{S_HKV}
    s_lshl_b32 s54, s54, 23
    s_lshl_b32 s55, s53, 16
    s_add_u32 s54, s54, s55
    s_add_u32 s54, s54, {(32768-4096)*256}
    s_mul_i32 s56, s{S_J}, {cfg.rotmul}
    s_mul_i32 s57, s{S_HKV}, {cfg.rothkv}
    s_add_u32 s56, s56, s57
    v_lshlrev_b32 v4, 8, v3""")
    for n in range(4):
        g(f"""    v_add_u32 v5, {4*n}, v3
    v_xor_b32 v5, v5, v2
    v_lshl_add_u32 v{20+n}, v5, 4, v4""")
    g(f"""    v_lshlrev_b32 v5, 1, v3
    v_xor_b32 v5, v5, v2
    v_lshl_add_u32 v24, v5, 4, v4
    v_xor_b32 v25, 128, v24
    v_lshlrev_b32 v5, 1, v3
    v_xor_b32 v5, v5, v2
    v_lshlrev_b32 v5, 4, v5
    v_lshl_add_u32 v26, v3, 10, v5
    v_xor_b32 v27, 128, v26               ; odd
    v_mov_b32 v12, 0
    v_mov_b32 v13, 0
    v_mov_b32 v14, 0
    v_mov_b32 v15, 0
    v_lshlrev_b32 v5, 4, v0
    ds_write_b128 v5, v[12:15] offset:{L_W2 + 7168}
    s_lshl_b32 s60, s{S_RB}, 16            ; 64*rb*1024
    s_lshl_b32 s61, s{S_CBK}, 8
    s_add_u32 s60, s60, s61               ; wo soffset
    s_mul_i32 s62, s{S_RB}, {28*1024}
    s_add_u32 s62, s62, s61               ; w2 soffset
    s_mul_i32 s65, s{S_RB}, {2*cfg.wrot}
    s_waitcnt lgkmcnt(0)""")
    if not cfg.earlyld: g("    s_barrier")
    kseq = [("k", t, n) for t in range(16) for n in range(4)]
    vseq = [("v", t, n) for t in range(16) for n in range(4)]
    wl = [("wo", n, 0) for n in range(16)]; w2l = [("w2", n, 0) for n in range(7)]
    wseq = (w2l + wl) if cfg.w2first else (wl + w2l)
    if cfg.order == "kvw": seq = kseq + vseq + wseq
    else: seq = kseq + wseq + vseq
    N = len(seq)
    mval = {}
    kv = 0; wdone = 0
    for i, (kind, t, n) in enumerate(seq):
        ch = False
        if kind in ("k", "v") and n == 3: kv += 1; ch = True
        if kind in ("wo", "w2") and (i + 1 == N or seq[i+1][0] not in ("wo", "w2")): wdone = 1; ch = True
        if ch: mval[i + 1] = (kv, wdone)
    def post(done):
        kv_, wd_ = mval[done]
        g(f"""    v_mov_b32 v10, {kv_}
    ds_write_b32 v1, v10 offset:{L_PROG}""")
        if wd_ and (seq[done-1][0] in ("wo", "w2")):
            g(f"""    v_mov_b32 v10, 1
    v_mov_b32 v11, 0
    ds_write_b32 v11, v10 offset:{L_WF}""")
            g.stamp(3)
        if seq[done-1][0] == "k" and kv_ == 16: g.stamp(1)
        if seq[done-1][0] == "v" and kv_ == 32: g.stamp(2)
    def win(i):
        k = seq[i][0]
        return cfg.wk if k == "k" else (cfg.wv if k == "v" else cfg.ww)
    miles = sorted(mval.keys())
    st = {"issued": 0, "done": 0}
    def advance(need):
        while st["done"] < need:
            nxt = min([need] + [m for m in miles if m > st["done"]])
            g(f"    s_waitcnt vmcnt({st['issued'] - nxt})")
            st["done"] = nxt
            if nxt in miles: post(nxt)
    for i, (kind, t, n) in enumerate(seq):
        if kind in ("k", "v") and n == 0:
            g(f"""    s_add_u32 s63, s56, {t}
    s_and_b32 s63, s63, 15
    s_lshl_b32 s63, s63, 12
    s_add_u32 s63, s63, s54""")
        elif kind == "wo":
            g(f"""    s_add_u32 s63, s65, {t}
    s_and_b32 s63, s63, 15
    s_lshl_b32 s64, s63, 10
    s_lshl_b32 s63, s63, 12
    s_add_u32 s63, s63, s60""")
        elif kind == "w2":
            g(f"    s_add_u32 s63, s62, {t*4096}")
        if cfg.wdelay and kind in ("wo", "w2") and seq[i-1][0] == "v":
            advance(i)
            L = g.label("Lwd"); E = g.label("Lwde")
            g(f"""    v_mov_b32 v11, 0
{L}:
    ds_read_b128 v[12:15], v11 offset:{L_PUB}
    s_waitcnt lgkmcnt(0)
    v_min_u32 v12, v12, v13
    v_min3_u32 v12, v12, v14, v15
    v_cmp_eq_u32 vcc, 0, v12
    s_cbranch_vccz {E}""")
            g.spin_tail(L)
            g(f"{E}:")
        advance(i + 1 - win(i))
        if kind in ("k", "v") and n == 0:
            g(f"    s_mov_b32 m0, {(L_K if kind == 'k' else L_V) + t*4096}")
            g("    s_nop 0")
        if kind == "k":
            g(f"    buffer_load_dwordx4 v{20+n}, {srd(S_K)}, s63 offen offset:{n*1024}{NT} lds")
        elif kind == "v":
            g(f"    buffer_load_dwordx4 v{24+(n&1)}, {srd(S_V)}, s63 offen offset:{n*1024}{NT} lds")
        elif kind == "wo":
            g(f"""    s_add_u32 m0, s64, {L_WO}
    s_nop 0
    buffer_load_dwordx4 v{26+(t&1)}, {srd(S_WO)}, s63 offen{NT} lds""")
        else:
            g(f"""    s_mov_b32 m0, {L_W2 + t*1024}
    s_nop 0
    buffer_load_dwordx4 v{26+(t&1)}, {srd(S_W2)}, s63 offen{NT} lds""")
        st["issued"] += 1
        if cfg.earlyld and i == cfg.earlyn - 1: g("    s_barrier")
    advance(N)
    if cfg.stamps: stamp_out(g)
    g("""    s_endpgm
L_end:
    s_endpgm""")
    g(f""".section .rodata,"a"
.p2align 6
.amdhsa_kernel {KNAME}
  .amdhsa_next_free_vgpr {152 if cfg.stamps else 144}
  .amdhsa_next_free_sgpr 102
  .amdhsa_accum_offset {152 if cfg.stamps else 144}
  .amdhsa_group_segment_fixed_size 0
  .amdhsa_kernarg_size 96
  .amdhsa_user_sgpr_count 2
  .amdhsa_user_sgpr_kernarg_segment_ptr 1
  .amdhsa_system_sgpr_workgroup_id_x 1
.end_amdhsa_kernel
""")
    open(path, "w").write(hazard.fix(g.a.text(), True))

def parse(cfg, args):
    for a in args:
        k, v = a.split("=")
        cur = getattr(cfg, k)
        if isinstance(cur, bool): v = v in ("1", "True", "true")
        elif isinstance(cur, int): v = int(v)
        elif k == "nt": v = " " + v if v else ""
        setattr(cfg, k, v)
    return cfg

if __name__ == "__main__":
    gen(parse(Cfg(), sys.argv[2:]), sys.argv[1])
```

```python
import sys, math, struct
from asmlib import A
import hazard

KNAME = "gated_mix__sliding_block_cached__dense_activation_silu__decode_kernel"

class Cfg:
    wk = 20
    wv = 20
    ww = 20
    qstart = 4
    hstart = 20
    stamps = False
    spin_lds = 1 << 20
    spin_glb = 1 << 14
    nt = " nt"
    rotmul = 1
    rothkv = 0
    wrot = 1
    sleep1 = 0
    sleeph = 4
    sleep2 = 1
    sleep3 = 1
    na1 = 4
    na2 = 8
    w2first = True
    dbgst = False
    pretouch = False
    wdelay = False
    order = 'kvw'
    earlyld = False
    earlyn = 8
    qk = 3
    npoll3 = 1
    pre3 = 0
    wgate = -1
    outtouch = 0
    aflag = ''
    outflag = ''
    strided = False
    oplay = 2
    vk = 12
    wm = 19
    streamonly = False
    stag3 = 2
    tlb = False
    pollfirst = True

WS_QP, WS_HP, WS_OP, WS_AP = 0x10000, 0x50000, 0x70000, 0x100000
D_QP, D_AP = 0x20000, 0x80000
WS_STAMP = 0x4000000

L_PROG, L_S2, L_HF, L_GATE, L_PUB, L_MX, L_LW, L_H = 0x000, 0x100, 0x110, 0x120, 0x130, 0x140, 0x180, 0x1C0
L_WF = 0x118
L_O = 0xE80
L_QF = 0x11C
L_Q, L_P, L_WO, L_W2, L_K, L_V = 0x280, 0x680, 0x1000, 0x5000, 0x7000, 0x17000
LDS_TOTAL = 0x27000
L_P3P = L_K
NW = 6

S_X, S_K, S_V, S_WQ, S_WO, S_W1, S_W2, S_GW, S_OUT, S_WS = 8, 12, 16, 20, 24, 28, 32, 36, 40, 44
def srd(b): return f"s[{b}:{b+3}]"
S_WAVE = 3
S_HKV, S_J = 48, 49
S_RB, S_CBK = 50, 51
S_T0 = 80
S_TAG = 84
S_PROG = 85
S_LIM = 86
S_FF = 87
W_P1Q, W_HELP, W_LOAD = 2, 4, 5
TAB = {'x': (S_X, 0, 2048), 'k': (S_K, 8, 1 << 27), 'v': (S_V, 16, 1 << 27), 'wq': (S_WQ, 24, 1 << 22), 'wo': (S_WO, 32, 1 << 22),
       'w1': (S_W1, 48, 512*1792*2), 'w2': (S_W2, 56, 512*1792*2), 'gw': (S_GW, 64, 1024), 'out': (S_OUT, 72, 2048), 'ws': (S_WS, 88, 1 << 29)}
VSEL = 136
VST = 144

def f32bits(x): return struct.unpack("<I", struct.pack("<f", x))[0]
DPP8 = ("quad_perm:[1,0,3,2]", "quad_perm:[2,3,0,1]", "row_half_mirror")

class G:
    def __init__(self, cfg):
        self.c = cfg; self.a = A(); self.lab = 0
    def __call__(self, s): self.a(s)
    def label(self, p="L"):
        self.lab += 1; return f"{p}_{self.lab}"
    def stamp(self, k):
        if self.c.stamps:
            self(f"""    s_memrealtime s[98:99]
    s_waitcnt lgkmcnt(0)
    v_writelane_b32 v{VST}, s98, {k}""")
    def note(self, k, sreg):
        if self.c.stamps:
            self(f"    v_writelane_b32 v{VST}, s{sreg}, {k}")
    def spin_tail(self, L):
        self(f"""    s_sub_u32 s{S_LIM}, s{S_LIM}, 1
    s_cmp_gt_i32 s{S_LIM}, 0
    s_cbranch_scc1 {L}""")
    def wait_prog(self, need, vtmp=10):
        L = self.label("Lp"); E = self.label("Lpe")
        self(f"""    s_cmp_ge_u32 s{S_PROG}, {need}
    s_cbranch_scc1 {E}
{L}:
    ds_read_b32 v{vtmp}, v1 offset:{L_PROG}
    s_waitcnt lgkmcnt(0)
    v_readfirstlane_b32 s{S_PROG}, v{vtmp}
    s_cmp_ge_u32 s{S_PROG}, {need}
    s_cbranch_scc1 {E}""")
        self.spin_tail(L)
        self(f"{E}:")
    def wait_nonzero4(self, dst, vaddr, off, tmp):
        L = self.label("Ls"); E = self.label("Lse")
        self(f"""{L}:
    ds_read_b128 v[{dst}:{dst+3}], v{vaddr} offset:{off}
    s_waitcnt lgkmcnt(0)
    v_min_u32 v{tmp}, v{dst}, v{dst+1}
    v_min3_u32 v{tmp}, v{tmp}, v{dst+2}, v{dst+3}
    v_cmp_eq_u32 vcc, 0, v{tmp}
    s_cbranch_vccz {E}""")
        self.spin_tail(L)
        self(f"{E}:")
    def wait_flag(self, off, n, vtmp, vzero):
        L = self.label("Lf"); E = self.label("Lfe")
        if n == 1:
            rd = f"ds_read_b32 v{vtmp}, v{vzero} offset:{off}"; comb = ""
        else:
            rd = f"ds_read_b64 v[{vtmp}:{vtmp+1}], v{vzero} offset:{off}"; comb = f"    v_min_u32 v{vtmp}, v{vtmp}, v{vtmp+1}\n"
        self(f"""{L}:
    {rd}
    s_waitcnt lgkmcnt(0)
{comb}    v_cmp_eq_u32 vcc, 0, v{vtmp}
    s_cbranch_vccz {E}""")
        self.spin_tail(L)
        self(f"{E}:")
    def poll(self, loads, granules, bad, mode="low", sleep=0, tmp=None, dual=None, nk=None):
        L = self.label("Lg"); E = self.label("Lge")
        self(f"    s_mov_b32 s101, {self.c.spin_glb}")
        self(f"{L}:")
        if dual:
            bases, tmps, delta, na = dual
            self(f"""    s_sub_u32 s100, {self.c.spin_glb - na}, s101
    s_cmp_ge_i32 s100, 0
    s_cselect_b32 s100, s101, 0
    s_and_b32 s100, s100, 1
    s_mul_i32 s100, s100, {delta}""")
            for bs, ts in zip(bases, tmps):
                self(f"    s_add_u32 s{ts}, s{bs}, s100")
        for ld in loads: self("    " + ld)
        self("    s_waitcnt vmcnt(0)")
        if mode == "low":
            for i, r in enumerate(granules):
                for k in range(4):
                    self(f"    v_xor_b32 v{r+k}, s{S_T0+k}, v{r+k}")
            for i, r in enumerate(granules):
                if i == 0:
                    self(f"    v_or3_b32 v{bad}, v{r}, v{r+1}, v{r+2}")
                    self(f"    v_or_b32 v{bad}, v{bad}, v{r+3}")
                else:
                    self(f"    v_or3_b32 v{bad}, v{bad}, v{r}, v{r+1}")
                    self(f"    v_or3_b32 v{bad}, v{bad}, v{r+2}, v{r+3}")
            self(f"    v_and_b32 v{bad}, 0xff, v{bad}")
        else:
            for i, r in enumerate(granules):
                t = bad if i == 0 else tmp
                self(f"    v_bitop3_b32 v{t}, v{r}, v{r+1}, v{r+2} bitop3:0x96")
                self(f"    v_bitop3_b32 v{t}, v{t}, v{r+3}, s{S_TAG} bitop3:0x96")
                if i: self(f"    v_or_b32 v{bad}, v{bad}, v{t}")
        self(f"""    v_cmp_ne_u32 vcc, 0, v{bad}
    s_cbranch_vccz {E}""")
        if sleep: self(f"    s_sleep {sleep}")
        self(f"""    s_sub_u32 s101, s101, 1
    s_cmp_gt_i32 s101, 0
    s_cbranch_scc1 {L}
{E}:""")
        if nk is not None and self.c.stamps:
            self(f"    s_sub_u32 s100, {self.c.spin_glb}, s101")
            self.note(nk, 100)

def srd_load(g, names):
    for n in names:
        b, off, sz = TAB[n]
        g(f"    s_load_dwordx2 s[{b}:{b+1}], s[0:1], {off}")
def srd_const(g, names):
    for n in names:
        b, off, sz = TAB[n]
        g(f"    s_mov_b32 s{b+2}, {hex(sz)}")
        g(f"    s_mov_b32 s{b+3}, 0x20000")
def lane_regs(g):
    g("""    v_and_b32 v2, 15, v0                  ; v2 = l&15
    v_lshrrev_b32 v3, 4, v0               ; v3 = l>>4""")
def common_rest(g, cfg):
    g(f"""    v_lshlrev_b32 v1, 2, v0               ; v1 = lane*4
    s_lshr_b32 s{S_RB}, s{S_J}, 2
    s_lshl_b32 s{S_CBK}, s{S_HKV}, 3
    s_add_u32 s{S_RB}, s{S_RB}, s{S_CBK}
    s_and_b32 s{S_CBK}, s{S_J}, 3
    s_mov_b32 s{S_PROG}, 0
    s_mov_b32 s{S_LIM}, {cfg.spin_lds}
    s_mov_b32 s{S_FF}, 0xff""")
    if cfg.stamps: g(f"    v_mov_b32 v{VST}, 0")

def selectors(g):
    g(f"""    v_and_b32 v4, 1, v0                   ; e'&1
    v_bfe_u32 v5, v0, 1, 2                ; e'>>1
    v_mov_b32 v6, 0x0c0c0100
    v_mov_b32 v8, 0x01000c0c
    v_cmp_eq_u32 vcc, 1, v4
    v_cndmask_b32 v6, v6, v8, vcc
    v_mov_b32 v8, 0x0c0c0302
    v_mov_b32 v10, 0x03020c0c
    v_cndmask_b32 v8, v8, v10, vcc
    v_mov_b32 v10, 0x0c0c0c0c""")
    for r in range(4):
        g(f"""    v_cmp_eq_u32 vcc, {r}, v5
    v_cndmask_b32 v{VSEL+2*r}, v10, v6, vcc
    v_cndmask_b32 v{VSEL+1+2*r}, v10, v8, vcc""")

def tags(g):
    g(f"""    s_waitcnt lgkmcnt(0)
    s_add_u32 s{S_TAG}, s{S_TAG}, 0x01010101
    s_and_b32 s{S_T0}, s{S_TAG}, 0xff
    s_bfe_u32 s{S_T0+1}, s{S_TAG}, 0x80008
    s_bfe_u32 s{S_T0+2}, s{S_TAG}, 0x80010
    s_lshr_b32 s{S_T0+3}, s{S_TAG}, 24
    v_mov_b32 v16, s{S_T0}
    v_mov_b32 v17, s{S_T0+1}
    v_mov_b32 v18, s{S_T0+2}
    v_mov_b32 v19, s{S_T0+3}""")

def proj(g, n, x0, x1, nx):
    for r in range(128, 136): g(f"    v_mov_b32 v{r}, 0")
    g(f"    s_waitcnt vmcnt({n})")
    g.stamp(1)
    def build(t):
        base = 48 + (t & 1)*8
        for b, xb in ((0, x0), (1, x1)):
            for r in range(4):
                g(f"    v_perm_b32 v{base+4*b+r}, v{xb+(t>>1)}, v{xb+(t>>1)}, v{VSEL+2*r+(t&1)}")
    build(0)
    for t in range(n):
        if t + 1 < n: build(t + 1)
        base = 48 + (t & 1)*8
        g(f"    s_waitcnt vmcnt({n-1-t})")
        for b in range(2):
            g(f"    v_mfma_f32_16x16x32_bf16 v[{128+4*b}:{131+4*b}], v[{base+4*b}:{base+4*b+3}], v[{64+4*t}:{67+4*t}], v[{128+4*b}:{131+4*b}]")
    for k in range(4):
        g(f"    v_permlane32_swap_b32 v{128+k}, v{132+k}")
    for k in range(4):
        g(f"    v_add_f32_dpp v{36+k}, v{132+k}, v{128+k} row_ror:8 row_mask:0xf bank_mask:0xf")
    for k in range(4):
        g(f"    v_bfi_b32 v{36+k}, s{S_FF}, v{16+k}, v{36+k}")
def pub_addr(g):
    g("""    v_and_b32 v5, 7, v0
    v_lshl_add_u32 v4, v5, 5, v4          ; + cg*32
    v_bfe_u32 v5, v0, 4, 1
    v_lshl_add_u32 v4, v5, 4, v4          ; + half*16
    s_mov_b32 s70, 0x00ff00ff
    s_mov_b32 s71, 0x00ff00ff""")

def emit_w(g, cfg):
    g.wait_flag(L_WF, 1, 58, 11)
    g(f"""    ds_read_b128 v[80:83], v23 offset:{L_W2}
    ds_read_b128 v[84:87], v23 offset:{L_W2 + 4096}""")
    for t in range(4):
        g(f"    ds_read_b128 v[{64+4*t}:{67+4*t}], v22 offset:{L_WO + t*256}")
    lab = g.label("Lnw")
    g(f"""    s_waitcnt lgkmcnt(5)
    v_mfma_f32_16x16x32_bf16 v[108:111], v[96:99], v[80:83], v[108:111]
    s_waitcnt lgkmcnt(4)
    s_cmp_eq_u32 s{S_WAVE}, 3
    s_cbranch_scc1 {lab}
    v_mfma_f32_16x16x32_bf16 v[108:111], v[100:103], v[84:87], v[108:111]
{lab}:
    s_waitcnt lgkmcnt(0)""")

def stamp_out(g):
    g(f"""    s_waitcnt vmcnt(0) lgkmcnt(0)
    v_writelane_b32 v{VST}, s96, 0
    s_mul_i32 s72, s2, {NW}
    s_add_u32 s72, s72, s{S_WAVE}
    s_lshl_b32 s72, s72, 6
    s_add_u32 s72, s72, {WS_STAMP}
    s_mov_b32 exec_lo, 0xffff
    s_mov_b32 exec_hi, 0
    buffer_store_dword v{VST}, v1, {srd(S_WS)}, s72 offen
    s_waitcnt vmcnt(0)""")

def gen(cfg, path):
    g = G(cfg)
    NT = cfg.nt
    g(f"""; @launch grid=(256,1,1) block=({NW*64},1,1) lds={LDS_TOTAL}
.amdgcn_target "amdgcn-amd-amdhsa--gfx950"
.text
.globl {KNAME}
.p2align 8
.type {KNAME},@function
{KNAME}:
    s_cmp_ge_u32 s2, 256
    s_cbranch_scc1 L_end""")
    if cfg.stamps:
        g(f"    s_memrealtime s[96:97]")
    if cfg.dbgst:
        g(f"    s_memrealtime s[94:95]")
        g(f"    s_load_dwordx2 s[88:89], s[0:1], 80")
        g(f"    s_mov_b32 s90, 256")
        g(f"    s_mov_b32 s91, 0x20000")
    g(f"""    v_lshrrev_b32 v1, 6, v0
    s_and_b32 s{S_HKV}, s2, 7
    s_lshr_b32 s{S_J}, s2, 3
    v_readfirstlane_b32 s{S_WAVE}, v1
    v_and_b32 v0, 63, v0                  ; v0 = lane
    s_cmp_eq_u32 s{S_WAVE}, {W_LOAD}
    s_cbranch_scc1 L_loader
    s_cmp_eq_u32 s{S_WAVE}, {W_P1Q}
    s_cbranch_scc1 L_p1q
    s_cmp_eq_u32 s{S_WAVE}, {W_HELP}
    s_cbranch_scc1 L_helper""")
    srd_load(g, ["ws", "out"]); srd_const(g, ["ws", "out"])
    lane_regs(g); common_rest(g, cfg)
    g(f"""    v_lshlrev_b32 v11, 4, v0              ; l*16
    s_waitcnt lgkmcnt(0)
    s_load_dword s{S_TAG}, s[{S_WS}:{S_WS+1}], 0x0
    s_barrier""")
    selectors(g); tags(g)
    g(f"""    s_cmp_eq_u32 s{S_WAVE}, 3
    s_cbranch_scc1 L_qwait""")
    if cfg.streamonly: g("    s_branch L_qwait")
    g(f"""    s_lshr_b32 s72, s{S_J}, 4              ; b
    s_lshl_b32 s73, s72, 14               ; b*4096*4
    s_lshl_b32 s74, s{S_HKV}, 11          ; hkv*512*4
    s_add_u32 s73, s73, s74
    s_and_b32 s74, s{S_WAVE}, 1
    s_lshl_b32 s74, s74, 10
    s_add_u32 s73, s73, s74
    s_add_u32 s73, s73, {WS_QP}
    s_add_u32 s74, s73, {1*32768}
    s_add_u32 s75, s73, {2*32768}
    s_add_u32 s76, s73, {3*32768}""")
    if cfg.qk >= 0:
        g("    v_mov_b32 v9, 0")
        g.wait_flag(L_QF, 1, 10, 9)
        g(f"""    ds_read_b32 v10, v1 offset:{L_PROG}
    s_waitcnt lgkmcnt(0)
    v_readfirstlane_b32 s72, v10
    s_add_u32 s72, s72, {cfg.qk}
    s_min_u32 s72, s72, 16""")
        g.wait_prog("s72")
    else:
        g.wait_prog(cfg.qstart)
    g.stamp(15)
    g.poll([f"buffer_load_dwordx4 v[{32+4*k}:{35+4*k}], v11, {srd(S_WS)}, s{60+k} offen sc1" for k in range(4)], [32, 36, 40, 44], 48, sleep=cfg.sleep1,
           dual=([73, 74, 75, 76], [60, 61, 62, 63], D_QP, cfg.na1), nk=10)
    for k in range(4):
        g(f"""    v_add_f32 v{32+k}, v{32+k}, v{36+k}
    v_add_f32 v{40+k}, v{40+k}, v{44+k}""")
    for k in range(4):
        g(f"    v_add_f32 v{32+k}, v{32+k}, v{40+k}")
    g(f"""    v_cvt_pk_bf16_f32 v32, v32, v33
    v_cvt_pk_bf16_f32 v33, v34, v35
    v_lshlrev_b32 v4, 3, v0
    s_and_b32 s72, s{S_WAVE}, 1
    s_lshl_b32 s73, s72, 9
    v_add_u32 v4, s73, v4
    ds_write_b64 v4, v[32:33] offset:{L_Q}
    v_mov_b32 v5, 1
    s_lshl_b32 s72, s72, 2
    v_mov_b32 v4, s72
    ds_write_b32 v4, v5 offset:{L_S2}
    s_branch L_qwait""")
    g("L_p1q:")
    srd_load(g, ["wq", "x", "ws", "out"]); srd_const(g, ["wq", "x"])
    g(f"""    s_and_b32 s52, s{S_J}, 7               ; cb
    s_lshr_b32 s53, s{S_J}, 3              ; ks
    s_lshl_b32 s56, s53, 20               ; 128*ks*8192
    s_lshl_b32 s57, s{S_HKV}, 10
    s_lshl_b32 s58, s52, 7
    s_add_u32 s57, s57, s58
    s_add_u32 s56, s56, s57
    v_lshrrev_b32 v5, 3, v0               ; r8
    v_and_b32 v6, 7, v0
    v_lshlrev_b32 v6, 4, v6
    v_lshlrev_b32 v7, 17, v5
    v_add_u32 v7, v7, v6
    v_lshlrev_b32 v9, 5, v5               ; x voffset = 16*r8*2
    s_lshl_b32 s64, s53, 8                ; 128*ks*2
    s_waitcnt lgkmcnt(0)
    buffer_load_dwordx4 v[20:23], v9, {srd(S_X)}, s64 offen
    buffer_load_dwordx4 v[24:27], v9, {srd(S_X)}, s64 offen offset:16
    buffer_load_dwordx4 v[28:31], v9, {srd(S_X)}, s64 offen offset:1024
    buffer_load_dwordx4 v[32:35], v9, {srd(S_X)}, s64 offen offset:1040""")
    for t in range(16):
        g(f"    buffer_load_dwordx4 v[{64+4*t}:{67+4*t}], v7, {srd(S_WQ)}, s56 offen{NT}")
        if t < 15: g("    s_add_u32 s56, s56, 8192")
    g(f"    s_load_dword s{S_TAG}, s[{S_WS}:{S_WS+1}], 0x0")
    srd_const(g, ["ws", "out"]); lane_regs(g); common_rest(g, cfg)
    g("    s_barrier")
    selectors(g); tags(g)
    g(f"""    s_lshl_b32 s72, s53, 15
    s_lshl_b32 s73, s57, 1
    s_add_u32 s72, s72, s73
    s_add_u32 s72, s72, {WS_QP}
    s_add_u32 s73, s72, {D_QP}
    v_lshrrev_b32 v4, 5, v0
    v_lshlrev_b32 v4, 14, v4              ; b*4096*4""")
    pub_addr(g)
    proj(g, 16, 20, 28, 4)
    g(f"""    s_mov_b64 exec, s[70:71]
    buffer_store_dwordx4 v[36:39], v4, {srd(S_WS)}, s72 offen {cfg.aflag}
    buffer_store_dwordx4 v[36:39], v4, {srd(S_WS)}, s73 offen sc1
    s_mov_b64 exec, -1
    v_mov_b32 v5, 1
    v_mov_b32 v4, 0
    ds_write_b32 v4, v5 offset:{L_QF}""")
    g.stamp(2)
    g("L_qwait:")
    if cfg.streamonly:
        g("    s_waitcnt vmcnt(0)\n    s_endpgm")
    g(f"""    ; K read addresses v20..23 : L_K + w*4096 + i*256 + ((4t ^ g ^ i))*16
    v_xor_b32 v9, v3, v2                  ; g ^ i
    v_lshlrev_b32 v10, 8, v2              ; i*256
    s_lshl_b32 s72, s{S_WAVE}, 12
    s_add_u32 s72, s72, {L_K}
    v_add_u32 v10, s72, v10""")
    for t in range(4):
        g(f"""    v_xor_b32 v4, {4*t}, v9
    v_lshl_add_u32 v{20+t}, v4, 4, v10""")
    g(f"""    ; Q frag address v8: head*256 + (4t+g)*16 ; v4 = head*16 (MX/LW), v5 = v4 + 4w
    v_and_b32 v8, 3, v0
    v_lshlrev_b32 v4, 4, v8
    v_lshlrev_b32 v8, 8, v8
    v_lshl_add_u32 v8, v3, 4, v8
    s_lshl_b32 s72, s{S_WAVE}, 2
    v_add_u32 v5, s72, v4
    v_mov_b32 v9, 0""")
    for r in range(48, 64): g(f"    v_mov_b32 v{r}, 0")
    for T in range(3):
        g(f"    s_add_u32 s72, s{S_WAVE}, {4*T+1}")
        g.wait_prog("s72", 10)
        for t in range(4):
            r = 64 + T*16 + 4*t
            g(f"    ds_read_b128 v[{r}:{r+3}], v{20+t} offset:{T*16384}")
    g.wait_flag(L_S2, 2, 10, 9)
    g.stamp(3)
    for t in range(4):
        g(f"    ds_read_b128 v[{32+4*t}:{35+4*t}], v8 offset:{L_Q + t*64}")
    g(f"    s_add_u32 s72, s{S_WAVE}, 13")
    g.wait_prog("s72", 10)
    for t in range(4):
        r = 64 + 3*16 + 4*t
        g(f"    ds_read_b128 v[{r}:{r+3}], v{20+t} offset:{3*16384}")
    g("    s_waitcnt lgkmcnt(4)")
    for t in range(4):
        for T in range(3):
            r = 64 + T*16 + 4*t
            g(f"    v_mfma_f32_16x16x32_bf16 v[{48+4*T}:{51+4*T}], v[{r}:{r+3}], v[{32+4*t}:{35+4*t}], v[{48+4*T}:{51+4*T}]")
    g("    s_waitcnt lgkmcnt(0)")
    for t in range(4):
        r = 64 + 3*16 + 4*t
        g(f"    v_mfma_f32_16x16x32_bf16 v[60:63], v[{r}:{r+3}], v[{32+4*t}:{35+4*t}], v[60:63]")
    c = (128 ** -0.5) * math.log2(math.e)
    g(f"""    s_mov_b32 s61, {hex(f32bits(c))}
    v_max3_f32 v24, v48, v49, v50
    v_max3_f32 v25, v51, v52, v53
    v_max3_f32 v26, v54, v55, v56
    v_max3_f32 v27, v57, v58, v59
    v_max3_f32 v24, v24, v25, v26
    v_max3_f32 v28, v60, v61, v62
    v_max3_f32 v24, v24, v27, v63
    v_max_f32 v24, v24, v28
    v_mov_b32 v25, v24
    v_permlane16_swap_b32 v24, v25
    v_max_f32 v24, v24, v25
    v_mov_b32 v25, v24
    v_permlane32_swap_b32 v24, v25
    v_max_f32 v24, v24, v25
    v_or_b32 v24, 1, v24
    ds_write_b32 v5, v24 offset:{L_MX}""")
    g.wait_nonzero4(24, 4, L_MX, 28)
    g(f"""    v_max3_f32 v24, v24, v25, v26
    v_max_f32 v24, v24, v27
    v_mul_f32 v24, s61, v24""")
    for r in range(48, 64):
        g(f"    v_fma_f32 v{r}, v{r}, s61, -v24")
    for r in range(48, 64):
        g(f"    v_exp_f32 v{r}, v{r}")
    for T in range(4):
        g(f"    v_cvt_pk_bf16_f32 v{64+2*T}, v{48+4*T}, v{49+4*T}")
        g(f"    v_cvt_pk_bf16_f32 v{65+2*T}, v{50+4*T}, v{51+4*T}")
    g(f"""    v_and_b32 v6, 3, v0
    v_lshlrev_b32 v6, 6, v6
    v_lshl_add_u32 v6, v3, 4, v6
    s_lshr_b32 s72, s{S_WAVE}, 1
    s_lshl_b32 s72, s72, 8
    s_and_b32 s73, s{S_WAVE}, 1
    s_lshl_b32 s73, s73, 3
    s_add_u32 s72, s72, s73
    v_add_u32 v7, s72, v6""")
    for T in range(4):
        g(f"    ds_write_b64 v7, v[{64+2*T}:{65+2*T}] offset:{L_P + T*512}")
    g("""    v_add_f32 v25, v48, v49
    v_add_f32 v26, v50, v51
    v_add_f32 v27, v52, v53
    v_add_f32 v28, v54, v55
    v_add_f32 v29, v56, v57
    v_add_f32 v30, v58, v59
    v_add_f32 v31, v60, v61
    v_add_f32 v72, v62, v63
    v_add_f32 v25, v25, v26
    v_add_f32 v27, v27, v28
    v_add_f32 v29, v29, v30
    v_add_f32 v31, v31, v72
    v_add_f32 v25, v25, v27
    v_add_f32 v29, v29, v31
    v_add_f32 v25, v25, v29
    v_mov_b32 v26, v25
    v_permlane16_swap_b32 v25, v26
    v_add_f32 v25, v25, v26
    v_mov_b32 v26, v25
    v_permlane32_swap_b32 v25, v26
    v_add_f32 v25, v25, v26               ; l_w
    v_or_b32 v25, 1, v25""")
    g(f"    ds_write_b32 v5, v25 offset:{L_LW}")
    g(f"""    v_bfe_u32 v8, v0, 2, 2                ; r
    v_and_b32 v9, 3, v0                   ; c
    v_lshl_add_u32 v10, v3, 2, v8         ; 4g + r
    v_and_b32 v11, 7, v10                 ; k7
    v_lshlrev_b32 v10, 8, v10
    v_lshl_add_u32 v10, v9, 3, v10
    v_add_u32 v10, {L_V}, v10
    s_lshl_b32 s72, s{S_WAVE}, 1          ; dt0 = 2w
    v_xor_b32 v8, s72, v11
    v_lshl_add_u32 v20, v8, 5, v10
    s_add_u32 s72, s72, 1
    v_xor_b32 v8, s72, v11
    v_lshl_add_u32 v21, v8, 5, v10
    s_lshl_b32 s58, s{S_HKV}, 5
    s_add_u32 s58, s58, s{S_J}             ; producer
    s_lshl_b32 s58, s58, 11
    s_lshl_b32 s59, s{S_WAVE}, 7          ; 8w*16
    s_add_u32 s58, s58, s59
    s_add_u32 s58, s58, {WS_AP}
    s_add_u32 s59, s58, {D_AP}
    v_and_b32 v22, 3, v0
    v_lshlrev_b32 v22, 9, v22             ; head*512
    v_lshl_add_u32 v22, v3, 4, v22        ; + g'*16
    v_bfe_u32 v9, v0, 2, 1                ; dsel
    v_lshl_add_u32 v22, v9, 6, v22
    s_mov_b32 s54, 0x00f000f0
    s_mov_b32 s55, 0x00f000f0
    s_mov_b32 s56, 0x00ff00ff
    s_mov_b32 s57, 0x00ff00ff""")
    g.wait_nonzero4(28, 4, L_LW, 27)
    for u in range(8):
        g(f"    ds_read_b128 v[{32+4*u}:{35+4*u}], v6 offset:{L_P + u*256}")
    g(f"""    v_add_f32 v28, v28, v29
    v_add_f32 v30, v30, v31
    v_add_f32 v25, v28, v30               ; L
    v_rcp_f32 v26, v25                    ; v26 = 1/L
    v_log_f32 v27, v25
    v_add_f32 v27, v27, v24               ; v27 = lw
    v_xor_b32 v28, s{S_TAG}, v27""")
    for r in range(64, 72): g(f"    v_mov_b32 v{r}, 0")
    if cfg.pretouch:
        g(f"""    v_mov_b32 v72, 0
    v_mov_b32 v73, 0
    v_mov_b32 v74, 0
    v_xor_b32 v75, 1, v72
    v_xor_b32 v75, s{S_TAG}, v75
    s_mov_b64 exec, s[56:57]
    buffer_store_dwordx4 v[72:75], v22, {srd(S_WS)}, s58 offen {cfg.aflag}
    s_mov_b64 exec, -1""")
    g.stamp(4)
    def pv_mfma(u):
        rb_ = 72 + (u & 1)*8
        for d in range(2):
            r = rb_ + d*4
            g(f"    v_mfma_f32_16x16x32_bf16 v[{64+4*d}:{67+4*d}], v[{r}:{r+3}], v[{32+4*u}:{35+4*u}], v[{64+4*d}:{67+4*d}]")
    for u in range(8):
        g.wait_prog(16 + 2*u + 2, 10)
        rb_ = 72 + (u & 1)*8
        for d in range(2):
            for h in range(2):
                r = rb_ + d*4 + 2*h
                g(f"    ds_read_b64_tr_b16 v[{r}:{r+1}], v{20+d} offset:{(2*u+h)*4096}")
        if u > 0:
            g("    s_waitcnt lgkmcnt(4)")
            pv_mfma(u - 1)
    g("    s_waitcnt lgkmcnt(0)")
    pv_mfma(7)
    g.stamp(5)
    g(f"""    v_cndmask_b32 v64, v64, v68, s[54:55]
    v_cndmask_b32 v65, v65, v69, s[54:55]
    v_cndmask_b32 v66, v66, v70, s[54:55]
    v_cndmask_b32 v67, v67, v71, s[54:55]
    v_mul_f32 v64, v64, v26
    v_mul_f32 v65, v65, v26
    v_mul_f32 v66, v66, v26
    v_mul_f32 v67, v67, v26
    v_cvt_pk_bf16_f32 v64, v64, v65
    v_cvt_pk_bf16_f32 v65, v66, v67
    v_mov_b32 v66, v27
    v_bitop3_b32 v67, v64, v65, v28 bitop3:0x96
    s_mov_b64 exec, s[56:57]
    buffer_store_dwordx4 v[64:67], v22, {srd(S_WS)}, s58 offen {cfg.aflag}
    buffer_store_dwordx4 v[64:67], v22, {srd(S_WS)}, s59 offen sc1
    s_mov_b64 exec, -1""")
    if cfg.wgate >= 0:
        g(f"""    v_mov_b32 v9, 1
    s_lshl_b32 s72, s{S_WAVE}, 2
    v_mov_b32 v8, s72
    ds_write_b32 v8, v9 offset:{L_PUB}""")
    g(f"""    ; lane (g, b'=(l>>3)&1, s8=l&7): granule index = 16*((j>>2)&1) + 4w + g  within head
    s_lshr_b32 s52, s{S_J}, 3              ; head4
    s_bfe_u32 s53, s{S_J}, 0x10002         ; (j>>2)&1
    v_and_b32 v8, 7, v0
    v_bfe_u32 v9, v0, 3, 1
    v_lshl_add_u32 v8, v9, 4, v8          ; b'*16 + s8
    v_lshlrev_b32 v8, 11, v8              ; *2048
    v_lshl_add_u32 v8, v3, 4, v8          ; + g*16
    s_lshl_b32 s72, s{S_HKV}, 16          ; hkv*32*2048
    s_lshl_b32 s73, s52, 9                ; head4*512
    s_add_u32 s72, s72, s73
    s_lshl_b32 s73, s53, 8
    s_add_u32 s72, s72, s73
    s_lshl_b32 s73, s{S_WAVE}, 6
    s_add_u32 s72, s72, s73
    s_add_u32 s72, s72, {WS_AP}
    s_add_u32 s73, s72, {8*2048}
    v_add_u32 v20, {(L_WO - L_V) & 0xffffffff:#x}, v20
    v_add_u32 v21, {(L_WO - L_V) & 0xffffffff:#x}, v21
    v_lshlrev_b32 v10, 5, v3
    v_lshl_add_u32 v10, v9, 4, v10
    s_lshr_b32 s74, s{S_WAVE}, 1
    s_lshl_b32 s74, s74, 7
    s_and_b32 s75, s{S_WAVE}, 1
    s_lshl_b32 s75, s75, 3
    s_add_u32 s74, s74, s75
    v_add_u32 v10, s74, v10
    v_and_b32 v11, 1, v0
    v_lshlrev_b32 v12, 2, v11
    v_lshlrev_b32 v11, 4, v11
    v_lshl_add_u32 v11, v3, 5, v11        ; v11
""")
    if cfg.oplay == 2:
        g(f"""    ; OP address: (cbk*64+rb)*1024 + (b*32 + 8w + 4ct + g')*16 ; lanes j<4: b=j&1, ct=(j>>1)&1
    v_and_b32 v13, 1, v0
    v_lshlrev_b32 v13, 9, v13             ; b*512
    v_bfe_u32 v14, v0, 1, 1               ; ct
    v_lshl_add_u32 v13, v14, 6, v13
    v_lshl_add_u32 v13, v3, 4, v13        ; + g'*16
    s_lshl_b32 s76, s{S_CBK}, 6
    s_add_u32 s76, s76, s{S_RB}
    s_lshl_b32 s76, s76, 10
    s_lshl_b32 s77, s{S_WAVE}, 7
    s_add_u32 s76, s76, s77
    s_add_u32 s76, s76, {WS_OP}""")
    else:
        g(f"""    ; OP address: Q*1024 + rb*16, Q = b*128 + cbk*32 + 8w + 4ct + g'
    v_and_b32 v13, 1, v0
    v_lshlrev_b32 v13, 17, v13            ; b*128*1024
    v_bfe_u32 v14, v0, 1, 1               ; ct
    v_lshl_add_u32 v13, v14, 12, v13      ; 4ct*1024
    v_lshl_add_u32 v13, v3, 10, v13       ; g'*1024
    s_lshl_b32 s76, s{S_CBK}, 15          ; cbk*32*1024
    s_lshl_b32 s77, s{S_WAVE}, 13         ; 8w*1024
    s_add_u32 s76, s76, s77
    s_lshl_b32 s77, s{S_RB}, 4
    s_add_u32 s76, s76, s77
    s_add_u32 s76, s76, {WS_OP}""")
    g(f"""    s_mov_b32 s54, 0xcccccccc
    s_mov_b32 s55, 0xcccccccc
    s_mov_b32 s56, 0x000f000f             ; lanes j<4
    s_mov_b32 s57, 0x000f000f
    s_mov_b32 s78, 0x01010101             ; lanes s8==0
    s_mov_b32 s79, 0x01010101""")
    for r in range(96, 112): g(f"    v_mov_b32 v{r}, 0")
    g.poll([f"buffer_load_dwordx4 v[32:35], v8, {srd(S_WS)}, s60 offen sc1",
            f"buffer_load_dwordx4 v[36:39], v8, {srd(S_WS)}, s61 offen sc1"], [32, 36], 48, mode="sum", tmp=49, sleep=cfg.sleep2,
           dual=([72, 73], [60, 61], D_AP, cfg.na2), nk=12)
    g.stamp(6)
    g("    v_max_f32 v48, v34, v38")
    g("""    v_lshlrev_b32 v50, 16, v32
    v_and_b32 v51, 0xffff0000, v32""")
    g(f"    v_max_f32_dpp v48, v48, v48 {DPP8[0]} row_mask:0xf bank_mask:0xf")
    g("""    v_lshlrev_b32 v52, 16, v33
    v_and_b32 v53, 0xffff0000, v33""")
    g(f"    v_max_f32_dpp v48, v48, v48 {DPP8[1]} row_mask:0xf bank_mask:0xf")
    g("""    v_lshlrev_b32 v54, 16, v36
    v_and_b32 v55, 0xffff0000, v36""")
    g(f"    v_max_f32_dpp v48, v48, v48 {DPP8[2]} row_mask:0xf bank_mask:0xf")
    g("""    v_lshlrev_b32 v56, 16, v37
    v_and_b32 v57, 0xffff0000, v37
    v_sub_f32 v40, v34, v48
    v_sub_f32 v44, v38, v48
    v_exp_f32 v40, v40
    v_exp_f32 v44, v44
    v_mul_f32 v32, v40, v50
    v_mul_f32 v33, v40, v51
    v_mul_f32 v34, v40, v52
    v_mul_f32 v35, v40, v53
    v_add_f32 v49, v40, v44
    v_fmac_f32 v32, v44, v54
    v_fmac_f32 v33, v44, v55
    v_fmac_f32 v34, v44, v56
    v_fmac_f32 v35, v44, v57""")
    for dp in DPP8:
        for r in (49, 32, 33, 34, 35):
            g(f"    v_add_f32_dpp v{r}, v{r}, v{r} {dp} row_mask:0xf bank_mask:0xf")
    g(f"""    v_rcp_f32 v49, v49
    v_mul_f32 v32, v32, v49
    v_mul_f32 v33, v33, v49
    v_mul_f32 v34, v34, v49
    v_mul_f32 v35, v35, v49
    v_cvt_pk_bf16_f32 v32, v32, v33
    v_cvt_pk_bf16_f32 v33, v34, v35
    s_mov_b64 exec, s[78:79]
    ds_write_b64 v10, v[32:33] offset:{L_O}
    s_mov_b64 exec, -1
    s_waitcnt lgkmcnt(0)
    s_barrier
    ds_read_b128 v[32:35], v11 offset:{L_O}
    ds_read_b128 v[36:39], v11 offset:{L_O + 128}""")
    for ks in range(2):
        for d in range(2):
            for h in range(2):
                r = 64 + (ks*2 + d)*4 + 2*h
                g(f"    ds_read_b64_tr_b16 v[{r}:{r+1}], v{20+d} offset:{(32*ks + 16*h)*256}")
    g(f"    ds_read_b128 v[40:43], v11 offset:{L_H}")
    for d in range(2):
        for h in range(2):
            r = 80 + d*4 + 2*h
            g(f"    ds_read_b64_tr_b16 v[{r}:{r+1}], v{20+d} offset:{L_W2 - L_WO + 16*h*256}")
    g(f"""    s_waitcnt lgkmcnt(11)
    v_mfma_f32_16x16x32_bf16 v[96:99], v[64:67], v[32:35], v[96:99]
    ds_read_b32 v30, v12 offset:{L_GATE}
    s_waitcnt lgkmcnt(10)
    v_mfma_f32_16x16x32_bf16 v[100:103], v[68:71], v[32:35], v[100:103]
    s_waitcnt lgkmcnt(8)
    v_mfma_f32_16x16x32_bf16 v[96:99], v[72:75], v[36:39], v[96:99]
    s_waitcnt lgkmcnt(6)
    v_mfma_f32_16x16x32_bf16 v[100:103], v[76:79], v[36:39], v[100:103]
    s_waitcnt lgkmcnt(3)
    v_mfma_f32_16x16x32_bf16 v[104:107], v[80:83], v[40:43], v[104:107]
    s_waitcnt lgkmcnt(1)
    v_mfma_f32_16x16x32_bf16 v[108:111], v[84:87], v[40:43], v[108:111]
    s_waitcnt lgkmcnt(0)
    v_sub_f32 v31, 1.0, v30
    v_cndmask_b32 v96, v96, v100, s[54:55]
    v_cndmask_b32 v97, v97, v101, s[54:55]
    v_cndmask_b32 v98, v98, v102, s[54:55]
    v_cndmask_b32 v99, v99, v103, s[54:55]
    v_mul_f32 v96, v96, v30
    v_mul_f32 v97, v97, v30
    v_mul_f32 v98, v98, v30
    v_mul_f32 v99, v99, v30
    v_cndmask_b32 v104, v104, v108, s[54:55]
    v_cndmask_b32 v105, v105, v109, s[54:55]
    v_cndmask_b32 v106, v106, v110, s[54:55]
    v_cndmask_b32 v107, v107, v111, s[54:55]
    v_fmac_f32 v96, v104, v31
    v_fmac_f32 v97, v105, v31
    v_fmac_f32 v98, v106, v31
    v_fmac_f32 v99, v107, v31""")
    for k in range(4):
        g(f"    v_bfi_b32 v{96+k}, s{S_FF}, v{16+k}, v{96+k}")
    g(f"""    s_mov_b64 exec, s[56:57]
    buffer_store_dwordx4 v[96:99], v13, {srd(S_WS)}, s76 offen sc1
    s_mov_b64 exec, -1""")
    g.stamp(7)
    g(f"""    s_cmp_ge_u32 s{S_WAVE}, {cfg.npoll3}
    s_cbranch_scc1 L_stampout""")
    if cfg.npoll3 > 1:
        for w in range(1, cfg.npoll3):
            lab = g.label("Lstg")
            g(f"""    s_cmp_lt_u32 s{S_WAVE}, {w}
    s_cbranch_scc1 {lab}
    s_sleep {cfg.stag3}
{lab}:""")
    g(f"""    ; Q = G*8 + (j&7), G = (j>>3)*8 + hkv   (G = b*16 + cbk*4 + qh)
    s_lshr_b32 s66, s{S_J}, 3
    s_lshl_b32 s66, s66, 3
    s_add_u32 s66, s66, s{S_HKV}
    s_lshl_b32 s66, s66, 3
    s_and_b32 s67, s{S_J}, 7
    s_add_u32 s66, s66, s67
""")
    if cfg.oplay == 2:
        g(f"""    s_bfe_u32 s72, s66, 0x20005           ; cbk
    s_lshl_b32 s72, s72, 16
    s_lshr_b32 s73, s66, 7
    s_lshl_b32 s73, s73, 9
    s_add_u32 s72, s72, s73
    s_and_b32 s73, s66, 31
    s_lshl_b32 s73, s73, 4
    s_add_u32 s72, s72, s73
    s_add_u32 s72, s72, {WS_OP}
    v_lshlrev_b32 v6, 10, v0""")
    else:
        g(f"""    s_lshl_b32 s72, s66, 10
    s_add_u32 s72, s72, {WS_OP}
    v_lshlrev_b32 v6, 4, v0""")
    if cfg.outtouch == 2:
        g(f"""    v_mov_b32 v7, 0
    s_mov_b64 exec, 1
    buffer_load_dword v8, v7, {srd(S_OUT)}, 0 offen
    s_mov_b64 exec, -1""")
    if cfg.pre3: g(f"    s_sleep {cfg.pre3}")
    g.poll([f"buffer_load_dwordx4 v[32:35], v6, {srd(S_WS)}, s72 offen sc1"], [32], 48, sleep=cfg.sleep3, nk=13)
    g.stamp(8)
    g(f"""    v_permlane32_swap_b32 v32, v34
    v_permlane32_swap_b32 v33, v35
    v_add_f32 v32, v32, v34
    v_add_f32 v33, v33, v35
    v_permlane16_swap_b32 v32, v33
    v_add_f32 v32, v32, v33""")
    for k in (8, 4, 2, 1):
        g(f"    v_add_f32_dpp v32, v32, v32 row_ror:{k} row_mask:0xf bank_mask:0xf")
    g(f"""    v_cvt_pk_bf16_f32 v32, v32, v32
    v_lshlrev_b32 v6, 1, v3               ; row*2
    s_lshl_b32 s72, s66, 3
    v_cmp_eq_u32 vcc, 0, v2
    s_and_saveexec_b64 s[70:71], vcc
    buffer_store_short v32, v6, {srd(S_OUT)}, s72 offen {cfg.outflag}
    s_cmp_eq_u32 s2, 0
    s_cbranch_scc0 L_noep
    s_mov_b64 exec, 1
    v_mov_b32 v7, s{S_TAG}
    v_mov_b32 v8, 0
    buffer_store_dword v7, v8, {srd(S_WS)}, 0 offen
L_noep:
    s_mov_b64 exec, s[70:71]""")
    if cfg.dbgst:
        g(f"""    s_cmp_lt_u32 s2, 8
    s_cbranch_scc0 L_nodbg
    s_memrealtime s[92:93]
    s_waitcnt lgkmcnt(0)
    v_mov_b32 v7, s94
    v_mov_b32 v8, s92
    s_lshl_b32 s72, s2, 2
    v_mov_b32 v9, 0
    s_mov_b64 exec, 1
    buffer_store_dword v7, v9, s[88:91], s72 offen
    buffer_store_dword v8, v9, s[88:91], s72 offen offset:32
    s_mov_b64 exec, -1
L_nodbg:""")
    g.stamp(9)
    g("L_stampout:")
    if cfg.stamps: stamp_out(g)
    g("    s_endpgm")
    g("L_helper:")
    srd_load(g, ["x", "gw", "w1", "ws"]); srd_const(g, ["x", "gw", "w1", "ws"])
    lane_regs(g); common_rest(g, cfg)
    g(f"""    s_mul_i32 s59, s2, 2341
    s_lshr_b32 s59, s59, 16               ; ks8 = c/28
    s_mul_i32 s60, s59, 28
    s_sub_u32 s60, s2, s60                ; fb
    s_lshl_b32 s61, s59, 6
    s_mul_i32 s62, s61, 3584
    s_lshl_b32 s63, s60, 7
    s_add_u32 s62, s62, s63               ; w1 soffset
    v_lshrrev_b32 v5, 3, v0               ; r8
    v_and_b32 v6, 7, v0
    v_lshlrev_b32 v6, 4, v6
    v_mul_u32_u24 v7, {8*3584}, v5
    v_add_u32 v7, v7, v6
    v_lshlrev_b32 v9, 4, v5               ; x voffset = 8*r8*2
    s_lshl_b32 s64, s61, 1
    v_lshlrev_b32 v11, 4, v0
    s_waitcnt lgkmcnt(0)
    s_load_dword s{S_TAG}, s[{S_WS}:{S_WS+1}], 0x0
    s_barrier
    buffer_load_dwordx4 v[112:115], v11, {srd(S_X)}, 0 offen
    buffer_load_dwordx4 v[116:119], v11, {srd(S_X)}, 0 offen offset:1024
    buffer_load_dwordx4 v[120:123], v11, {srd(S_GW)}, 0 offen
    buffer_load_dwordx4 v[20:23], v9, {srd(S_X)}, s64 offen
    buffer_load_dwordx4 v[28:31], v9, {srd(S_X)}, s64 offen offset:1024""")
    for t in range(8):
        g(f"    buffer_load_dwordx4 v[{64+4*t}:{67+4*t}], v7, {srd(S_W1)}, s62 offen{NT}")
        if t < 7: g("    s_add_u32 s62, s62, 3584")
    selectors(g); tags(g)
    g(f"""    s_mul_i32 s72, s59, {2*1792*4}
    s_lshl_b32 s73, s60, 8
    s_add_u32 s72, s72, s73
    s_add_u32 s72, s72, {WS_HP}
    v_lshrrev_b32 v4, 5, v0
    v_mul_u32_u24 v4, {1792*4}, v4        ; b*1792*4""")
    pub_addr(g)
    proj(g, 8, 20, 28, 2)
    g(f"""    s_cmp_ge_u32 s2, 224
    s_cbranch_scc1 L_nohpub
    s_mov_b64 exec, s[70:71]
    buffer_store_dwordx4 v[36:39], v4, {srd(S_WS)}, s72 offen sc1
    s_mov_b64 exec, -1
L_nohpub:""")
    g.stamp(2)
    for b in range(2):
        acc = 44 + b
        g(f"    v_mov_b32 v{acc}, 0")
        for r in range(4):
            xs = 112 + 4*b + r; gs = 120 + r
            g(f"""    v_lshlrev_b32 v46, 16, v{xs}
    v_lshlrev_b32 v47, 16, v{gs}
    v_and_b32 v48, 0xffff0000, v{xs}
    v_and_b32 v49, 0xffff0000, v{gs}
    v_mul_f32 v46, v46, v47
    v_mul_f32 v48, v48, v49
    v_cvt_pk_bf16_f32 v46, v46, v48
    v_lshlrev_b32 v47, 16, v46
    v_and_b32 v48, 0xffff0000, v46
    v_add_f32 v{acc}, v{acc}, v47
    v_add_f32 v{acc}, v{acc}, v48""")
    for k in (8, 4, 2, 1):
        g(f"""    v_add_f32_dpp v44, v44, v44 row_ror:{k} row_mask:0xf bank_mask:0xf
    v_add_f32_dpp v45, v45, v45 row_ror:{k} row_mask:0xf bank_mask:0xf""")
    for sw in ("v_permlane16_swap_b32", "v_permlane32_swap_b32"):
        g(f"""    v_mov_b32 v46, v44
    v_mov_b32 v47, v45
    {sw} v44, v46
    {sw} v45, v47
    v_add_f32 v44, v44, v46
    v_add_f32 v45, v45, v47""")
    g(f"""    v_cmp_gt_u32 vcc, 32, v0
    v_cndmask_b32 v44, v45, v44, vcc
    v_cvt_pk_bf16_f32 v44, v44, v44
    v_lshlrev_b32 v44, 16, v44
    v_mul_f32 v44, 0xbfb8aa3b, v44
    v_exp_f32 v44, v44
    v_add_f32 v44, 1.0, v44
    v_rcp_f32 v44, v44                    ; g
    v_lshrrev_b32 v4, 5, v0
    v_lshlrev_b32 v4, 2, v4
    ds_write_b32 v4, v44 offset:{L_GATE}
    v_and_b32 v8, 7, v0
    v_mul_u32_u24 v8, {2*1792*4}, v8
    v_bfe_u32 v9, v0, 3, 1
    v_mul_u32_u24 v10, {1792*4}, v9
    v_add_u32 v8, v8, v10
    v_lshl_add_u32 v8, v3, 4, v8          ; + qq*16
    v_add_u32 v11, 64, v8
    v_cmp_eq_u32 vcc, 3, v3
    v_cndmask_b32 v11, v11, v8, vcc
    s_mul_i32 s72, s{S_RB}, {28*4}
    s_add_u32 s72, s72, {WS_HP}""")
    if cfg.streamonly:
        g("    s_waitcnt vmcnt(0)\n    s_endpgm")
    g.wait_prog(cfg.hstart)
    g.poll([f"buffer_load_dwordx4 v[64:67], v8, {srd(S_WS)}, s72 offen sc1",
            f"buffer_load_dwordx4 v[68:71], v11, {srd(S_WS)}, s72 offen sc1"], [64, 68], 72, sleep=cfg.sleeph, nk=11)
    for dp in DPP8:
        for r in range(64, 72):
            g(f"    v_add_f32_dpp v{r}, v{r}, v{r} {dp} row_mask:0xf bank_mask:0xf")
    for q in range(2):
        r = 64 + 4*q
        g(f"""    v_cvt_pk_bf16_f32 v{r}, v{r}, v{r+1}
    v_cvt_pk_bf16_f32 v{r+2}, v{r+2}, v{r+3}
    v_and_b32 v{r+1}, 0xffff0000, v{r}
    v_lshlrev_b32 v{r}, 16, v{r}
    v_and_b32 v{r+3}, 0xffff0000, v{r+2}
    v_lshlrev_b32 v{r+2}, 16, v{r+2}""")
        for k in range(4):
            g(f"""    v_mul_f32 v{80+k}, 0xbfb8aa3b, v{r+k}
    v_exp_f32 v{80+k}, v{80+k}
    v_add_f32 v{80+k}, 1.0, v{80+k}
    v_rcp_f32 v{80+k}, v{80+k}
    v_mul_f32 v{r+k}, v{r+k}, v{80+k}""")
        g(f"""    v_cvt_pk_bf16_f32 v{r}, v{r}, v{r+1}
    v_cvt_pk_bf16_f32 v{r+1}, v{r+2}, v{r+3}""")
    g(f"""    v_lshlrev_b32 v4, 4, v9
    v_lshl_add_u32 v4, v3, 5, v4          ; qq*32 + b*16
    s_mov_b32 s70, 0x01010101
    s_mov_b32 s71, 0x01010101
    s_mov_b64 exec, s[70:71]
    ds_write_b64 v4, v[64:65] offset:{L_H}
    s_mov_b32 s71, 0x00000101
    s_mov_b64 exec, s[70:71]
    ds_write_b64 v4, v[68:69] offset:{L_H + 8}
    s_mov_b64 exec, -1
    v_mov_b32 v5, 1
    v_mov_b32 v4, 0
    ds_write_b32 v4, v5 offset:{L_HF}""")
    if cfg.outtouch == 1:
        g(f"""    s_mov_b64 exec, 1
    buffer_load_dword v6, v4, {srd(S_OUT)}, 0 offen
    s_mov_b64 exec, -1
    s_waitcnt vmcnt(0)""")
    g.stamp(14)
    if cfg.stamps: stamp_out(g)
    g("    s_endpgm")
    g("L_loader:")
    srd_load(g, ["k"]); srd_const(g, ["k"])
    lane_regs(g)
    g(f"""    s_lshr_b32 s52, s{S_J}, 4
    s_lshl_b32 s54, s52, 3
    s_add_u32 s54, s54, s{S_HKV}
    s_lshl_b32 s54, s54, 23
    s_and_b32 s53, s{S_J}, 15
    s_lshl_b32 s55, s53, {12 if cfg.strided else 16}
    s_add_u32 s54, s54, s55
    s_add_u32 s54, s54, {(32768-4096)*256}
    v_lshlrev_b32 v4, 8, v3
    v_xor_b32 v5, v3, v2
    v_lshl_add_u32 v20, v5, 4, v4""")
    for n in range(1, 4):
        g(f"""    v_xor_b32 v6, {4*n}, v5
    v_lshl_add_u32 v{20+n}, v6, 4, v4""")
    g(f"""    s_mul_i32 s56, s{S_J}, {cfg.rotmul}""")
    if cfg.rothkv:
        g(f"""    s_mul_i32 s57, s{S_HKV}, {cfg.rothkv}
    s_add_u32 s56, s56, s57""")
    g("    s_waitcnt lgkmcnt(0)")
    def loader_rest():
        g("    s_setprio 3")
        srd_load(g, ["v", "wo", "w2"] + (["ws"] if cfg.stamps else [])); srd_const(g, ["v", "wo", "w2"] + (["ws"] if cfg.stamps else []))
        common_rest(g, cfg)
        g(f"""    v_mov_b32 v10, 0
    ds_write_b32 v1, v10 offset:{L_PROG}
    ds_write_b32 v1, v10 offset:256
    ds_write_b32 v1, v10 offset:512
    v_lshlrev_b32 v5, 1, v3
    v_xor_b32 v5, v5, v2
    v_lshl_add_u32 v24, v5, 4, v4
    v_xor_b32 v25, 128, v24
    v_lshlrev_b32 v5, 4, v5
    v_lshl_add_u32 v26, v3, 10, v5
    v_xor_b32 v27, 128, v26               ; odd
    v_mov_b32 v12, 0
    v_mov_b32 v13, 0
    v_mov_b32 v14, 0
    v_mov_b32 v15, 0
    v_lshlrev_b32 v5, 4, v0
    ds_write_b128 v5, v[12:15] offset:{L_W2 + 7168}
    s_lshl_b32 s60, s{S_RB}, 16            ; 64*rb*1024
    s_lshl_b32 s61, s{S_CBK}, 8
    s_add_u32 s60, s60, s61               ; wo soffset
    s_mul_i32 s62, s{S_RB}, {28*1024}
    s_add_u32 s62, s62, s61               ; w2 soffset
    s_mul_i32 s65, s{S_RB}, {2*cfg.wrot}
    s_waitcnt lgkmcnt(0)
    s_barrier""")
        g.stamp(11)
    if cfg.earlyn == 0: loader_rest()
    kseq = [("k", t, n) for t in range(16) for n in range(4)]
    vseq = [("v", t, n) for t in range(16) for n in range(4)]
    wl = [("wo", n, 0) for n in range(16)]; w2l = [("w2", n, 0) for n in range(7)]
    wseq = (w2l + wl) if cfg.w2first else (wl + w2l)
    if cfg.order == "kvw": seq = kseq + vseq + wseq
    elif cfg.order == "mix": seq = kseq + vseq[:4*cfg.vk] + wseq[:cfg.wm] + vseq[4*cfg.vk:] + wseq[cfg.wm:]
    elif cfg.order == "spread":
        seq = list(kseq); wi = 0
        for t in range(16):
            seq += vseq[4*t:4*t+4]
            if t >= cfg.vk and wi < cfg.wm:
                n = -(-(cfg.wm - wi) // (16 - t)) if t < 15 else 0
                seq += wseq[wi:wi+n]; wi += n
        seq += wseq[wi:]
    else: seq = kseq + wseq + vseq
    N = len(seq)
    mval = {}
    kv = 0; wdone = 0
    for i, (kind, t, n) in enumerate(seq):
        ch = False
        if kind in ("k", "v") and n == 3: kv += 1; ch = True
        if i + 1 == N: wdone = 1; ch = True
        if ch: mval[i + 1] = (kv, wdone)
    def post(done):
        kv_, wd_ = mval[done]
        g(f"""    v_mov_b32 v10, {kv_}
    ds_write_b32 v1, v10 offset:{L_PROG}""")
        if done == N: g.stamp(3)
        if seq[done-1][0] == "k" and kv_ == 16: g.stamp(1)
        if seq[done-1][0] == "k" and kv_ in (1, 2, 4, 8): g.stamp({1: 4, 2: 5, 4: 6, 8: 7}[kv_])
        if seq[done-1][0] == "v" and kv_ in (17, 18, 20): g.stamp({17: 8, 18: 9, 20: 10}[kv_])
        if seq[done-1][0] == "v" and kv_ == 32: g.stamp(2)
    def win(i):
        k = seq[i][0]
        return cfg.wk if k == "k" else (cfg.wv if k == "v" else cfg.ww)
    miles = sorted(mval.keys())
    st = {"issued": 0, "done": 0}
    def advance(need):
        while st["done"] < need:
            nxt = min([need] + [m for m in miles if m > st["done"]])
            g(f"    s_waitcnt vmcnt({st['issued'] - nxt})")
            st["done"] = nxt
            if nxt in miles: post(nxt)
    for i, (kind, t, n) in enumerate(seq):
        if kind in ("k", "v") and n == 0:
            g(f"""    s_add_u32 s63, s56, {t}
    s_and_b32 s63, s63, 15
    s_lshl_b32 s63, s63, {16 if cfg.strided else 12}
    s_add_u32 s63, s63, s54""")
        elif kind == "wo":
            g(f"""    s_add_u32 s63, s65, {t}
    s_and_b32 s63, s63, 15
    s_lshl_b32 s64, s63, 10
    s_lshl_b32 s63, s63, 12
    s_add_u32 s63, s63, s60""")
        elif kind == "w2":
            g(f"    s_add_u32 s63, s62, {t*4096}")
        if cfg.wgate >= 0 and i == 128 + cfg.wgate:
            advance(128)
            L = g.label("Lwd"); E = g.label("Lwde")
            g(f"""    v_mov_b32 v11, 0
{L}:
    ds_read_b128 v[12:15], v11 offset:{L_PUB}
    s_waitcnt lgkmcnt(0)
    v_min_u32 v12, v12, v13
    v_min3_u32 v12, v12, v14, v15
    v_cmp_eq_u32 vcc, 0, v12
    s_cbranch_vccz {E}""")
            g.spin_tail(L)
            g(f"{E}:")
        advance(i + 1 - win(i))
        if kind in ("k", "v") and n == 0:
            g(f"    s_mov_b32 m0, {(L_K if kind == 'k' else L_V) + t*4096}")
            g("    s_nop 0")
        if kind == "k":
            g(f"    buffer_load_dwordx4 v{20+n}, {srd(S_K)}, s63 offen offset:{n*1024}{NT} lds")
        elif kind == "v":
            g(f"    buffer_load_dwordx4 v{24+(n&1)}, {srd(S_V)}, s63 offen offset:{n*1024}{NT} lds")
        elif kind == "wo":
            g(f"""    s_add_u32 m0, s64, {L_WO}
    s_nop 0
    buffer_load_dwordx4 v{26+(t&1)}, {srd(S_WO)}, s63 offen{NT} lds""")
        else:
            g(f"""    s_mov_b32 m0, {L_W2 + t*1024}
    s_nop 0
    buffer_load_dwordx4 v{26+(t&1)}, {srd(S_W2)}, s63 offen{NT} lds""")
        st["issued"] += 1
        if cfg.earlyn > 0 and i == cfg.earlyn - 1: loader_rest()
    advance(N)
    if cfg.stamps: stamp_out(g)
    g("""    s_endpgm
L_end:
    s_endpgm""")
    g(f""".section .rodata,"a"
.p2align 6
.amdhsa_kernel {KNAME}
  .amdhsa_next_free_vgpr {152 if cfg.stamps else 144}
  .amdhsa_next_free_sgpr 102
  .amdhsa_accum_offset {152 if cfg.stamps else 144}
  .amdhsa_group_segment_fixed_size 0
  .amdhsa_kernarg_size 96
  .amdhsa_user_sgpr_count 2
  .amdhsa_user_sgpr_kernarg_segment_ptr 1
  .amdhsa_system_sgpr_workgroup_id_x 1
.end_amdhsa_kernel
""")
    open(path, "w").write(hazard.fix(g.a.text(), True))

def parse(cfg, args):
    for a in args:
        k, v = a.split("=")
        cur = getattr(cfg, k)
        if isinstance(cur, bool): v = v in ("1", "True", "true")
        elif isinstance(cur, int): v = int(v)
        elif k == "nt": v = " " + v if v else ""
        setattr(cfg, k, v)
    return cfg

if __name__ == "__main__":
    gen(parse(Cfg(), sys.argv[2:]), sys.argv[1])
```

```python
import sys, math, struct
from asmlib import A
import hazard

KNAME = "gated_mix__sliding_block_cached__dense_activation_silu__decode_kernel"

class Cfg:
    wk = 20
    wv = 20
    ww = 20
    qstart = 4
    hstart = 20
    stamps = False
    spin_lds = 1 << 20
    spin_glb = 1 << 14
    nt = " nt"
    rotmul = 1
    rothkv = 0
    wrot = 1
    sleep1 = 0
    sleeph = 4
    sleep2 = 1
    sleep3 = 1
    na1 = 4
    na2 = 8
    w2first = True
    dbgst = False
    pretouch = False
    wdelay = False
    order = 'kvw'
    earlyld = False
    earlyn = 8
    qk = 3
    npoll3 = 1
    pre3 = 0
    wgate = -1
    lflag = 0
    lfmax = 10
    wnt = ' nt'
    buddy = 0
    mask2 = False
    mask3 = False
    dirty = 0
    opre = False
    outtouch = 0
    aflag = ''
    outflag = ''
    strided = False
    oplay = 2
    vk = 12
    wm = 19
    streamonly = False
    stag3 = 2
    tlb = False
    pollfirst = True

WS_QP, WS_HP, WS_OP, WS_AP = 0x10000, 0x50000, 0x70000, 0x100000
WS_LF = 0xB0000
D_QP, D_AP = 0x20000, 0x80000
WS_STAMP = 0x4000000

L_PROG, L_S2, L_HF, L_GATE, L_PUB, L_MX, L_LW, L_H = 0x000, 0x100, 0x110, 0x120, 0x130, 0x140, 0x180, 0x1C0
L_WF = 0x118
L_O = 0xE80
L_QF = 0x11C
L_Q, L_P, L_WO, L_W2, L_K, L_V = 0x280, 0x680, 0x1000, 0x5000, 0x7000, 0x17000
LDS_TOTAL = 0x27000
L_P3P = L_K
NW = 6

S_X, S_K, S_V, S_WQ, S_WO, S_W1, S_W2, S_GW, S_OUT, S_WS = 8, 12, 16, 20, 24, 28, 32, 36, 40, 44
def srd(b): return f"s[{b}:{b+3}]"
S_WAVE = 3
S_HKV, S_J = 48, 49
S_RB, S_CBK = 50, 51
S_T0 = 80
S_TAG = 84
S_PROG = 85
S_LIM = 86
S_FF = 87
W_P1Q, W_HELP, W_LOAD = 2, 4, 5
TAB = {'x': (S_X, 0, 2048), 'k': (S_K, 8, 1 << 27), 'v': (S_V, 16, 1 << 27), 'wq': (S_WQ, 24, 1 << 22), 'wo': (S_WO, 32, 1 << 22),
       'w1': (S_W1, 48, 512*1792*2), 'w2': (S_W2, 56, 512*1792*2), 'gw': (S_GW, 64, 1024), 'out': (S_OUT, 72, 2048), 'ws': (S_WS, 88, 1 << 29)}
VSEL = 136
VST = 144

def f32bits(x): return struct.unpack("<I", struct.pack("<f", x))[0]
DPP8 = ("quad_perm:[1,0,3,2]", "quad_perm:[2,3,0,1]", "row_half_mirror")

class G:
    def __init__(self, cfg):
        self.c = cfg; self.a = A(); self.lab = 0
    def __call__(self, s): self.a(s)
    def label(self, p="L"):
        self.lab += 1; return f"{p}_{self.lab}"
    def stamp(self, k):
        if self.c.stamps:
            self(f"""    s_memrealtime s[98:99]
    s_waitcnt lgkmcnt(0)
    v_writelane_b32 v{VST}, s98, {k}""")
    def note(self, k, sreg):
        if self.c.stamps:
            self(f"    v_writelane_b32 v{VST}, s{sreg}, {k}")
    def spin_tail(self, L):
        self(f"""    s_sub_u32 s{S_LIM}, s{S_LIM}, 1
    s_cmp_gt_i32 s{S_LIM}, 0
    s_cbranch_scc1 {L}""")
    def wait_prog(self, need, vtmp=10):
        L = self.label("Lp"); E = self.label("Lpe")
        self(f"""    s_cmp_ge_u32 s{S_PROG}, {need}
    s_cbranch_scc1 {E}
{L}:
    ds_read_b32 v{vtmp}, v1 offset:{L_PROG}
    s_waitcnt lgkmcnt(0)
    v_readfirstlane_b32 s{S_PROG}, v{vtmp}
    s_cmp_ge_u32 s{S_PROG}, {need}
    s_cbranch_scc1 {E}""")
        self.spin_tail(L)
        self(f"{E}:")
    def wait_nonzero4(self, dst, vaddr, off, tmp):
        L = self.label("Ls"); E = self.label("Lse")
        self(f"""{L}:
    ds_read_b128 v[{dst}:{dst+3}], v{vaddr} offset:{off}
    s_waitcnt lgkmcnt(0)
    v_min_u32 v{tmp}, v{dst}, v{dst+1}
    v_min3_u32 v{tmp}, v{tmp}, v{dst+2}, v{dst+3}
    v_cmp_eq_u32 vcc, 0, v{tmp}
    s_cbranch_vccz {E}""")
        self.spin_tail(L)
        self(f"{E}:")
    def wait_flag(self, off, n, vtmp, vzero):
        L = self.label("Lf"); E = self.label("Lfe")
        if n == 1:
            rd = f"ds_read_b32 v{vtmp}, v{vzero} offset:{off}"; comb = ""
        else:
            rd = f"ds_read_b64 v[{vtmp}:{vtmp+1}], v{vzero} offset:{off}"; comb = f"    v_min_u32 v{vtmp}, v{vtmp}, v{vtmp+1}\n"
        self(f"""{L}:
    {rd}
    s_waitcnt lgkmcnt(0)
{comb}    v_cmp_eq_u32 vcc, 0, v{vtmp}
    s_cbranch_vccz {E}""")
        self.spin_tail(L)
        self(f"{E}:")
    def poll(self, loads, granules, bad, mode="low", sleep=0, tmp=None, dual=None, nk=None, masked=False):
        L = self.label("Lg"); E = self.label("Lge")
        self(f"    s_mov_b32 s101, {self.c.spin_glb}")
        self(f"{L}:")
        if dual:
            bases, tmps, delta, na = dual
            self(f"""    s_sub_u32 s100, {self.c.spin_glb - na}, s101
    s_cmp_ge_i32 s100, 0
    s_cselect_b32 s100, s101, 0
    s_and_b32 s100, s100, 1
    s_mul_i32 s100, s100, {delta}""")
            for bs, ts in zip(bases, tmps):
                self(f"    s_add_u32 s{ts}, s{bs}, s100")
        for ld in loads: self("    " + ld)
        self("    s_waitcnt vmcnt(0)")
        if mode == "low":
            for i, r in enumerate(granules):
                for k in range(4):
                    self(f"    v_xor_b32 v{r+k}, s{S_T0+k}, v{r+k}")
            for i, r in enumerate(granules):
                if i == 0:
                    self(f"    v_or3_b32 v{bad}, v{r}, v{r+1}, v{r+2}")
                    self(f"    v_or_b32 v{bad}, v{bad}, v{r+3}")
                else:
                    self(f"    v_or3_b32 v{bad}, v{bad}, v{r}, v{r+1}")
                    self(f"    v_or3_b32 v{bad}, v{bad}, v{r+2}, v{r+3}")
            self(f"    v_and_b32 v{bad}, 0xff, v{bad}")
        else:
            for i, r in enumerate(granules):
                t = bad if i == 0 else tmp
                self(f"    v_bitop3_b32 v{t}, v{r}, v{r+1}, v{r+2} bitop3:0x96")
                self(f"    v_bitop3_b32 v{t}, v{t}, v{r+3}, s{S_TAG} bitop3:0x96")
                if i: self(f"    v_or_b32 v{bad}, v{bad}, v{t}")
        if masked:
            self(f"""    v_cmp_ne_u32 vcc, 0, v{bad}
    s_and_b64 exec, exec, vcc
    s_cbranch_scc0 {E}""")
        else:
            self(f"""    v_cmp_ne_u32 vcc, 0, v{bad}
    s_cbranch_vccz {E}""")
        if sleep: self(f"    s_sleep {sleep}")
        self(f"""    s_sub_u32 s101, s101, 1
    s_cmp_gt_i32 s101, 0
    s_cbranch_scc1 {L}
{E}:""")
        if masked: self("    s_mov_b64 exec, -1")
        if nk is not None and self.c.stamps:
            self(f"    s_sub_u32 s100, {self.c.spin_glb}, s101")
            self.note(nk, 100)

def srd_load(g, names):
    for n in names:
        b, off, sz = TAB[n]
        g(f"    s_load_dwordx2 s[{b}:{b+1}], s[0:1], {off}")
def srd_const(g, names):
    for n in names:
        b, off, sz = TAB[n]
        g(f"    s_mov_b32 s{b+2}, {hex(sz)}")
        g(f"    s_mov_b32 s{b+3}, 0x20000")
def lane_regs(g):
    g("""    v_and_b32 v2, 15, v0                  ; v2 = l&15
    v_lshrrev_b32 v3, 4, v0               ; v3 = l>>4""")
def common_rest(g, cfg):
    g(f"""    v_lshlrev_b32 v1, 2, v0               ; v1 = lane*4
    s_lshr_b32 s{S_RB}, s{S_J}, 2
    s_lshl_b32 s{S_CBK}, s{S_HKV}, 3
    s_add_u32 s{S_RB}, s{S_RB}, s{S_CBK}
    s_and_b32 s{S_CBK}, s{S_J}, 3
    s_mov_b32 s{S_PROG}, 0
    s_mov_b32 s{S_LIM}, {cfg.spin_lds}
    s_mov_b32 s{S_FF}, 0xff""")
    if cfg.stamps: g(f"    v_mov_b32 v{VST}, 0")

def selectors(g):
    g(f"""    v_and_b32 v4, 1, v0                   ; e'&1
    v_bfe_u32 v5, v0, 1, 2                ; e'>>1
    v_mov_b32 v6, 0x0c0c0100
    v_mov_b32 v8, 0x01000c0c
    v_cmp_eq_u32 vcc, 1, v4
    v_cndmask_b32 v6, v6, v8, vcc
    v_mov_b32 v8, 0x0c0c0302
    v_mov_b32 v10, 0x03020c0c
    v_cndmask_b32 v8, v8, v10, vcc
    v_mov_b32 v10, 0x0c0c0c0c""")
    for r in range(4):
        g(f"""    v_cmp_eq_u32 vcc, {r}, v5
    v_cndmask_b32 v{VSEL+2*r}, v10, v6, vcc
    v_cndmask_b32 v{VSEL+1+2*r}, v10, v8, vcc""")

def tags(g):
    g(f"""    s_waitcnt lgkmcnt(0)
    s_add_u32 s{S_TAG}, s{S_TAG}, 0x01010101
    s_and_b32 s{S_T0}, s{S_TAG}, 0xff
    s_bfe_u32 s{S_T0+1}, s{S_TAG}, 0x80008
    s_bfe_u32 s{S_T0+2}, s{S_TAG}, 0x80010
    s_lshr_b32 s{S_T0+3}, s{S_TAG}, 24
    v_mov_b32 v16, s{S_T0}
    v_mov_b32 v17, s{S_T0+1}
    v_mov_b32 v18, s{S_T0+2}
    v_mov_b32 v19, s{S_T0+3}""")

def proj(g, n, x0, x1, nx):
    for r in range(128, 136): g(f"    v_mov_b32 v{r}, 0")
    g(f"    s_waitcnt vmcnt({n})")
    g.stamp(1)
    def build(t):
        base = 48 + (t & 1)*8
        for b, xb in ((0, x0), (1, x1)):
            for r in range(4):
                g(f"    v_perm_b32 v{base+4*b+r}, v{xb+(t>>1)}, v{xb+(t>>1)}, v{VSEL+2*r+(t&1)}")
    build(0)
    for t in range(n):
        if t + 1 < n: build(t + 1)
        base = 48 + (t & 1)*8
        g(f"    s_waitcnt vmcnt({n-1-t})")
        for b in range(2):
            g(f"    v_mfma_f32_16x16x32_bf16 v[{128+4*b}:{131+4*b}], v[{base+4*b}:{base+4*b+3}], v[{64+4*t}:{67+4*t}], v[{128+4*b}:{131+4*b}]")
    for k in range(4):
        g(f"    v_permlane32_swap_b32 v{128+k}, v{132+k}")
    for k in range(4):
        g(f"    v_add_f32_dpp v{36+k}, v{132+k}, v{128+k} row_ror:8 row_mask:0xf bank_mask:0xf")
    for k in range(4):
        g(f"    v_bfi_b32 v{36+k}, s{S_FF}, v{16+k}, v{36+k}")
def pub_addr(g):
    g("""    v_and_b32 v5, 7, v0
    v_lshl_add_u32 v4, v5, 5, v4          ; + cg*32
    v_bfe_u32 v5, v0, 4, 1
    v_lshl_add_u32 v4, v5, 4, v4          ; + half*16
    s_mov_b32 s70, 0x00ff00ff
    s_mov_b32 s71, 0x00ff00ff""")

def emit_w(g, cfg):
    g.wait_flag(L_WF, 1, 58, 11)
    g(f"""    ds_read_b128 v[80:83], v23 offset:{L_W2}
    ds_read_b128 v[84:87], v23 offset:{L_W2 + 4096}""")
    for t in range(4):
        g(f"    ds_read_b128 v[{64+4*t}:{67+4*t}], v22 offset:{L_WO + t*256}")
    lab = g.label("Lnw")
    g(f"""    s_waitcnt lgkmcnt(5)
    v_mfma_f32_16x16x32_bf16 v[108:111], v[96:99], v[80:83], v[108:111]
    s_waitcnt lgkmcnt(4)
    s_cmp_eq_u32 s{S_WAVE}, 3
    s_cbranch_scc1 {lab}
    v_mfma_f32_16x16x32_bf16 v[108:111], v[100:103], v[84:87], v[108:111]
{lab}:
    s_waitcnt lgkmcnt(0)""")

def stamp_out(g):
    g(f"""    s_waitcnt vmcnt(0) lgkmcnt(0)
    v_writelane_b32 v{VST}, s96, 0
    s_mul_i32 s72, s2, {NW}
    s_add_u32 s72, s72, s{S_WAVE}
    s_lshl_b32 s72, s72, 6
    s_add_u32 s72, s72, {WS_STAMP}
    s_mov_b32 exec_lo, 0xffff
    s_mov_b32 exec_hi, 0
    buffer_store_dword v{VST}, v1, {srd(S_WS)}, s72 offen
    s_waitcnt vmcnt(0)""")

def gen(cfg, path):
    g = G(cfg)
    NT = cfg.nt
    g(f"""; @launch grid=(256,1,1) block=({NW*64},1,1) lds={LDS_TOTAL}
.amdgcn_target "amdgcn-amd-amdhsa--gfx950"
.text
.globl {KNAME}
.p2align 8
.type {KNAME},@function
{KNAME}:
    s_cmp_ge_u32 s2, 256
    s_cbranch_scc1 L_end""")
    if cfg.stamps:
        g(f"    s_memrealtime s[96:97]")
    if cfg.dbgst:
        g(f"    s_memrealtime s[94:95]")
        g(f"    s_load_dwordx2 s[88:89], s[0:1], 80")
        g(f"    s_mov_b32 s90, 256")
        g(f"    s_mov_b32 s91, 0x20000")
    g(f"""    v_lshrrev_b32 v1, 6, v0
    s_and_b32 s{S_HKV}, s2, 7
    s_lshr_b32 s{S_J}, s2, 3
    v_readfirstlane_b32 s{S_WAVE}, v1
    v_and_b32 v0, 63, v0                  ; v0 = lane
    s_cmp_eq_u32 s{S_WAVE}, {W_LOAD}
    s_cbranch_scc1 L_loader
    s_cmp_eq_u32 s{S_WAVE}, {W_P1Q}
    s_cbranch_scc1 L_p1q
    s_cmp_eq_u32 s{S_WAVE}, {W_HELP}
    s_cbranch_scc1 L_helper""")
    srd_load(g, ["ws", "out"]); srd_const(g, ["ws", "out"])
    lane_regs(g); common_rest(g, cfg)
    g(f"""    v_lshlrev_b32 v11, 4, v0              ; l*16
    s_waitcnt lgkmcnt(0)
    s_load_dword s{S_TAG}, s[{S_WS}:{S_WS+1}], 0x0
    s_barrier""")
    selectors(g); tags(g)
    g(f"""    s_cmp_eq_u32 s{S_WAVE}, 3
    s_cbranch_scc1 L_qwait""")
    if cfg.streamonly: g("    s_branch L_qwait")
    g(f"""    s_lshr_b32 s72, s{S_J}, 4              ; b
    s_lshl_b32 s73, s72, 14               ; b*4096*4
    s_lshl_b32 s74, s{S_HKV}, 11          ; hkv*512*4
    s_add_u32 s73, s73, s74
    s_and_b32 s74, s{S_WAVE}, 1
    s_lshl_b32 s74, s74, 10
    s_add_u32 s73, s73, s74
    s_add_u32 s73, s73, {WS_QP}
    s_add_u32 s74, s73, {1*32768}
    s_add_u32 s75, s73, {2*32768}
    s_add_u32 s76, s73, {3*32768}""")
    if cfg.qk >= 0:
        g("    v_mov_b32 v9, 0")
        g.wait_flag(L_QF, 1, 10, 9)
        g(f"""    ds_read_b32 v10, v1 offset:{L_PROG}
    s_waitcnt lgkmcnt(0)
    v_readfirstlane_b32 s72, v10
    s_add_u32 s72, s72, {cfg.qk}
    s_min_u32 s72, s72, 16""")
        g.wait_prog("s72")
    else:
        g.wait_prog(cfg.qstart)
    g.stamp(15)
    g.poll([f"buffer_load_dwordx4 v[{32+4*k}:{35+4*k}], v11, {srd(S_WS)}, s{60+k} offen sc1" for k in range(4)], [32, 36, 40, 44], 48, sleep=cfg.sleep1,
           dual=([73, 74, 75, 76], [60, 61, 62, 63], D_QP, cfg.na1), nk=10)
    for k in range(4):
        g(f"""    v_add_f32 v{32+k}, v{32+k}, v{36+k}
    v_add_f32 v{40+k}, v{40+k}, v{44+k}""")
    for k in range(4):
        g(f"    v_add_f32 v{32+k}, v{32+k}, v{40+k}")
    g(f"""    v_cvt_pk_bf16_f32 v32, v32, v33
    v_cvt_pk_bf16_f32 v33, v34, v35
    v_lshlrev_b32 v4, 3, v0
    s_and_b32 s72, s{S_WAVE}, 1
    s_lshl_b32 s73, s72, 9
    v_add_u32 v4, s73, v4
    ds_write_b64 v4, v[32:33] offset:{L_Q}
    v_mov_b32 v5, 1
    s_lshl_b32 s72, s72, 2
    v_mov_b32 v4, s72
    ds_write_b32 v4, v5 offset:{L_S2}
    s_branch L_qwait""")
    g("L_p1q:")
    srd_load(g, ["wq", "x", "ws", "out"]); srd_const(g, ["wq", "x"])
    g(f"""    s_and_b32 s52, s{S_J}, 7               ; cb
    s_lshr_b32 s53, s{S_J}, 3              ; ks
    s_lshl_b32 s56, s53, 20               ; 128*ks*8192
    s_lshl_b32 s57, s{S_HKV}, 10
    s_lshl_b32 s58, s52, 7
    s_add_u32 s57, s57, s58
    s_add_u32 s56, s56, s57
    v_lshrrev_b32 v5, 3, v0               ; r8
    v_and_b32 v6, 7, v0
    v_lshlrev_b32 v6, 4, v6
    v_lshlrev_b32 v7, 17, v5
    v_add_u32 v7, v7, v6
    v_lshlrev_b32 v9, 5, v5               ; x voffset = 16*r8*2
    s_lshl_b32 s64, s53, 8                ; 128*ks*2
    s_waitcnt lgkmcnt(0)
    buffer_load_dwordx4 v[20:23], v9, {srd(S_X)}, s64 offen
    buffer_load_dwordx4 v[24:27], v9, {srd(S_X)}, s64 offen offset:16
    buffer_load_dwordx4 v[28:31], v9, {srd(S_X)}, s64 offen offset:1024
    buffer_load_dwordx4 v[32:35], v9, {srd(S_X)}, s64 offen offset:1040""")
    for t in range(16):
        g(f"    buffer_load_dwordx4 v[{64+4*t}:{67+4*t}], v7, {srd(S_WQ)}, s56 offen{NT}")
        if t < 15: g("    s_add_u32 s56, s56, 8192")
    g(f"    s_load_dword s{S_TAG}, s[{S_WS}:{S_WS+1}], 0x0")
    srd_const(g, ["ws", "out"]); lane_regs(g); common_rest(g, cfg)
    g("    s_barrier")
    selectors(g); tags(g)
    g(f"""    s_lshl_b32 s72, s53, 15
    s_lshl_b32 s73, s57, 1
    s_add_u32 s72, s72, s73
    s_add_u32 s72, s72, {WS_QP}
    s_add_u32 s73, s72, {D_QP}
    v_lshrrev_b32 v4, 5, v0
    v_lshlrev_b32 v4, 14, v4              ; b*4096*4""")
    pub_addr(g)
    proj(g, 16, 20, 28, 4)
    g(f"""    s_mov_b64 exec, s[70:71]
    buffer_store_dwordx4 v[36:39], v4, {srd(S_WS)}, s72 offen {cfg.aflag}
    buffer_store_dwordx4 v[36:39], v4, {srd(S_WS)}, s73 offen sc1
    s_mov_b64 exec, -1
    v_mov_b32 v5, 1
    v_mov_b32 v4, 0
    ds_write_b32 v4, v5 offset:{L_QF}""")
    g.stamp(2)
    g("L_qwait:")
    if cfg.streamonly:
        g("    s_waitcnt vmcnt(0)\n    s_endpgm")
    g(f"""    ; K read addresses v20..23 : L_K + w*4096 + i*256 + ((4t ^ g ^ i))*16
    v_xor_b32 v9, v3, v2                  ; g ^ i
    v_lshlrev_b32 v10, 8, v2              ; i*256
    s_lshl_b32 s72, s{S_WAVE}, 12
    s_add_u32 s72, s72, {L_K}
    v_add_u32 v10, s72, v10""")
    for t in range(4):
        g(f"""    v_xor_b32 v4, {4*t}, v9
    v_lshl_add_u32 v{20+t}, v4, 4, v10""")
    g(f"""    ; Q frag address v8: head*256 + (4t+g)*16 ; v4 = head*16 (MX/LW), v5 = v4 + 4w
    v_and_b32 v8, 3, v0
    v_lshlrev_b32 v4, 4, v8
    v_lshlrev_b32 v8, 8, v8
    v_lshl_add_u32 v8, v3, 4, v8
    s_lshl_b32 s72, s{S_WAVE}, 2
    v_add_u32 v5, s72, v4
    v_mov_b32 v9, 0""")
    for r in range(48, 64): g(f"    v_mov_b32 v{r}, 0")
    for T in range(3):
        g(f"    s_add_u32 s72, s{S_WAVE}, {4*T+1}")
        g.wait_prog("s72", 10)
        for t in range(4):
            r = 64 + T*16 + 4*t
            g(f"    ds_read_b128 v[{r}:{r+3}], v{20+t} offset:{T*16384}")
    g.wait_flag(L_S2, 2, 10, 9)
    g.stamp(3)
    for t in range(4):
        g(f"    ds_read_b128 v[{32+4*t}:{35+4*t}], v8 offset:{L_Q + t*64}")
    g(f"    s_add_u32 s72, s{S_WAVE}, 13")
    g.wait_prog("s72", 10)
    for t in range(4):
        r = 64 + 3*16 + 4*t
        g(f"    ds_read_b128 v[{r}:{r+3}], v{20+t} offset:{3*16384}")
    g("    s_waitcnt lgkmcnt(4)")
    for t in range(4):
        for T in range(3):
            r = 64 + T*16 + 4*t
            g(f"    v_mfma_f32_16x16x32_bf16 v[{48+4*T}:{51+4*T}], v[{r}:{r+3}], v[{32+4*t}:{35+4*t}], v[{48+4*T}:{51+4*T}]")
    g("    s_waitcnt lgkmcnt(0)")
    for t in range(4):
        r = 64 + 3*16 + 4*t
        g(f"    v_mfma_f32_16x16x32_bf16 v[60:63], v[{r}:{r+3}], v[{32+4*t}:{35+4*t}], v[60:63]")
    c = (128 ** -0.5) * math.log2(math.e)
    g(f"""    s_mov_b32 s61, {hex(f32bits(c))}
    v_max3_f32 v24, v48, v49, v50
    v_max3_f32 v25, v51, v52, v53
    v_max3_f32 v26, v54, v55, v56
    v_max3_f32 v27, v57, v58, v59
    v_max3_f32 v24, v24, v25, v26
    v_max3_f32 v28, v60, v61, v62
    v_max3_f32 v24, v24, v27, v63
    v_max_f32 v24, v24, v28
    v_mov_b32 v25, v24
    v_permlane16_swap_b32 v24, v25
    v_max_f32 v24, v24, v25
    v_mov_b32 v25, v24
    v_permlane32_swap_b32 v24, v25
    v_max_f32 v24, v24, v25
    v_or_b32 v24, 1, v24
    ds_write_b32 v5, v24 offset:{L_MX}""")
    g.wait_nonzero4(24, 4, L_MX, 28)
    g(f"""    v_max3_f32 v24, v24, v25, v26
    v_max_f32 v24, v24, v27
    v_mul_f32 v24, s61, v24""")
    for r in range(48, 64):
        g(f"    v_fma_f32 v{r}, v{r}, s61, -v24")
    for r in range(48, 64):
        g(f"    v_exp_f32 v{r}, v{r}")
    for T in range(4):
        g(f"    v_cvt_pk_bf16_f32 v{64+2*T}, v{48+4*T}, v{49+4*T}")
        g(f"    v_cvt_pk_bf16_f32 v{65+2*T}, v{50+4*T}, v{51+4*T}")
    g(f"""    v_and_b32 v6, 3, v0
    v_lshlrev_b32 v6, 6, v6
    v_lshl_add_u32 v6, v3, 4, v6
    s_lshr_b32 s72, s{S_WAVE}, 1
    s_lshl_b32 s72, s72, 8
    s_and_b32 s73, s{S_WAVE}, 1
    s_lshl_b32 s73, s73, 3
    s_add_u32 s72, s72, s73
    v_add_u32 v7, s72, v6""")
    for T in range(4):
        g(f"    ds_write_b64 v7, v[{64+2*T}:{65+2*T}] offset:{L_P + T*512}")
    g("""    v_add_f32 v25, v48, v49
    v_add_f32 v26, v50, v51
    v_add_f32 v27, v52, v53
    v_add_f32 v28, v54, v55
    v_add_f32 v29, v56, v57
    v_add_f32 v30, v58, v59
    v_add_f32 v31, v60, v61
    v_add_f32 v72, v62, v63
    v_add_f32 v25, v25, v26
    v_add_f32 v27, v27, v28
    v_add_f32 v29, v29, v30
    v_add_f32 v31, v31, v72
    v_add_f32 v25, v25, v27
    v_add_f32 v29, v29, v31
    v_add_f32 v25, v25, v29
    v_mov_b32 v26, v25
    v_permlane16_swap_b32 v25, v26
    v_add_f32 v25, v25, v26
    v_mov_b32 v26, v25
    v_permlane32_swap_b32 v25, v26
    v_add_f32 v25, v25, v26               ; l_w
    v_or_b32 v25, 1, v25""")
    g(f"    ds_write_b32 v5, v25 offset:{L_LW}")
    g(f"""    v_bfe_u32 v8, v0, 2, 2                ; r
    v_and_b32 v9, 3, v0                   ; c
    v_lshl_add_u32 v10, v3, 2, v8         ; 4g + r
    v_and_b32 v11, 7, v10                 ; k7
    v_lshlrev_b32 v10, 8, v10
    v_lshl_add_u32 v10, v9, 3, v10
    v_add_u32 v10, {L_V}, v10
    s_lshl_b32 s72, s{S_WAVE}, 1          ; dt0 = 2w
    v_xor_b32 v8, s72, v11
    v_lshl_add_u32 v20, v8, 5, v10
    s_add_u32 s72, s72, 1
    v_xor_b32 v8, s72, v11
    v_lshl_add_u32 v21, v8, 5, v10
    s_lshl_b32 s58, s{S_HKV}, 5
    s_add_u32 s58, s58, s{S_J}             ; producer
    s_lshl_b32 s58, s58, 11
    s_lshl_b32 s59, s{S_WAVE}, 7          ; 8w*16
    s_add_u32 s58, s58, s59
    s_add_u32 s58, s58, {WS_AP}
    s_add_u32 s59, s58, {D_AP}
    v_and_b32 v22, 3, v0
    v_lshlrev_b32 v22, 9, v22             ; head*512
    v_lshl_add_u32 v22, v3, 4, v22        ; + g'*16
    v_bfe_u32 v9, v0, 2, 1                ; dsel
    v_lshl_add_u32 v22, v9, 6, v22
    s_mov_b32 s54, 0x00f000f0
    s_mov_b32 s55, 0x00f000f0
    s_mov_b32 s56, 0x00ff00ff
    s_mov_b32 s57, 0x00ff00ff""")
    g.wait_nonzero4(28, 4, L_LW, 27)
    for u in range(8):
        g(f"    ds_read_b128 v[{32+4*u}:{35+4*u}], v6 offset:{L_P + u*256}")
    g(f"""    v_add_f32 v28, v28, v29
    v_add_f32 v30, v30, v31
    v_add_f32 v25, v28, v30               ; L
    v_rcp_f32 v26, v25                    ; v26 = 1/L
    v_log_f32 v27, v25
    v_add_f32 v27, v27, v24               ; v27 = lw
    v_xor_b32 v28, s{S_TAG}, v27""")
    for r in range(64, 72): g(f"    v_mov_b32 v{r}, 0")
    if cfg.opre:
        g(f"""    v_and_b32 v13, 1, v0
    v_lshlrev_b32 v13, 9, v13             ; b*512
    v_bfe_u32 v14, v0, 1, 1               ; ct
    v_lshl_add_u32 v13, v14, 6, v13
    v_lshl_add_u32 v13, v3, 4, v13        ; + g'*16
    s_lshl_b32 s76, s{S_CBK}, 6
    s_add_u32 s76, s76, s{S_RB}
    s_lshl_b32 s76, s76, 10
    s_lshl_b32 s77, s{S_WAVE}, 7
    s_add_u32 s76, s76, s77
    s_add_u32 s76, s76, {WS_OP}
    v_xor_b32 v72, 1, v16
    v_mov_b32 v73, v72
    v_mov_b32 v74, v72
    v_mov_b32 v75, v72
    s_mov_b32 s74, 0x000f000f
    s_mov_b32 s75, 0x000f000f
    s_mov_b64 exec, s[74:75]
    buffer_store_dwordx4 v[72:75], v13, {srd(S_WS)}, s76 offen sc1
    s_mov_b64 exec, -1""")
    if cfg.pretouch:
        g(f"""    v_mov_b32 v72, 0
    v_mov_b32 v73, 0
    v_mov_b32 v74, 0
    v_xor_b32 v75, 1, v72
    v_xor_b32 v75, s{S_TAG}, v75
    s_mov_b64 exec, s[56:57]
    buffer_store_dwordx4 v[72:75], v22, {srd(S_WS)}, s58 offen {cfg.aflag}
    s_mov_b64 exec, -1""")
    g.stamp(4)
    def pv_mfma(u):
        rb_ = 72 + (u & 1)*8
        for d in range(2):
            r = rb_ + d*4
            g(f"    v_mfma_f32_16x16x32_bf16 v[{64+4*d}:{67+4*d}], v[{r}:{r+3}], v[{32+4*u}:{35+4*u}], v[{64+4*d}:{67+4*d}]")
    for u in range(8):
        g.wait_prog(16 + 2*u + 2, 10)
        rb_ = 72 + (u & 1)*8
        for d in range(2):
            for h in range(2):
                r = rb_ + d*4 + 2*h
                g(f"    ds_read_b64_tr_b16 v[{r}:{r+1}], v{20+d} offset:{(2*u+h)*4096}")
        if u > 0:
            g("    s_waitcnt lgkmcnt(4)")
            pv_mfma(u - 1)
    g("    s_waitcnt lgkmcnt(0)")
    pv_mfma(7)
    g.stamp(5)
    g(f"""    v_cndmask_b32 v64, v64, v68, s[54:55]
    v_cndmask_b32 v65, v65, v69, s[54:55]
    v_cndmask_b32 v66, v66, v70, s[54:55]
    v_cndmask_b32 v67, v67, v71, s[54:55]
    v_mul_f32 v64, v64, v26
    v_mul_f32 v65, v65, v26
    v_mul_f32 v66, v66, v26
    v_mul_f32 v67, v67, v26
    v_cvt_pk_bf16_f32 v64, v64, v65
    v_cvt_pk_bf16_f32 v65, v66, v67
    v_mov_b32 v66, v27
    v_bitop3_b32 v67, v64, v65, v28 bitop3:0x96
    s_mov_b64 exec, s[56:57]
    buffer_store_dwordx4 v[64:67], v22, {srd(S_WS)}, s58 offen {cfg.aflag}
    buffer_store_dwordx4 v[64:67], v22, {srd(S_WS)}, s59 offen sc1
    s_mov_b64 exec, -1""")
    if cfg.wgate >= 0:
        g(f"""    v_mov_b32 v9, 1
    s_lshl_b32 s72, s{S_WAVE}, 2
    v_mov_b32 v8, s72
    ds_write_b32 v8, v9 offset:{L_PUB}""")
    g(f"""    ; lane (g, b'=(l>>3)&1, s8=l&7): granule index = 16*((j>>2)&1) + 4w + g  within head
    s_lshr_b32 s52, s{S_J}, 3              ; head4
    s_bfe_u32 s53, s{S_J}, 0x10002         ; (j>>2)&1
    v_and_b32 v8, 7, v0
    v_bfe_u32 v9, v0, 3, 1
    v_lshl_add_u32 v8, v9, 4, v8          ; b'*16 + s8
    v_lshlrev_b32 v8, 11, v8              ; *2048
    v_lshl_add_u32 v8, v3, 4, v8          ; + g*16
    s_lshl_b32 s72, s{S_HKV}, 16          ; hkv*32*2048
    s_lshl_b32 s73, s52, 9                ; head4*512
    s_add_u32 s72, s72, s73
    s_lshl_b32 s73, s53, 8
    s_add_u32 s72, s72, s73
    s_lshl_b32 s73, s{S_WAVE}, 6
    s_add_u32 s72, s72, s73
    s_add_u32 s72, s72, {WS_AP}
    s_add_u32 s73, s72, {8*2048}
    v_add_u32 v20, {(L_WO - L_V) & 0xffffffff:#x}, v20
    v_add_u32 v21, {(L_WO - L_V) & 0xffffffff:#x}, v21
    v_lshlrev_b32 v10, 5, v3
    v_lshl_add_u32 v10, v9, 4, v10
    s_lshr_b32 s74, s{S_WAVE}, 1
    s_lshl_b32 s74, s74, 7
    s_and_b32 s75, s{S_WAVE}, 1
    s_lshl_b32 s75, s75, 3
    s_add_u32 s74, s74, s75
    v_add_u32 v10, s74, v10
    v_and_b32 v11, 1, v0
    v_lshlrev_b32 v12, 2, v11
    v_lshlrev_b32 v11, 4, v11
    v_lshl_add_u32 v11, v3, 5, v11        ; v11
""")
    if cfg.oplay == 2:
        g(f"""    ; OP address: (cbk*64+rb)*1024 + (b*32 + 8w + 4ct + g')*16 ; lanes j<4: b=j&1, ct=(j>>1)&1
    v_and_b32 v13, 1, v0
    v_lshlrev_b32 v13, 9, v13             ; b*512
    v_bfe_u32 v14, v0, 1, 1               ; ct
    v_lshl_add_u32 v13, v14, 6, v13
    v_lshl_add_u32 v13, v3, 4, v13        ; + g'*16
    s_lshl_b32 s76, s{S_CBK}, 6
    s_add_u32 s76, s76, s{S_RB}
    s_lshl_b32 s76, s76, 10
    s_lshl_b32 s77, s{S_WAVE}, 7
    s_add_u32 s76, s76, s77
    s_add_u32 s76, s76, {WS_OP}""")
    else:
        g(f"""    ; OP address: Q*1024 + rb*16, Q = b*128 + cbk*32 + 8w + 4ct + g'
    v_and_b32 v13, 1, v0
    v_lshlrev_b32 v13, 17, v13            ; b*128*1024
    v_bfe_u32 v14, v0, 1, 1               ; ct
    v_lshl_add_u32 v13, v14, 12, v13      ; 4ct*1024
    v_lshl_add_u32 v13, v3, 10, v13       ; g'*1024
    s_lshl_b32 s76, s{S_CBK}, 15          ; cbk*32*1024
    s_lshl_b32 s77, s{S_WAVE}, 13         ; 8w*1024
    s_add_u32 s76, s76, s77
    s_lshl_b32 s77, s{S_RB}, 4
    s_add_u32 s76, s76, s77
    s_add_u32 s76, s76, {WS_OP}""")
    g(f"""    s_mov_b32 s54, 0xcccccccc
    s_mov_b32 s55, 0xcccccccc
    s_mov_b32 s56, 0x000f000f             ; lanes j<4
    s_mov_b32 s57, 0x000f000f
    s_mov_b32 s78, 0x01010101             ; lanes s8==0
    s_mov_b32 s79, 0x01010101""")
    for r in range(96, 112): g(f"    v_mov_b32 v{r}, 0")
    g.poll([f"buffer_load_dwordx4 v[32:35], v8, {srd(S_WS)}, s60 offen sc1",
            f"buffer_load_dwordx4 v[36:39], v8, {srd(S_WS)}, s61 offen sc1"], [32, 36], 48, mode="sum", tmp=49, sleep=cfg.sleep2,
           dual=([72, 73], [60, 61], D_AP, cfg.na2), nk=12, masked=cfg.mask2)
    g.stamp(6)
    g("    v_max_f32 v48, v34, v38")
    g("""    v_lshlrev_b32 v50, 16, v32
    v_and_b32 v51, 0xffff0000, v32""")
    g(f"    v_max_f32_dpp v48, v48, v48 {DPP8[0]} row_mask:0xf bank_mask:0xf")
    g("""    v_lshlrev_b32 v52, 16, v33
    v_and_b32 v53, 0xffff0000, v33""")
    g(f"    v_max_f32_dpp v48, v48, v48 {DPP8[1]} row_mask:0xf bank_mask:0xf")
    g("""    v_lshlrev_b32 v54, 16, v36
    v_and_b32 v55, 0xffff0000, v36""")
    g(f"    v_max_f32_dpp v48, v48, v48 {DPP8[2]} row_mask:0xf bank_mask:0xf")
    g("""    v_lshlrev_b32 v56, 16, v37
    v_and_b32 v57, 0xffff0000, v37
    v_sub_f32 v40, v34, v48
    v_sub_f32 v44, v38, v48
    v_exp_f32 v40, v40
    v_exp_f32 v44, v44
    v_mul_f32 v32, v40, v50
    v_mul_f32 v33, v40, v51
    v_mul_f32 v34, v40, v52
    v_mul_f32 v35, v40, v53
    v_add_f32 v49, v40, v44
    v_fmac_f32 v32, v44, v54
    v_fmac_f32 v33, v44, v55
    v_fmac_f32 v34, v44, v56
    v_fmac_f32 v35, v44, v57""")
    for dp in DPP8:
        for r in (49, 32, 33, 34, 35):
            g(f"    v_add_f32_dpp v{r}, v{r}, v{r} {dp} row_mask:0xf bank_mask:0xf")
    g(f"""    v_rcp_f32 v49, v49
    v_mul_f32 v32, v32, v49
    v_mul_f32 v33, v33, v49
    v_mul_f32 v34, v34, v49
    v_mul_f32 v35, v35, v49
    v_cvt_pk_bf16_f32 v32, v32, v33
    v_cvt_pk_bf16_f32 v33, v34, v35
    s_mov_b64 exec, s[78:79]
    ds_write_b64 v10, v[32:33] offset:{L_O}
    s_mov_b64 exec, -1
    s_waitcnt lgkmcnt(0)
    s_barrier
    ds_read_b128 v[32:35], v11 offset:{L_O}
    ds_read_b128 v[36:39], v11 offset:{L_O + 128}""")
    for ks in range(2):
        for d in range(2):
            for h in range(2):
                r = 64 + (ks*2 + d)*4 + 2*h
                g(f"    ds_read_b64_tr_b16 v[{r}:{r+1}], v{20+d} offset:{(32*ks + 16*h)*256}")
    g(f"    ds_read_b128 v[40:43], v11 offset:{L_H}")
    for d in range(2):
        for h in range(2):
            r = 80 + d*4 + 2*h
            g(f"    ds_read_b64_tr_b16 v[{r}:{r+1}], v{20+d} offset:{L_W2 - L_WO + 16*h*256}")
    g(f"""    s_waitcnt lgkmcnt(11)
    v_mfma_f32_16x16x32_bf16 v[96:99], v[64:67], v[32:35], v[96:99]
    ds_read_b32 v30, v12 offset:{L_GATE}
    s_waitcnt lgkmcnt(10)
    v_mfma_f32_16x16x32_bf16 v[100:103], v[68:71], v[32:35], v[100:103]
    s_waitcnt lgkmcnt(8)
    v_mfma_f32_16x16x32_bf16 v[96:99], v[72:75], v[36:39], v[96:99]
    s_waitcnt lgkmcnt(6)
    v_mfma_f32_16x16x32_bf16 v[100:103], v[76:79], v[36:39], v[100:103]
    s_waitcnt lgkmcnt(3)
    v_mfma_f32_16x16x32_bf16 v[104:107], v[80:83], v[40:43], v[104:107]
    s_waitcnt lgkmcnt(1)
    v_mfma_f32_16x16x32_bf16 v[108:111], v[84:87], v[40:43], v[108:111]
    s_waitcnt lgkmcnt(0)
    v_sub_f32 v31, 1.0, v30
    v_cndmask_b32 v96, v96, v100, s[54:55]
    v_cndmask_b32 v97, v97, v101, s[54:55]
    v_cndmask_b32 v98, v98, v102, s[54:55]
    v_cndmask_b32 v99, v99, v103, s[54:55]
    v_mul_f32 v96, v96, v30
    v_mul_f32 v97, v97, v30
    v_mul_f32 v98, v98, v30
    v_mul_f32 v99, v99, v30
    v_cndmask_b32 v104, v104, v108, s[54:55]
    v_cndmask_b32 v105, v105, v109, s[54:55]
    v_cndmask_b32 v106, v106, v110, s[54:55]
    v_cndmask_b32 v107, v107, v111, s[54:55]
    v_fmac_f32 v96, v104, v31
    v_fmac_f32 v97, v105, v31
    v_fmac_f32 v98, v106, v31
    v_fmac_f32 v99, v107, v31""")
    for k in range(4):
        g(f"    v_bfi_b32 v{96+k}, s{S_FF}, v{16+k}, v{96+k}")
    g(f"""    s_mov_b64 exec, s[56:57]
    buffer_store_dwordx4 v[96:99], v13, {srd(S_WS)}, s76 offen sc1
    s_mov_b64 exec, -1""")
    g.stamp(7)
    g(f"""    s_cmp_ge_u32 s{S_WAVE}, {cfg.npoll3}
    s_cbranch_scc1 L_stampout""")
    if cfg.npoll3 > 1:
        for w in range(1, cfg.npoll3):
            lab = g.label("Lstg")
            g(f"""    s_cmp_lt_u32 s{S_WAVE}, {w}
    s_cbranch_scc1 {lab}
    s_sleep {cfg.stag3}
{lab}:""")
    g(f"""    ; Q = G*8 + (j&7), G = (j>>3)*8 + hkv   (G = b*16 + cbk*4 + qh)
    s_lshr_b32 s66, s{S_J}, 3
    s_lshl_b32 s66, s66, 3
    s_add_u32 s66, s66, s{S_HKV}
    s_lshl_b32 s66, s66, 3
    s_and_b32 s67, s{S_J}, 7
    s_add_u32 s66, s66, s67
""")
    if cfg.oplay == 2:
        g(f"""    s_bfe_u32 s72, s66, 0x20005           ; cbk
    s_lshl_b32 s72, s72, 16
    s_lshr_b32 s73, s66, 7
    s_lshl_b32 s73, s73, 9
    s_add_u32 s72, s72, s73
    s_and_b32 s73, s66, 31
    s_lshl_b32 s73, s73, 4
    s_add_u32 s72, s72, s73
    s_add_u32 s72, s72, {WS_OP}
    v_lshlrev_b32 v6, 10, v0""")
    else:
        g(f"""    s_lshl_b32 s72, s66, 10
    s_add_u32 s72, s72, {WS_OP}
    v_lshlrev_b32 v6, 4, v0""")
    if cfg.outtouch == 2:
        g(f"""    v_mov_b32 v7, 0
    s_mov_b64 exec, 1
    buffer_load_dword v8, v7, {srd(S_OUT)}, 0 offen
    s_mov_b64 exec, -1""")
    if cfg.lflag:
        L = g.label("Llf"); E = g.label("Llfe")
        g(f"""    s_lshl_b32 s74, s{S_HKV}, 9
    s_add_u32 s74, s74, {WS_LF}
    s_lshl_b32 s75, s{S_J}, 4
    s_add_u32 s75, s75, s74
    v_mov_b32 v40, s{S_TAG}
    v_mov_b32 v41, 0
    v_and_b32 v42, 31, v0
    v_lshlrev_b32 v42, 4, v42
    s_mov_b64 exec, 1
    buffer_store_dword v40, v41, {srd(S_WS)}, s75 offen
    s_mov_b64 exec, -1
    s_mov_b32 s101, {cfg.lfmax}
{L}:
    buffer_load_dword v43, v42, {srd(S_WS)}, s74 offen sc1
    s_waitcnt vmcnt(0)
    v_cmp_ne_u32 vcc, s{S_TAG}, v43
    s_cbranch_vccz {E}
    s_sub_u32 s101, s101, 1
    s_cmp_gt_i32 s101, 0
    s_cbranch_scc1 {L}
{E}:""")
    if cfg.pre3: g(f"    s_sleep {cfg.pre3}")
    g.poll([f"buffer_load_dwordx4 v[32:35], v6, {srd(S_WS)}, s72 offen sc1"], [32], 48, sleep=cfg.sleep3, nk=13, masked=cfg.mask3)
    g.stamp(8)
    g(f"""    v_permlane32_swap_b32 v32, v34
    v_permlane32_swap_b32 v33, v35
    v_add_f32 v32, v32, v34
    v_add_f32 v33, v33, v35
    v_permlane16_swap_b32 v32, v33
    v_add_f32 v32, v32, v33""")
    for k in (8, 4, 2, 1):
        g(f"    v_add_f32_dpp v32, v32, v32 row_ror:{k} row_mask:0xf bank_mask:0xf")
    g(f"""    v_cvt_pk_bf16_f32 v32, v32, v32
    v_lshlrev_b32 v6, 1, v3               ; row*2
    s_lshl_b32 s72, s66, 3
    v_cmp_eq_u32 vcc, 0, v2
    s_and_saveexec_b64 s[70:71], vcc
    buffer_store_short v32, v6, {srd(S_OUT)}, s72 offen {cfg.outflag}
    s_cmp_eq_u32 s2, 0
    s_cbranch_scc0 L_noep
    s_mov_b64 exec, 1
    v_mov_b32 v7, s{S_TAG}
    v_mov_b32 v8, 0
    buffer_store_dword v7, v8, {srd(S_WS)}, 0 offen
L_noep:
    s_mov_b64 exec, s[70:71]""")
    if cfg.dbgst:
        g(f"""    s_cmp_lt_u32 s2, 8
    s_cbranch_scc0 L_nodbg
    s_memrealtime s[92:93]
    s_waitcnt lgkmcnt(0)
    v_mov_b32 v7, s94
    v_mov_b32 v8, s92
    s_lshl_b32 s72, s2, 2
    v_mov_b32 v9, 0
    s_mov_b64 exec, 1
    buffer_store_dword v7, v9, s[88:91], s72 offen
    buffer_store_dword v8, v9, s[88:91], s72 offen offset:32
    s_mov_b64 exec, -1
L_nodbg:""")
    g.stamp(9)
    g("L_stampout:")
    if cfg.stamps: stamp_out(g)
    g("    s_endpgm")
    g("L_helper:")
    srd_load(g, ["x", "gw", "w1", "ws"]); srd_const(g, ["x", "gw", "w1", "ws"])
    lane_regs(g); common_rest(g, cfg)
    g(f"""    s_mul_i32 s59, s2, 2341
    s_lshr_b32 s59, s59, 16               ; ks8 = c/28
    s_mul_i32 s60, s59, 28
    s_sub_u32 s60, s2, s60                ; fb
    s_lshl_b32 s61, s59, 6
    s_mul_i32 s62, s61, 3584
    s_lshl_b32 s63, s60, 7
    s_add_u32 s62, s62, s63               ; w1 soffset
    v_lshrrev_b32 v5, 3, v0               ; r8
    v_and_b32 v6, 7, v0
    v_lshlrev_b32 v6, 4, v6
    v_mul_u32_u24 v7, {8*3584}, v5
    v_add_u32 v7, v7, v6
    v_lshlrev_b32 v9, 4, v5               ; x voffset = 8*r8*2
    s_lshl_b32 s64, s61, 1
    v_lshlrev_b32 v11, 4, v0
    s_waitcnt lgkmcnt(0)
    s_load_dword s{S_TAG}, s[{S_WS}:{S_WS+1}], 0x0
    s_barrier
    buffer_load_dwordx4 v[112:115], v11, {srd(S_X)}, 0 offen
    buffer_load_dwordx4 v[116:119], v11, {srd(S_X)}, 0 offen offset:1024
    buffer_load_dwordx4 v[120:123], v11, {srd(S_GW)}, 0 offen
    buffer_load_dwordx4 v[20:23], v9, {srd(S_X)}, s64 offen
    buffer_load_dwordx4 v[28:31], v9, {srd(S_X)}, s64 offen offset:1024""")
    for t in range(8):
        g(f"    buffer_load_dwordx4 v[{64+4*t}:{67+4*t}], v7, {srd(S_W1)}, s62 offen{NT}")
        if t < 7: g("    s_add_u32 s62, s62, 3584")
    selectors(g); tags(g)
    g(f"""    s_mul_i32 s72, s59, {2*1792*4}
    s_lshl_b32 s73, s60, 8
    s_add_u32 s72, s72, s73
    s_add_u32 s72, s72, {WS_HP}
    v_lshrrev_b32 v4, 5, v0
    v_mul_u32_u24 v4, {1792*4}, v4        ; b*1792*4""")
    pub_addr(g)
    proj(g, 8, 20, 28, 2)
    g(f"""    s_cmp_ge_u32 s2, 224
    s_cbranch_scc1 L_nohpub
    s_mov_b64 exec, s[70:71]
    buffer_store_dwordx4 v[36:39], v4, {srd(S_WS)}, s72 offen sc1
    s_mov_b64 exec, -1
L_nohpub:""")
    g.stamp(2)
    for b in range(2):
        acc = 44 + b
        g(f"    v_mov_b32 v{acc}, 0")
        for r in range(4):
            xs = 112 + 4*b + r; gs = 120 + r
            g(f"""    v_lshlrev_b32 v46, 16, v{xs}
    v_lshlrev_b32 v47, 16, v{gs}
    v_and_b32 v48, 0xffff0000, v{xs}
    v_and_b32 v49, 0xffff0000, v{gs}
    v_mul_f32 v46, v46, v47
    v_mul_f32 v48, v48, v49
    v_cvt_pk_bf16_f32 v46, v46, v48
    v_lshlrev_b32 v47, 16, v46
    v_and_b32 v48, 0xffff0000, v46
    v_add_f32 v{acc}, v{acc}, v47
    v_add_f32 v{acc}, v{acc}, v48""")
    for k in (8, 4, 2, 1):
        g(f"""    v_add_f32_dpp v44, v44, v44 row_ror:{k} row_mask:0xf bank_mask:0xf
    v_add_f32_dpp v45, v45, v45 row_ror:{k} row_mask:0xf bank_mask:0xf""")
    for sw in ("v_permlane16_swap_b32", "v_permlane32_swap_b32"):
        g(f"""    v_mov_b32 v46, v44
    v_mov_b32 v47, v45
    {sw} v44, v46
    {sw} v45, v47
    v_add_f32 v44, v44, v46
    v_add_f32 v45, v45, v47""")
    g(f"""    v_cmp_gt_u32 vcc, 32, v0
    v_cndmask_b32 v44, v45, v44, vcc
    v_cvt_pk_bf16_f32 v44, v44, v44
    v_lshlrev_b32 v44, 16, v44
    v_mul_f32 v44, 0xbfb8aa3b, v44
    v_exp_f32 v44, v44
    v_add_f32 v44, 1.0, v44
    v_rcp_f32 v44, v44                    ; g
    v_lshrrev_b32 v4, 5, v0
    v_lshlrev_b32 v4, 2, v4
    ds_write_b32 v4, v44 offset:{L_GATE}
    v_and_b32 v8, 7, v0
    v_mul_u32_u24 v8, {2*1792*4}, v8
    v_bfe_u32 v9, v0, 3, 1
    v_mul_u32_u24 v10, {1792*4}, v9
    v_add_u32 v8, v8, v10
    v_lshl_add_u32 v8, v3, 4, v8          ; + qq*16
    v_add_u32 v11, 64, v8
    v_cmp_eq_u32 vcc, 3, v3
    v_cndmask_b32 v11, v11, v8, vcc
    s_mul_i32 s72, s{S_RB}, {28*4}
    s_add_u32 s72, s72, {WS_HP}""")
    if cfg.streamonly:
        g("    s_waitcnt vmcnt(0)\n    s_endpgm")
    g.wait_prog(cfg.hstart)
    g.poll([f"buffer_load_dwordx4 v[64:67], v8, {srd(S_WS)}, s72 offen sc1",
            f"buffer_load_dwordx4 v[68:71], v11, {srd(S_WS)}, s72 offen sc1"], [64, 68], 72, sleep=cfg.sleeph, nk=11)
    for dp in DPP8:
        for r in range(64, 72):
            g(f"    v_add_f32_dpp v{r}, v{r}, v{r} {dp} row_mask:0xf bank_mask:0xf")
    for q in range(2):
        r = 64 + 4*q
        g(f"""    v_cvt_pk_bf16_f32 v{r}, v{r}, v{r+1}
    v_cvt_pk_bf16_f32 v{r+2}, v{r+2}, v{r+3}
    v_and_b32 v{r+1}, 0xffff0000, v{r}
    v_lshlrev_b32 v{r}, 16, v{r}
    v_and_b32 v{r+3}, 0xffff0000, v{r+2}
    v_lshlrev_b32 v{r+2}, 16, v{r+2}""")
        for k in range(4):
            g(f"""    v_mul_f32 v{80+k}, 0xbfb8aa3b, v{r+k}
    v_exp_f32 v{80+k}, v{80+k}
    v_add_f32 v{80+k}, 1.0, v{80+k}
    v_rcp_f32 v{80+k}, v{80+k}
    v_mul_f32 v{r+k}, v{r+k}, v{80+k}""")
        g(f"""    v_cvt_pk_bf16_f32 v{r}, v{r}, v{r+1}
    v_cvt_pk_bf16_f32 v{r+1}, v{r+2}, v{r+3}""")
    g(f"""    v_lshlrev_b32 v4, 4, v9
    v_lshl_add_u32 v4, v3, 5, v4          ; qq*32 + b*16
    s_mov_b32 s70, 0x01010101
    s_mov_b32 s71, 0x01010101
    s_mov_b64 exec, s[70:71]
    ds_write_b64 v4, v[64:65] offset:{L_H}
    s_mov_b32 s71, 0x00000101
    s_mov_b64 exec, s[70:71]
    ds_write_b64 v4, v[68:69] offset:{L_H + 8}
    s_mov_b64 exec, -1
    v_mov_b32 v5, 1
    v_mov_b32 v4, 0
    ds_write_b32 v4, v5 offset:{L_HF}""")
    if cfg.dirty:
        g(f"""    s_mul_i32 s72, s2, {cfg.dirty*1024}
    s_add_u32 s72, s72, 0x800000
    v_lshlrev_b32 v6, 4, v0""")
        for k in range(cfg.dirty):
            g(f"    buffer_store_dwordx4 v[64:67], v6, {srd(S_WS)}, s72 offen\n    s_add_u32 s72, s72, 1024")
    if cfg.outtouch == 1:
        g(f"""    s_mov_b64 exec, 1
    buffer_load_dword v6, v4, {srd(S_OUT)}, 0 offen
    s_mov_b64 exec, -1
    s_waitcnt vmcnt(0)""")
    g.stamp(14)
    if cfg.stamps: stamp_out(g)
    g("    s_endpgm")
    g("L_loader:")
    srd_load(g, ["k"]); srd_const(g, ["k"])
    lane_regs(g)
    g(f"""    s_lshr_b32 s52, s{S_J}, 4
    s_lshl_b32 s54, s52, 3
    s_add_u32 s54, s54, s{S_HKV}
    s_lshl_b32 s54, s54, 23
    s_and_b32 s53, s{S_J}, 15
    s_lshl_b32 s55, s53, {12 if cfg.strided else 16}
    s_add_u32 s54, s54, s55
    s_add_u32 s54, s54, {(32768-4096)*256}
    v_lshlrev_b32 v4, 8, v3
    v_xor_b32 v5, v3, v2
    v_lshl_add_u32 v20, v5, 4, v4""")
    for n in range(1, 4):
        g(f"""    v_xor_b32 v6, {4*n}, v5
    v_lshl_add_u32 v{20+n}, v6, 4, v4""")
    g(f"""    s_mul_i32 s56, s{S_J}, {cfg.rotmul}""")
    if cfg.rothkv:
        g(f"""    s_mul_i32 s57, s{S_HKV}, {cfg.rothkv}
    s_add_u32 s56, s56, s57""")
    g("    s_waitcnt lgkmcnt(0)")
    def loader_rest():
        g("    s_setprio 3")
        srd_load(g, ["v", "wo", "w2"] + (["ws"] if cfg.stamps else [])); srd_const(g, ["v", "wo", "w2"] + (["ws"] if cfg.stamps else []))
        common_rest(g, cfg)
        g(f"""    v_mov_b32 v10, 0
    ds_write_b32 v1, v10 offset:{L_PROG}
    ds_write_b32 v1, v10 offset:256
    ds_write_b32 v1, v10 offset:512
    v_lshlrev_b32 v5, 1, v3
    v_xor_b32 v5, v5, v2
    v_lshl_add_u32 v24, v5, 4, v4
    v_xor_b32 v25, 128, v24
    v_lshlrev_b32 v5, 4, v5
    v_lshl_add_u32 v26, v3, 10, v5
    v_xor_b32 v27, 128, v26               ; odd
    v_mov_b32 v12, 0
    v_mov_b32 v13, 0
    v_mov_b32 v14, 0
    v_mov_b32 v15, 0
    v_lshlrev_b32 v5, 4, v0
    ds_write_b128 v5, v[12:15] offset:{L_W2 + 7168}
    s_lshl_b32 s60, s{S_RB}, 16            ; 64*rb*1024
    s_lshl_b32 s61, s{S_CBK}, 8
    s_add_u32 s60, s60, s61               ; wo soffset
    s_mul_i32 s62, s{S_RB}, {28*1024}
    s_add_u32 s62, s62, s61               ; w2 soffset
    s_mul_i32 s65, s{S_RB}, {2*cfg.wrot}
    s_waitcnt lgkmcnt(0)
    s_barrier""")
        g.stamp(11)
    if cfg.earlyn == 0: loader_rest()
    kseq = [("k", t, n) for t in range(16) for n in range(4)]
    vseq = [("v", t, n) for t in range(16) for n in range(4)]
    wl = [("wo", n, 0) for n in range(16)]; w2l = [("w2", n, 0) for n in range(7)]
    wseq = (w2l + wl) if cfg.w2first else (wl + w2l)
    if cfg.order == "kvw": seq = kseq + vseq + wseq
    elif cfg.order == "mix": seq = kseq + vseq[:4*cfg.vk] + wseq[:cfg.wm] + vseq[4*cfg.vk:] + wseq[cfg.wm:]
    elif cfg.order == "spread":
        seq = list(kseq); wi = 0
        for t in range(16):
            seq += vseq[4*t:4*t+4]
            if t >= cfg.vk and wi < cfg.wm:
                n = -(-(cfg.wm - wi) // (16 - t)) if t < 15 else 0
                seq += wseq[wi:wi+n]; wi += n
        seq += wseq[wi:]
    else: seq = kseq + wseq + vseq
    N = len(seq)
    mval = {}
    kv = 0; wdone = 0
    for i, (kind, t, n) in enumerate(seq):
        ch = False
        if kind in ("k", "v") and n == 3: kv += 1; ch = True
        if i + 1 == N: wdone = 1; ch = True
        if ch: mval[i + 1] = (kv, wdone)
    def post(done):
        kv_, wd_ = mval[done]
        g(f"""    v_mov_b32 v10, {kv_}
    ds_write_b32 v1, v10 offset:{L_PROG}""")
        if done == N: g.stamp(3)
        if seq[done-1][0] == "k" and kv_ == 16: g.stamp(1)
        if seq[done-1][0] == "k" and kv_ in (1, 2, 4, 8): g.stamp({1: 4, 2: 5, 4: 6, 8: 7}[kv_])
        if seq[done-1][0] == "v" and kv_ in (17, 18, 20): g.stamp({17: 8, 18: 9, 20: 10}[kv_])
        if seq[done-1][0] == "v" and kv_ == 32: g.stamp(2)
    def win(i):
        k = seq[i][0]
        return cfg.wk if k == "k" else (cfg.wv if k == "v" else cfg.ww)
    miles = sorted(mval.keys())
    st = {"issued": 0, "done": 0}
    def advance(need):
        while st["done"] < need:
            nxt = min([need] + [m for m in miles if m > st["done"]])
            g(f"    s_waitcnt vmcnt({st['issued'] - nxt})")
            st["done"] = nxt
            if nxt in miles: post(nxt)
    for i, (kind, t, n) in enumerate(seq):
        if kind in ("k", "v") and n == 0:
            g(f"""    s_add_u32 s63, s56, {t}
    s_and_b32 s63, s63, 15
    s_lshl_b32 s63, s63, {16 if cfg.strided else 12}
    s_add_u32 s63, s63, s54""")
        elif kind == "wo":
            g(f"""    s_add_u32 s63, s65, {t}
    s_and_b32 s63, s63, 15
    s_lshl_b32 s64, s63, 10
    s_lshl_b32 s63, s63, 12
    s_add_u32 s63, s63, s60""")
        elif kind == "w2":
            g(f"    s_add_u32 s63, s62, {t*4096}")
        if cfg.wgate >= 0 and i == 128 + cfg.wgate:
            advance(128)
            L = g.label("Lwd"); E = g.label("Lwde")
            g(f"""    v_mov_b32 v11, 0
{L}:
    ds_read_b128 v[12:15], v11 offset:{L_PUB}
    s_waitcnt lgkmcnt(0)
    v_min_u32 v12, v12, v13
    v_min3_u32 v12, v12, v14, v15
    v_cmp_eq_u32 vcc, 0, v12
    s_cbranch_vccz {E}""")
            g.spin_tail(L)
            g(f"{E}:")
        advance(i + 1 - win(i))
        if kind in ("k", "v") and n == 0:
            g(f"    s_mov_b32 m0, {(L_K if kind == 'k' else L_V) + t*4096}")
            g("    s_nop 0")
        if kind == "k":
            g(f"    buffer_load_dwordx4 v{20+n}, {srd(S_K)}, s63 offen offset:{n*1024}{NT} lds")
        elif kind == "v":
            g(f"    buffer_load_dwordx4 v{24+(n&1)}, {srd(S_V)}, s63 offen offset:{n*1024}{NT} lds")
        elif kind == "wo":
            g(f"""    s_add_u32 m0, s64, {L_WO}
    s_nop 0
    buffer_load_dwordx4 v{26+(t&1)}, {srd(S_WO)}, s63 offen{cfg.wnt} lds""")
        else:
            g(f"""    s_mov_b32 m0, {L_W2 + t*1024}
    s_nop 0
    buffer_load_dwordx4 v{26+(t&1)}, {srd(S_W2)}, s63 offen{cfg.wnt} lds""")
        st["issued"] += 1
        if cfg.earlyn > 0 and i == cfg.earlyn - 1: loader_rest()
    if cfg.buddy:
        g(f"""    s_xor_b32 s66, s{S_J}, {cfg.buddy}
    s_lshr_b32 s67, s66, 2
    s_lshl_b32 s68, s{S_HKV}, 3
    s_add_u32 s67, s67, s68               ; rb'
    s_and_b32 s68, s66, 3
    s_lshl_b32 s68, s68, 8                ; cbk'*256
    s_lshl_b32 s69, s67, 16
    s_add_u32 s69, s69, s68               ; wo soffset
    s_mul_i32 s70, s67, {28*1024}
    s_add_u32 s70, s70, s68               ; w2 soffset
    v_lshlrev_b32 v28, 10, v0             ; row l
    v_lshrrev_b32 v29, 1, v0
    v_min_u32 v29, 27, v29
    v_lshlrev_b32 v29, 10, v29
    v_and_b32 v30, 1, v0
    v_lshl_add_u32 v29, v30, 7, v29
    buffer_load_dword v31, v29, {srd(S_W2)}, s70 offen
    buffer_load_dword v32, v28, {srd(S_WO)}, s69 offen
    buffer_load_dword v33, v28, {srd(S_WO)}, s69 offen offset:128""")
        st["issued"] += 3
    advance(N)
    if cfg.stamps: stamp_out(g)
    g("""    s_endpgm
L_end:
    s_endpgm""")
    g(f""".section .rodata,"a"
.p2align 6
.amdhsa_kernel {KNAME}
  .amdhsa_next_free_vgpr {152 if cfg.stamps else 144}
  .amdhsa_next_free_sgpr 102
  .amdhsa_accum_offset {152 if cfg.stamps else 144}
  .amdhsa_group_segment_fixed_size 0
  .amdhsa_kernarg_size 96
  .amdhsa_user_sgpr_count 2
  .amdhsa_user_sgpr_kernarg_segment_ptr 1
  .amdhsa_system_sgpr_workgroup_id_x 1
.end_amdhsa_kernel
""")
    open(path, "w").write(hazard.fix(g.a.text(), True))

def parse(cfg, args):
    for a in args:
        k, v = a.split("=")
        cur = getattr(cfg, k)
        if isinstance(cur, bool): v = v in ("1", "True", "true")
        elif isinstance(cur, int): v = int(v)
        elif k in ("nt", "wnt"): v = " " + v if v else ""
        setattr(cfg, k, v)
    return cfg

if __name__ == "__main__":
    gen(parse(Cfg(), sys.argv[2:]), sys.argv[1])
```

```python
import sys, math, struct
from asmlib import A
import hazard

KNAME = "gated_mix__sliding_block_cached__dense_activation_silu__decode_kernel"

class Cfg:
    wk = 24
    wv = 24
    ww = 24
    qstart = 4
    hstart = 20
    stamps = False
    spin_lds = 1 << 20
    spin_glb = 1 << 14
    nt = " nt"
    rotmul = 1
    rothkv = 0
    wrot = 1
    sleep1 = 0
    sleeph = 4
    sleep2 = 1
    sleep3 = 1
    na1 = 4
    na2 = 8
    w2first = True
    dbgst = False
    pretouch = False
    wdelay = False
    order = 'kvw'
    earlyld = False
    earlyn = 12
    qk = 3
    npoll3 = 1
    pre3 = 0
    wgate = -1
    align4k = True
    contig = 0
    lflag = 1
    lfmax = 10
    wnt = ' nt'
    buddy = 0
    mask2 = False
    mask3 = False
    dirty = 0
    opre = False
    outtouch = 0
    aflag = ''
    outflag = ''
    strided = False
    oplay = 2
    vk = 12
    wm = 19
    streamonly = False
    stag3 = 2
    tlb = False
    pollfirst = True

WS_QP, WS_HP, WS_OP, WS_AP = 0x10000, 0x50000, 0x70000, 0x100000
WS_LF = 0xB0000
D_QP, D_AP = 0x20000, 0x80000
WS_STAMP = 0x4000000

L_PROG, L_S2, L_HF, L_GATE, L_PUB, L_MX, L_LW, L_H = 0x000, 0x100, 0x110, 0x120, 0x130, 0x140, 0x180, 0x1C0
L_WF = 0x118
L_O = 0xE80
L_QF = 0x11C
L_Q, L_P, L_WO, L_W2, L_K, L_V = 0x280, 0x680, 0x1000, 0x5000, 0x7000, 0x17000
LDS_TOTAL = 0x27000
L_P3P = L_K
NW = 6

S_X, S_K, S_V, S_WQ, S_WO, S_W1, S_W2, S_GW, S_OUT, S_WS = 8, 12, 16, 20, 24, 28, 32, 36, 40, 44
def srd(b): return f"s[{b}:{b+3}]"
S_WAVE = 3
S_HKV, S_J = 48, 49
S_RB, S_CBK = 50, 51
S_T0 = 80
S_TAG = 84
S_PROG = 85
S_LIM = 86
S_FF = 87
W_P1Q, W_HELP, W_LOAD = 2, 4, 5
TAB = {'x': (S_X, 0, 2048), 'k': (S_K, 8, 1 << 27), 'v': (S_V, 16, 1 << 27), 'wq': (S_WQ, 24, 1 << 22), 'wo': (S_WO, 32, 1 << 22),
       'w1': (S_W1, 48, 512*1792*2), 'w2': (S_W2, 56, 512*1792*2), 'gw': (S_GW, 64, 1024), 'out': (S_OUT, 72, 2048), 'ws': (S_WS, 88, 1 << 29)}
VSEL = 136
VST = 144

def f32bits(x): return struct.unpack("<I", struct.pack("<f", x))[0]
DPP8 = ("quad_perm:[1,0,3,2]", "quad_perm:[2,3,0,1]", "row_half_mirror")

class G:
    def __init__(self, cfg):
        self.c = cfg; self.a = A(); self.lab = 0
    def __call__(self, s): self.a(s)
    def label(self, p="L"):
        self.lab += 1; return f"{p}_{self.lab}"
    def stamp(self, k):
        if self.c.stamps:
            self(f"""    s_memrealtime s[98:99]
    s_waitcnt lgkmcnt(0)
    v_writelane_b32 v{VST}, s98, {k}""")
    def note(self, k, sreg):
        if self.c.stamps:
            self(f"    v_writelane_b32 v{VST}, s{sreg}, {k}")
    def spin_tail(self, L):
        self(f"""    s_sub_u32 s{S_LIM}, s{S_LIM}, 1
    s_cmp_gt_i32 s{S_LIM}, 0
    s_cbranch_scc1 {L}""")
    def wait_prog(self, need, vtmp=10):
        L = self.label("Lp"); E = self.label("Lpe")
        self(f"""    s_cmp_ge_u32 s{S_PROG}, {need}
    s_cbranch_scc1 {E}
{L}:
    ds_read_b32 v{vtmp}, v1 offset:{L_PROG}
    s_waitcnt lgkmcnt(0)
    v_readfirstlane_b32 s{S_PROG}, v{vtmp}
    s_cmp_ge_u32 s{S_PROG}, {need}
    s_cbranch_scc1 {E}""")
        self.spin_tail(L)
        self(f"{E}:")
    def wait_nonzero4(self, dst, vaddr, off, tmp):
        L = self.label("Ls"); E = self.label("Lse")
        self(f"""{L}:
    ds_read_b128 v[{dst}:{dst+3}], v{vaddr} offset:{off}
    s_waitcnt lgkmcnt(0)
    v_min_u32 v{tmp}, v{dst}, v{dst+1}
    v_min3_u32 v{tmp}, v{tmp}, v{dst+2}, v{dst+3}
    v_cmp_eq_u32 vcc, 0, v{tmp}
    s_cbranch_vccz {E}""")
        self.spin_tail(L)
        self(f"{E}:")
    def wait_flag(self, off, n, vtmp, vzero):
        L = self.label("Lf"); E = self.label("Lfe")
        if n == 1:
            rd = f"ds_read_b32 v{vtmp}, v{vzero} offset:{off}"; comb = ""
        else:
            rd = f"ds_read_b64 v[{vtmp}:{vtmp+1}], v{vzero} offset:{off}"; comb = f"    v_min_u32 v{vtmp}, v{vtmp}, v{vtmp+1}\n"
        self(f"""{L}:
    {rd}
    s_waitcnt lgkmcnt(0)
{comb}    v_cmp_eq_u32 vcc, 0, v{vtmp}
    s_cbranch_vccz {E}""")
        self.spin_tail(L)
        self(f"{E}:")
    def poll(self, loads, granules, bad, mode="low", sleep=0, tmp=None, dual=None, nk=None, masked=False):
        L = self.label("Lg"); E = self.label("Lge")
        self(f"    s_mov_b32 s101, {self.c.spin_glb}")
        self(f"{L}:")
        if dual:
            bases, tmps, delta, na = dual
            self(f"""    s_sub_u32 s100, {self.c.spin_glb - na}, s101
    s_cmp_ge_i32 s100, 0
    s_cselect_b32 s100, s101, 0
    s_and_b32 s100, s100, 1
    s_mul_i32 s100, s100, {delta}""")
            for bs, ts in zip(bases, tmps):
                self(f"    s_add_u32 s{ts}, s{bs}, s100")
        for ld in loads: self("    " + ld)
        self("    s_waitcnt vmcnt(0)")
        if mode == "low":
            for i, r in enumerate(granules):
                for k in range(4):
                    self(f"    v_xor_b32 v{r+k}, s{S_T0+k}, v{r+k}")
            for i, r in enumerate(granules):
                if i == 0:
                    self(f"    v_or3_b32 v{bad}, v{r}, v{r+1}, v{r+2}")
                    self(f"    v_or_b32 v{bad}, v{bad}, v{r+3}")
                else:
                    self(f"    v_or3_b32 v{bad}, v{bad}, v{r}, v{r+1}")
                    self(f"    v_or3_b32 v{bad}, v{bad}, v{r+2}, v{r+3}")
            self(f"    v_and_b32 v{bad}, 0xff, v{bad}")
        else:
            for i, r in enumerate(granules):
                t = bad if i == 0 else tmp
                self(f"    v_bitop3_b32 v{t}, v{r}, v{r+1}, v{r+2} bitop3:0x96")
                self(f"    v_bitop3_b32 v{t}, v{t}, v{r+3}, s{S_TAG} bitop3:0x96")
                if i: self(f"    v_or_b32 v{bad}, v{bad}, v{t}")
        if masked:
            self(f"""    v_cmp_ne_u32 vcc, 0, v{bad}
    s_and_b64 exec, exec, vcc
    s_cbranch_scc0 {E}""")
        else:
            self(f"""    v_cmp_ne_u32 vcc, 0, v{bad}
    s_cbranch_vccz {E}""")
        if sleep: self(f"    s_sleep {sleep}")
        self(f"""    s_sub_u32 s101, s101, 1
    s_cmp_gt_i32 s101, 0
    s_cbranch_scc1 {L}
{E}:""")
        if masked: self("    s_mov_b64 exec, -1")
        if nk is not None and self.c.stamps:
            self(f"    s_sub_u32 s100, {self.c.spin_glb}, s101")
            self.note(nk, 100)

def srd_load(g, names):
    for n in names:
        b, off, sz = TAB[n]
        g(f"    s_load_dwordx2 s[{b}:{b+1}], s[0:1], {off}")
def srd_const(g, names):
    for n in names:
        b, off, sz = TAB[n]
        g(f"    s_mov_b32 s{b+2}, {hex(sz)}")
        g(f"    s_mov_b32 s{b+3}, 0x20000")
def lane_regs(g):
    g("""    v_and_b32 v2, 15, v0                  ; v2 = l&15
    v_lshrrev_b32 v3, 4, v0               ; v3 = l>>4""")
def common_rest(g, cfg):
    g(f"""    v_lshlrev_b32 v1, 2, v0               ; v1 = lane*4
    s_lshr_b32 s{S_RB}, s{S_J}, 2
    s_lshl_b32 s{S_CBK}, s{S_HKV}, 3
    s_add_u32 s{S_RB}, s{S_RB}, s{S_CBK}
    s_and_b32 s{S_CBK}, s{S_J}, 3
    s_mov_b32 s{S_PROG}, 0
    s_mov_b32 s{S_LIM}, {cfg.spin_lds}
    s_mov_b32 s{S_FF}, 0xff""")
    if cfg.stamps: g(f"    v_mov_b32 v{VST}, 0")

def selectors(g):
    g(f"""    v_and_b32 v4, 1, v0                   ; e'&1
    v_bfe_u32 v5, v0, 1, 2                ; e'>>1
    v_mov_b32 v6, 0x0c0c0100
    v_mov_b32 v8, 0x01000c0c
    v_cmp_eq_u32 vcc, 1, v4
    v_cndmask_b32 v6, v6, v8, vcc
    v_mov_b32 v8, 0x0c0c0302
    v_mov_b32 v10, 0x03020c0c
    v_cndmask_b32 v8, v8, v10, vcc
    v_mov_b32 v10, 0x0c0c0c0c""")
    for r in range(4):
        g(f"""    v_cmp_eq_u32 vcc, {r}, v5
    v_cndmask_b32 v{VSEL+2*r}, v10, v6, vcc
    v_cndmask_b32 v{VSEL+1+2*r}, v10, v8, vcc""")

def tags(g):
    g(f"""    s_waitcnt lgkmcnt(0)
    s_add_u32 s{S_TAG}, s{S_TAG}, 0x01010101
    s_and_b32 s{S_T0}, s{S_TAG}, 0xff
    s_bfe_u32 s{S_T0+1}, s{S_TAG}, 0x80008
    s_bfe_u32 s{S_T0+2}, s{S_TAG}, 0x80010
    s_lshr_b32 s{S_T0+3}, s{S_TAG}, 24
    v_mov_b32 v16, s{S_T0}
    v_mov_b32 v17, s{S_T0+1}
    v_mov_b32 v18, s{S_T0+2}
    v_mov_b32 v19, s{S_T0+3}""")

def proj(g, n, x0, x1, nx):
    for r in range(128, 136): g(f"    v_mov_b32 v{r}, 0")
    g(f"    s_waitcnt vmcnt({n})")
    g.stamp(1)
    def build(t):
        base = 48 + (t & 1)*8
        for b, xb in ((0, x0), (1, x1)):
            for r in range(4):
                g(f"    v_perm_b32 v{base+4*b+r}, v{xb+(t>>1)}, v{xb+(t>>1)}, v{VSEL+2*r+(t&1)}")
    build(0)
    for t in range(n):
        if t + 1 < n: build(t + 1)
        base = 48 + (t & 1)*8
        g(f"    s_waitcnt vmcnt({n-1-t})")
        for b in range(2):
            g(f"    v_mfma_f32_16x16x32_bf16 v[{128+4*b}:{131+4*b}], v[{base+4*b}:{base+4*b+3}], v[{64+4*t}:{67+4*t}], v[{128+4*b}:{131+4*b}]")
    for k in range(4):
        g(f"    v_permlane32_swap_b32 v{128+k}, v{132+k}")
    for k in range(4):
        g(f"    v_add_f32_dpp v{36+k}, v{132+k}, v{128+k} row_ror:8 row_mask:0xf bank_mask:0xf")
    for k in range(4):
        g(f"    v_bfi_b32 v{36+k}, s{S_FF}, v{16+k}, v{36+k}")
def pub_addr(g):
    g("""    v_and_b32 v5, 7, v0
    v_lshl_add_u32 v4, v5, 5, v4          ; + cg*32
    v_bfe_u32 v5, v0, 4, 1
    v_lshl_add_u32 v4, v5, 4, v4          ; + half*16
    s_mov_b32 s70, 0x00ff00ff
    s_mov_b32 s71, 0x00ff00ff""")

def emit_w(g, cfg):
    g.wait_flag(L_WF, 1, 58, 11)
    g(f"""    ds_read_b128 v[80:83], v23 offset:{L_W2}
    ds_read_b128 v[84:87], v23 offset:{L_W2 + 4096}""")
    for t in range(4):
        g(f"    ds_read_b128 v[{64+4*t}:{67+4*t}], v22 offset:{L_WO + t*256}")
    lab = g.label("Lnw")
    g(f"""    s_waitcnt lgkmcnt(5)
    v_mfma_f32_16x16x32_bf16 v[108:111], v[96:99], v[80:83], v[108:111]
    s_waitcnt lgkmcnt(4)
    s_cmp_eq_u32 s{S_WAVE}, 3
    s_cbranch_scc1 {lab}
    v_mfma_f32_16x16x32_bf16 v[108:111], v[100:103], v[84:87], v[108:111]
{lab}:
    s_waitcnt lgkmcnt(0)""")

def stamp_out(g):
    g(f"""    s_waitcnt vmcnt(0) lgkmcnt(0)
    v_writelane_b32 v{VST}, s96, 0
    s_mul_i32 s72, s2, {NW}
    s_add_u32 s72, s72, s{S_WAVE}
    s_lshl_b32 s72, s72, 6
    s_add_u32 s72, s72, {WS_STAMP}
    s_mov_b32 exec_lo, 0xffff
    s_mov_b32 exec_hi, 0
    buffer_store_dword v{VST}, v1, {srd(S_WS)}, s72 offen
    s_waitcnt vmcnt(0)""")

def gen(cfg, path):
    g = G(cfg)
    NT = cfg.nt
    g(f"""; @launch grid=(256,1,1) block=({NW*64},1,1) lds={LDS_TOTAL}
;
; gated_mix(sliding-window GQA decode attention, SiLU FFN) - one fused launch, 256 workgroups (one per CU), 6 waves each.
;   workgroup c: hkv = c&7, j = c>>3 (b = j>>4, key split s = j&15)  -> 256 keys of K/V for 4 query heads
;   wave 5  loader : streams K, V (64 KiB each) and this workgroup's 64x128 wo / 28x128 w2 block into LDS by LDS-DMA,
;                    bounded number of loads in flight, progress word in LDS
;   waves 0,1 gather q (sum of 4 partials); waves 0-3: QK^T (MFMA), softmax with the true max over the 256 keys,
;            online-softmax combine, output projection (wo and w2 blocks), gate mix, publish partial outputs,
;   hand-offs: 16-byte granules carrying a per-launch tag (epoch word ws[0] + 0x01010101) or checksum; every granule is
;   validated on arrival.  Same-XCD consumers read a plain (L2) copy, a write-through copy is the placement-independent
.amdgcn_target "amdgcn-amd-amdhsa--gfx950"
.text
{".p2align 12" + chr(10) + ".fill 832, 4, 0xbf800000" if cfg.align4k else ""}
.globl {KNAME}
.p2align 8
.type {KNAME},@function
{KNAME}:
    s_cmp_ge_u32 s2, 256
    s_cbranch_scc1 L_end""")
    if cfg.stamps:
        g(f"    s_memrealtime s[96:97]")
    if cfg.dbgst:
        g(f"    s_memrealtime s[94:95]")
        g(f"    s_load_dwordx2 s[88:89], s[0:1], 80")
        g(f"    s_mov_b32 s90, 256")
        g(f"    s_mov_b32 s91, 0x20000")
    srd_load(g, ["k", "wq", "x"])
    g(f"""    v_lshrrev_b32 v1, 6, v0
    s_and_b32 s{S_HKV}, s2, 7
    s_lshr_b32 s{S_J}, s2, 3
    v_readfirstlane_b32 s{S_WAVE}, v1
    v_and_b32 v0, 63, v0                  ; v0 = lane
    s_cmp_eq_u32 s{S_WAVE}, {W_P1Q}
    s_cbranch_scc1 L_p1q
    s_cmp_eq_u32 s{S_WAVE}, {W_LOAD}
    s_cbranch_scc0 L_others""")
    main = g.a
    sec = {k: A() for k in ("others", "p1q", "compute", "helper", "ld_early", "ld_main")}
    g.a = sec["others"]
    g(f"""L_others:
    s_cmp_eq_u32 s{S_WAVE}, {W_HELP}
    s_cbranch_scc1 L_helper""")
    srd_load(g, ["ws", "out"]); srd_const(g, ["ws", "out"])
    lane_regs(g); common_rest(g, cfg)
    g(f"""    v_lshlrev_b32 v11, 4, v0              ; l*16
    s_waitcnt lgkmcnt(0)
    s_load_dword s{S_TAG}, s[{S_WS}:{S_WS+1}], 0x0
    s_barrier""")
    selectors(g); tags(g)
    g(f"""    s_cmp_eq_u32 s{S_WAVE}, 3
    s_cbranch_scc1 L_qwait""")
    if cfg.streamonly: g("    s_branch L_qwait")
    g(f"""    s_lshr_b32 s72, s{S_J}, 4              ; b
    s_lshl_b32 s73, s72, 14               ; b*4096*4
    s_lshl_b32 s74, s{S_HKV}, 11          ; hkv*512*4
    s_add_u32 s73, s73, s74
    s_and_b32 s74, s{S_WAVE}, 1
    s_lshl_b32 s74, s74, 10
    s_add_u32 s73, s73, s74
    s_add_u32 s73, s73, {WS_QP}
    s_add_u32 s74, s73, {1*32768}
    s_add_u32 s75, s73, {2*32768}
    s_add_u32 s76, s73, {3*32768}""")
    if cfg.qk >= 0:
        g("    v_mov_b32 v9, 0")
        g.wait_flag(L_QF, 1, 10, 9)
        g(f"""    ds_read_b32 v10, v1 offset:{L_PROG}
    s_waitcnt lgkmcnt(0)
    v_readfirstlane_b32 s72, v10
    s_add_u32 s72, s72, {cfg.qk}
    s_min_u32 s72, s72, 16""")
        g.wait_prog("s72")
    else:
        g.wait_prog(cfg.qstart)
    g.stamp(15)
    g.poll([f"buffer_load_dwordx4 v[{32+4*k}:{35+4*k}], v11, {srd(S_WS)}, s{60+k} offen sc1" for k in range(4)], [32, 36, 40, 44], 48, sleep=cfg.sleep1,
           dual=([73, 74, 75, 76], [60, 61, 62, 63], D_QP, cfg.na1), nk=10)
    for k in range(4):
        g(f"""    v_add_f32 v{32+k}, v{32+k}, v{36+k}
    v_add_f32 v{40+k}, v{40+k}, v{44+k}""")
    for k in range(4):
        g(f"    v_add_f32 v{32+k}, v{32+k}, v{40+k}")
    g(f"""    v_cvt_pk_bf16_f32 v32, v32, v33
    v_cvt_pk_bf16_f32 v33, v34, v35
    v_lshlrev_b32 v4, 3, v0
    s_and_b32 s72, s{S_WAVE}, 1
    s_lshl_b32 s73, s72, 9
    v_add_u32 v4, s73, v4
    ds_write_b64 v4, v[32:33] offset:{L_Q}
    v_mov_b32 v5, 1
    s_lshl_b32 s72, s72, 2
    v_mov_b32 v4, s72
    ds_write_b32 v4, v5 offset:{L_S2}
    s_branch L_qwait""")
    g.a = sec["p1q"]
    g("L_p1q:")
    srd_const(g, ["wq", "x"])
    g(f"""    s_and_b32 s52, s{S_J}, 7               ; cb
    s_lshr_b32 s53, s{S_J}, 3              ; ks
    s_lshl_b32 s56, s53, 20               ; 128*ks*8192
    s_lshl_b32 s57, s{S_HKV}, 10
    s_lshl_b32 s58, s52, 7
    s_add_u32 s57, s57, s58
    s_add_u32 s56, s56, s57
    v_lshrrev_b32 v5, 3, v0               ; r8
    v_and_b32 v6, 7, v0
    v_lshlrev_b32 v6, 4, v6
    v_lshlrev_b32 v7, 17, v5
    v_add_u32 v7, v7, v6
    v_lshlrev_b32 v9, 5, v5               ; x voffset = 16*r8*2
    s_lshl_b32 s64, s53, 8                ; 128*ks*2
    s_movk_i32 s65, 0x2000
""")
    if cfg.contig & 1:
        g(f"""    s_lshl_b32 s56, s2, 14
    v_lshlrev_b32 v7, 4, v0
    s_movk_i32 s65, 0x400""")
    g(f"""    s_waitcnt lgkmcnt(0)
    buffer_load_dwordx4 v[20:23], v9, {srd(S_X)}, s64 offen
    buffer_load_dwordx4 v[24:27], v9, {srd(S_X)}, s64 offen offset:16
    buffer_load_dwordx4 v[28:31], v9, {srd(S_X)}, s64 offen offset:1024
    buffer_load_dwordx4 v[32:35], v9, {srd(S_X)}, s64 offen offset:1040""")
    for t in range(16):
        g(f"    buffer_load_dwordx4 v[{64+4*t}:{67+4*t}], v7, {srd(S_WQ)}, s56 offen{NT}")
        if t < 15: g("    s_add_u32 s56, s56, s65")
    srd_load(g, ["ws", "out"])
    g("    s_waitcnt lgkmcnt(0)")
    g(f"    s_load_dword s{S_TAG}, s[{S_WS}:{S_WS+1}], 0x0")
    srd_const(g, ["ws", "out"]); lane_regs(g); common_rest(g, cfg)
    g("    s_barrier")
    selectors(g); tags(g)
    g(f"""    s_lshl_b32 s72, s53, 15
    s_lshl_b32 s73, s57, 1
    s_add_u32 s72, s72, s73
    s_add_u32 s72, s72, {WS_QP}
    s_add_u32 s73, s72, {D_QP}
    v_lshrrev_b32 v4, 5, v0
    v_lshlrev_b32 v4, 14, v4              ; b*4096*4""")
    pub_addr(g)
    proj(g, 16, 20, 28, 4)
    g(f"""    s_mov_b64 exec, s[70:71]
    buffer_store_dwordx4 v[36:39], v4, {srd(S_WS)}, s72 offen {cfg.aflag}
    buffer_store_dwordx4 v[36:39], v4, {srd(S_WS)}, s73 offen sc1
    s_mov_b64 exec, -1
    v_mov_b32 v5, 1
    v_mov_b32 v4, 0
    ds_write_b32 v4, v5 offset:{L_QF}""")
    g.stamp(2)
    g.a = sec["compute"]
    g("L_qwait:")
    if cfg.streamonly:
        g("    s_waitcnt vmcnt(0)\n    s_endpgm")
    g(f"""    ; K read addresses v20..23 : L_K + w*4096 + i*256 + ((4t ^ g ^ i))*16
    v_xor_b32 v9, v3, v2                  ; g ^ i
    v_lshlrev_b32 v10, 8, v2              ; i*256
    s_lshl_b32 s72, s{S_WAVE}, 12
    s_add_u32 s72, s72, {L_K}
    v_add_u32 v10, s72, v10""")
    for t in range(4):
        g(f"""    v_xor_b32 v4, {4*t}, v9
    v_lshl_add_u32 v{20+t}, v4, 4, v10""")
    g(f"""    ; Q frag address v8: head*256 + (4t+g)*16 ; v4 = head*16 (MX/LW), v5 = v4 + 4w
    v_and_b32 v8, 3, v0
    v_lshlrev_b32 v4, 4, v8
    v_lshlrev_b32 v8, 8, v8
    v_lshl_add_u32 v8, v3, 4, v8
    s_lshl_b32 s72, s{S_WAVE}, 2
    v_add_u32 v5, s72, v4
    v_mov_b32 v9, 0""")
    for r in range(48, 64): g(f"    v_mov_b32 v{r}, 0")
    for T in range(3):
        g(f"    s_add_u32 s72, s{S_WAVE}, {4*T+1}")
        g.wait_prog("s72", 10)
        for t in range(4):
            r = 64 + T*16 + 4*t
            g(f"    ds_read_b128 v[{r}:{r+3}], v{20+t} offset:{T*16384}")
    g.wait_flag(L_S2, 2, 10, 9)
    g.stamp(3)
    for t in range(4):
        g(f"    ds_read_b128 v[{32+4*t}:{35+4*t}], v8 offset:{L_Q + t*64}")
    g(f"    s_add_u32 s72, s{S_WAVE}, 13")
    g.wait_prog("s72", 10)
    for t in range(4):
        r = 64 + 3*16 + 4*t
        g(f"    ds_read_b128 v[{r}:{r+3}], v{20+t} offset:{3*16384}")
    g("    s_waitcnt lgkmcnt(4)")
    for t in range(4):
        for T in range(3):
            r = 64 + T*16 + 4*t
            g(f"    v_mfma_f32_16x16x32_bf16 v[{48+4*T}:{51+4*T}], v[{r}:{r+3}], v[{32+4*t}:{35+4*t}], v[{48+4*T}:{51+4*T}]")
    g("    s_waitcnt lgkmcnt(0)")
    for t in range(4):
        r = 64 + 3*16 + 4*t
        g(f"    v_mfma_f32_16x16x32_bf16 v[60:63], v[{r}:{r+3}], v[{32+4*t}:{35+4*t}], v[60:63]")
    c = (128 ** -0.5) * math.log2(math.e)
    g(f"""    s_mov_b32 s61, {hex(f32bits(c))}
    v_max3_f32 v24, v48, v49, v50
    v_max3_f32 v25, v51, v52, v53
    v_max3_f32 v26, v54, v55, v56
    v_max3_f32 v27, v57, v58, v59
    v_max3_f32 v24, v24, v25, v26
    v_max3_f32 v28, v60, v61, v62
    v_max3_f32 v24, v24, v27, v63
    v_max_f32 v24, v24, v28
    v_mov_b32 v25, v24
    v_permlane16_swap_b32 v24, v25
    v_max_f32 v24, v24, v25
    v_mov_b32 v25, v24
    v_permlane32_swap_b32 v24, v25
    v_max_f32 v24, v24, v25
    v_or_b32 v24, 1, v24
    ds_write_b32 v5, v24 offset:{L_MX}""")
    g.wait_nonzero4(24, 4, L_MX, 28)
    g(f"""    v_max3_f32 v24, v24, v25, v26
    v_max_f32 v24, v24, v27
    v_mul_f32 v24, s61, v24""")
    for r in range(48, 64):
        g(f"    v_fma_f32 v{r}, v{r}, s61, -v24")
    for r in range(48, 64):
        g(f"    v_exp_f32 v{r}, v{r}")
    for T in range(4):
        g(f"    v_cvt_pk_bf16_f32 v{64+2*T}, v{48+4*T}, v{49+4*T}")
        g(f"    v_cvt_pk_bf16_f32 v{65+2*T}, v{50+4*T}, v{51+4*T}")
    g(f"""    v_and_b32 v6, 3, v0
    v_lshlrev_b32 v6, 6, v6
    v_lshl_add_u32 v6, v3, 4, v6
    s_lshr_b32 s72, s{S_WAVE}, 1
    s_lshl_b32 s72, s72, 8
    s_and_b32 s73, s{S_WAVE}, 1
    s_lshl_b32 s73, s73, 3
    s_add_u32 s72, s72, s73
    v_add_u32 v7, s72, v6""")
    for T in range(4):
        g(f"    ds_write_b64 v7, v[{64+2*T}:{65+2*T}] offset:{L_P + T*512}")
    g("""    v_add_f32 v25, v48, v49
    v_add_f32 v26, v50, v51
    v_add_f32 v27, v52, v53
    v_add_f32 v28, v54, v55
    v_add_f32 v29, v56, v57
    v_add_f32 v30, v58, v59
    v_add_f32 v31, v60, v61
    v_add_f32 v72, v62, v63
    v_add_f32 v25, v25, v26
    v_add_f32 v27, v27, v28
    v_add_f32 v29, v29, v30
    v_add_f32 v31, v31, v72
    v_add_f32 v25, v25, v27
    v_add_f32 v29, v29, v31
    v_add_f32 v25, v25, v29
    v_mov_b32 v26, v25
    v_permlane16_swap_b32 v25, v26
    v_add_f32 v25, v25, v26
    v_mov_b32 v26, v25
    v_permlane32_swap_b32 v25, v26
    v_add_f32 v25, v25, v26               ; l_w
    v_or_b32 v25, 1, v25""")
    g(f"    ds_write_b32 v5, v25 offset:{L_LW}")
    g(f"""    v_bfe_u32 v8, v0, 2, 2                ; r
    v_and_b32 v9, 3, v0                   ; c
    v_lshl_add_u32 v10, v3, 2, v8         ; 4g + r
    v_and_b32 v11, 7, v10                 ; k7
    v_lshlrev_b32 v10, 8, v10
    v_lshl_add_u32 v10, v9, 3, v10
    v_add_u32 v10, {L_V}, v10
    s_lshl_b32 s72, s{S_WAVE}, 1          ; dt0 = 2w
    v_xor_b32 v8, s72, v11
    v_lshl_add_u32 v20, v8, 5, v10
    s_add_u32 s72, s72, 1
    v_xor_b32 v8, s72, v11
    v_lshl_add_u32 v21, v8, 5, v10
    s_lshl_b32 s58, s{S_HKV}, 5
    s_add_u32 s58, s58, s{S_J}             ; producer
    s_lshl_b32 s58, s58, 11
    s_lshl_b32 s59, s{S_WAVE}, 7          ; 8w*16
    s_add_u32 s58, s58, s59
    s_add_u32 s58, s58, {WS_AP}
    s_add_u32 s59, s58, {D_AP}
    v_and_b32 v22, 3, v0
    v_lshlrev_b32 v22, 9, v22             ; head*512
    v_lshl_add_u32 v22, v3, 4, v22        ; + g'*16
    v_bfe_u32 v9, v0, 2, 1                ; dsel
    v_lshl_add_u32 v22, v9, 6, v22
    s_mov_b32 s54, 0x00f000f0
    s_mov_b32 s55, 0x00f000f0
    s_mov_b32 s56, 0x00ff00ff
    s_mov_b32 s57, 0x00ff00ff""")
    g.wait_nonzero4(28, 4, L_LW, 27)
    for u in range(8):
        g(f"    ds_read_b128 v[{32+4*u}:{35+4*u}], v6 offset:{L_P + u*256}")
    g(f"""    v_add_f32 v28, v28, v29
    v_add_f32 v30, v30, v31
    v_add_f32 v25, v28, v30               ; L
    v_rcp_f32 v26, v25                    ; v26 = 1/L
    v_log_f32 v27, v25
    v_add_f32 v27, v27, v24               ; v27 = lw
    v_xor_b32 v28, s{S_TAG}, v27""")
    for r in range(64, 72): g(f"    v_mov_b32 v{r}, 0")
    if cfg.opre:
        g(f"""    v_and_b32 v13, 1, v0
    v_lshlrev_b32 v13, 9, v13             ; b*512
    v_bfe_u32 v14, v0, 1, 1               ; ct
    v_lshl_add_u32 v13, v14, 6, v13
    v_lshl_add_u32 v13, v3, 4, v13        ; + g'*16
    s_lshl_b32 s76, s{S_CBK}, 6
    s_add_u32 s76, s76, s{S_RB}
    s_lshl_b32 s76, s76, 10
    s_lshl_b32 s77, s{S_WAVE}, 7
    s_add_u32 s76, s76, s77
    s_add_u32 s76, s76, {WS_OP}
    v_xor_b32 v72, 1, v16
    v_mov_b32 v73, v72
    v_mov_b32 v74, v72
    v_mov_b32 v75, v72
    s_mov_b32 s74, 0x000f000f
    s_mov_b32 s75, 0x000f000f
    s_mov_b64 exec, s[74:75]
    buffer_store_dwordx4 v[72:75], v13, {srd(S_WS)}, s76 offen sc1
    s_mov_b64 exec, -1""")
    if cfg.pretouch:
        g(f"""    v_mov_b32 v72, 0
    v_mov_b32 v73, 0
    v_mov_b32 v74, 0
    v_xor_b32 v75, 1, v72
    v_xor_b32 v75, s{S_TAG}, v75
    s_mov_b64 exec, s[56:57]
    buffer_store_dwordx4 v[72:75], v22, {srd(S_WS)}, s58 offen {cfg.aflag}
    s_mov_b64 exec, -1""")
    g.stamp(4)
    def pv_mfma(u):
        rb_ = 72 + (u & 1)*8
        for d in range(2):
            r = rb_ + d*4
            g(f"    v_mfma_f32_16x16x32_bf16 v[{64+4*d}:{67+4*d}], v[{r}:{r+3}], v[{32+4*u}:{35+4*u}], v[{64+4*d}:{67+4*d}]")
    for u in range(8):
        g.wait_prog(16 + 2*u + 2, 10)
        rb_ = 72 + (u & 1)*8
        for d in range(2):
            for h in range(2):
                r = rb_ + d*4 + 2*h
                g(f"    ds_read_b64_tr_b16 v[{r}:{r+1}], v{20+d} offset:{(2*u+h)*4096}")
        if u > 0:
            g("    s_waitcnt lgkmcnt(4)")
            pv_mfma(u - 1)
    g("    s_waitcnt lgkmcnt(0)")
    pv_mfma(7)
    g.stamp(5)
    g(f"""    v_cndmask_b32 v64, v64, v68, s[54:55]
    v_cndmask_b32 v65, v65, v69, s[54:55]
    v_cndmask_b32 v66, v66, v70, s[54:55]
    v_cndmask_b32 v67, v67, v71, s[54:55]
    v_mul_f32 v64, v64, v26
    v_mul_f32 v65, v65, v26
    v_mul_f32 v66, v66, v26
    v_mul_f32 v67, v67, v26
    v_cvt_pk_bf16_f32 v64, v64, v65
    v_cvt_pk_bf16_f32 v65, v66, v67
    v_mov_b32 v66, v27
    v_bitop3_b32 v67, v64, v65, v28 bitop3:0x96
    s_mov_b64 exec, s[56:57]
    buffer_store_dwordx4 v[64:67], v22, {srd(S_WS)}, s58 offen {cfg.aflag}
    buffer_store_dwordx4 v[64:67], v22, {srd(S_WS)}, s59 offen sc1
    s_mov_b64 exec, -1""")
    if cfg.wgate >= 0:
        g(f"""    v_mov_b32 v9, 1
    s_lshl_b32 s72, s{S_WAVE}, 2
    v_mov_b32 v8, s72
    ds_write_b32 v8, v9 offset:{L_PUB}""")
    g(f"""    ; lane (g, b'=(l>>3)&1, s8=l&7): granule index = 16*((j>>2)&1) + 4w + g  within head
    s_lshr_b32 s52, s{S_J}, 3              ; head4
    s_bfe_u32 s53, s{S_J}, 0x10002         ; (j>>2)&1
    v_and_b32 v8, 7, v0
    v_bfe_u32 v9, v0, 3, 1
    v_lshl_add_u32 v8, v9, 4, v8          ; b'*16 + s8
    v_lshlrev_b32 v8, 11, v8              ; *2048
    v_lshl_add_u32 v8, v3, 4, v8          ; + g*16
    s_lshl_b32 s72, s{S_HKV}, 16          ; hkv*32*2048
    s_lshl_b32 s73, s52, 9                ; head4*512
    s_add_u32 s72, s72, s73
    s_lshl_b32 s73, s53, 8
    s_add_u32 s72, s72, s73
    s_lshl_b32 s73, s{S_WAVE}, 6
    s_add_u32 s72, s72, s73
    s_add_u32 s72, s72, {WS_AP}
    s_add_u32 s73, s72, {8*2048}
    v_add_u32 v20, {(L_WO - L_V) & 0xffffffff:#x}, v20
    v_add_u32 v21, {(L_WO - L_V) & 0xffffffff:#x}, v21
    v_lshlrev_b32 v10, 5, v3
    v_lshl_add_u32 v10, v9, 4, v10
    s_lshr_b32 s74, s{S_WAVE}, 1
    s_lshl_b32 s74, s74, 7
    s_and_b32 s75, s{S_WAVE}, 1
    s_lshl_b32 s75, s75, 3
    s_add_u32 s74, s74, s75
    v_add_u32 v10, s74, v10
    v_and_b32 v11, 1, v0
    v_lshlrev_b32 v12, 2, v11
    v_lshlrev_b32 v11, 4, v11
    v_lshl_add_u32 v11, v3, 5, v11        ; v11
""")
    if cfg.oplay == 2:
        g(f"""    ; OP address: (cbk*64+rb)*1024 + (b*32 + 8w + 4ct + g')*16 ; lanes j<4: b=j&1, ct=(j>>1)&1
    v_and_b32 v13, 1, v0
    v_lshlrev_b32 v13, 9, v13             ; b*512
    v_bfe_u32 v14, v0, 1, 1               ; ct
    v_lshl_add_u32 v13, v14, 6, v13
    v_lshl_add_u32 v13, v3, 4, v13        ; + g'*16
    s_lshl_b32 s76, s{S_CBK}, 6
    s_add_u32 s76, s76, s{S_RB}
    s_lshl_b32 s76, s76, 10
    s_lshl_b32 s77, s{S_WAVE}, 7
    s_add_u32 s76, s76, s77
    s_add_u32 s76, s76, {WS_OP}""")
    else:
        g(f"""    ; OP address: Q*1024 + rb*16, Q = b*128 + cbk*32 + 8w + 4ct + g'
    v_and_b32 v13, 1, v0
    v_lshlrev_b32 v13, 17, v13            ; b*128*1024
    v_bfe_u32 v14, v0, 1, 1               ; ct
    v_lshl_add_u32 v13, v14, 12, v13      ; 4ct*1024
    v_lshl_add_u32 v13, v3, 10, v13       ; g'*1024
    s_lshl_b32 s76, s{S_CBK}, 15          ; cbk*32*1024
    s_lshl_b32 s77, s{S_WAVE}, 13         ; 8w*1024
    s_add_u32 s76, s76, s77
    s_lshl_b32 s77, s{S_RB}, 4
    s_add_u32 s76, s76, s77
    s_add_u32 s76, s76, {WS_OP}""")
    g(f"""    s_mov_b32 s54, 0xcccccccc
    s_mov_b32 s55, 0xcccccccc
    s_mov_b32 s56, 0x000f000f             ; lanes j<4
    s_mov_b32 s57, 0x000f000f
    s_mov_b32 s78, 0x01010101             ; lanes s8==0
    s_mov_b32 s79, 0x01010101""")
    for r in range(96, 112): g(f"    v_mov_b32 v{r}, 0")
    g.poll([f"buffer_load_dwordx4 v[32:35], v8, {srd(S_WS)}, s60 offen sc1",
            f"buffer_load_dwordx4 v[36:39], v8, {srd(S_WS)}, s61 offen sc1"], [32, 36], 48, mode="sum", tmp=49, sleep=cfg.sleep2,
           dual=([72, 73], [60, 61], D_AP, cfg.na2), nk=12, masked=cfg.mask2)
    g.stamp(6)
    g("    v_max_f32 v48, v34, v38")
    g("""    v_lshlrev_b32 v50, 16, v32
    v_and_b32 v51, 0xffff0000, v32""")
    g(f"    v_max_f32_dpp v48, v48, v48 {DPP8[0]} row_mask:0xf bank_mask:0xf")
    g("""    v_lshlrev_b32 v52, 16, v33
    v_and_b32 v53, 0xffff0000, v33""")
    g(f"    v_max_f32_dpp v48, v48, v48 {DPP8[1]} row_mask:0xf bank_mask:0xf")
    g("""    v_lshlrev_b32 v54, 16, v36
    v_and_b32 v55, 0xffff0000, v36""")
    g(f"    v_max_f32_dpp v48, v48, v48 {DPP8[2]} row_mask:0xf bank_mask:0xf")
    g("""    v_lshlrev_b32 v56, 16, v37
    v_and_b32 v57, 0xffff0000, v37
    v_sub_f32 v40, v34, v48
    v_sub_f32 v44, v38, v48
    v_exp_f32 v40, v40
    v_exp_f32 v44, v44
    v_mul_f32 v32, v40, v50
    v_mul_f32 v33, v40, v51
    v_mul_f32 v34, v40, v52
    v_mul_f32 v35, v40, v53
    v_add_f32 v49, v40, v44
    v_fmac_f32 v32, v44, v54
    v_fmac_f32 v33, v44, v55
    v_fmac_f32 v34, v44, v56
    v_fmac_f32 v35, v44, v57""")
    for dp in DPP8:
        for r in (49, 32, 33, 34, 35):
            g(f"    v_add_f32_dpp v{r}, v{r}, v{r} {dp} row_mask:0xf bank_mask:0xf")
    g(f"""    v_rcp_f32 v49, v49
    v_mul_f32 v32, v32, v49
    v_mul_f32 v33, v33, v49
    v_mul_f32 v34, v34, v49
    v_mul_f32 v35, v35, v49
    v_cvt_pk_bf16_f32 v32, v32, v33
    v_cvt_pk_bf16_f32 v33, v34, v35
    s_mov_b64 exec, s[78:79]
    ds_write_b64 v10, v[32:33] offset:{L_O}
    s_mov_b64 exec, -1
    s_waitcnt lgkmcnt(0)
    s_barrier
    ds_read_b128 v[32:35], v11 offset:{L_O}
    ds_read_b128 v[36:39], v11 offset:{L_O + 128}""")
    for ks in range(2):
        for d in range(2):
            for h in range(2):
                r = 64 + (ks*2 + d)*4 + 2*h
                g(f"    ds_read_b64_tr_b16 v[{r}:{r+1}], v{20+d} offset:{(32*ks + 16*h)*256}")
    g(f"    ds_read_b128 v[40:43], v11 offset:{L_H}")
    for d in range(2):
        for h in range(2):
            r = 80 + d*4 + 2*h
            g(f"    ds_read_b64_tr_b16 v[{r}:{r+1}], v{20+d} offset:{L_W2 - L_WO + 16*h*256}")
    g(f"""    s_waitcnt lgkmcnt(11)
    v_mfma_f32_16x16x32_bf16 v[96:99], v[64:67], v[32:35], v[96:99]
    ds_read_b32 v30, v12 offset:{L_GATE}
    s_waitcnt lgkmcnt(10)
    v_mfma_f32_16x16x32_bf16 v[100:103], v[68:71], v[32:35], v[100:103]
    s_waitcnt lgkmcnt(8)
    v_mfma_f32_16x16x32_bf16 v[96:99], v[72:75], v[36:39], v[96:99]
    s_waitcnt lgkmcnt(6)
    v_mfma_f32_16x16x32_bf16 v[100:103], v[76:79], v[36:39], v[100:103]
    s_waitcnt lgkmcnt(3)
    v_mfma_f32_16x16x32_bf16 v[104:107], v[80:83], v[40:43], v[104:107]
    s_waitcnt lgkmcnt(1)
    v_mfma_f32_16x16x32_bf16 v[108:111], v[84:87], v[40:43], v[108:111]
    s_waitcnt lgkmcnt(0)
    v_sub_f32 v31, 1.0, v30
    v_cndmask_b32 v96, v96, v100, s[54:55]
    v_cndmask_b32 v97, v97, v101, s[54:55]
    v_cndmask_b32 v98, v98, v102, s[54:55]
    v_cndmask_b32 v99, v99, v103, s[54:55]
    v_mul_f32 v96, v96, v30
    v_mul_f32 v97, v97, v30
    v_mul_f32 v98, v98, v30
    v_mul_f32 v99, v99, v30
    v_cndmask_b32 v104, v104, v108, s[54:55]
    v_cndmask_b32 v105, v105, v109, s[54:55]
    v_cndmask_b32 v106, v106, v110, s[54:55]
    v_cndmask_b32 v107, v107, v111, s[54:55]
    v_fmac_f32 v96, v104, v31
    v_fmac_f32 v97, v105, v31
    v_fmac_f32 v98, v106, v31
    v_fmac_f32 v99, v107, v31""")
    for k in range(4):
        g(f"    v_bfi_b32 v{96+k}, s{S_FF}, v{16+k}, v{96+k}")
    g(f"""    s_mov_b64 exec, s[56:57]
    buffer_store_dwordx4 v[96:99], v13, {srd(S_WS)}, s76 offen sc1
    s_mov_b64 exec, -1""")
    g.stamp(7)
    g(f"""    s_cmp_ge_u32 s{S_WAVE}, {cfg.npoll3}
    s_cbranch_scc1 L_stampout""")
    if cfg.npoll3 > 1:
        for w in range(1, cfg.npoll3):
            lab = g.label("Lstg")
            g(f"""    s_cmp_lt_u32 s{S_WAVE}, {w}
    s_cbranch_scc1 {lab}
    s_sleep {cfg.stag3}
{lab}:""")
    g(f"""    ; Q = G*8 + (j&7), G = (j>>3)*8 + hkv   (G = b*16 + cbk*4 + qh)
    s_lshr_b32 s66, s{S_J}, 3
    s_lshl_b32 s66, s66, 3
    s_add_u32 s66, s66, s{S_HKV}
    s_lshl_b32 s66, s66, 3
    s_and_b32 s67, s{S_J}, 7
    s_add_u32 s66, s66, s67
""")
    if cfg.oplay == 2:
        g(f"""    s_bfe_u32 s72, s66, 0x20005           ; cbk
    s_lshl_b32 s72, s72, 16
    s_lshr_b32 s73, s66, 7
    s_lshl_b32 s73, s73, 9
    s_add_u32 s72, s72, s73
    s_and_b32 s73, s66, 31
    s_lshl_b32 s73, s73, 4
    s_add_u32 s72, s72, s73
    s_add_u32 s72, s72, {WS_OP}
    v_lshlrev_b32 v6, 10, v0""")
    else:
        g(f"""    s_lshl_b32 s72, s66, 10
    s_add_u32 s72, s72, {WS_OP}
    v_lshlrev_b32 v6, 4, v0""")
    if cfg.outtouch == 2:
        g(f"""    v_mov_b32 v7, 0
    s_mov_b64 exec, 1
    buffer_load_dword v8, v7, {srd(S_OUT)}, 0 offen
    s_mov_b64 exec, -1""")
    if cfg.lflag:
        L = g.label("Llf"); E = g.label("Llfe")
        g(f"""    s_lshl_b32 s74, s{S_HKV}, 9
    s_add_u32 s74, s74, {WS_LF}
    s_lshl_b32 s75, s{S_J}, 4
    s_add_u32 s75, s75, s74
    v_mov_b32 v40, s{S_TAG}
    v_mov_b32 v41, 0
    v_and_b32 v42, 31, v0
    v_lshlrev_b32 v42, 4, v42
    s_mov_b64 exec, 1
    buffer_store_dword v40, v41, {srd(S_WS)}, s75 offen
    s_mov_b64 exec, -1
    s_mov_b32 s101, {cfg.lfmax}
{L}:
    buffer_load_dword v43, v42, {srd(S_WS)}, s74 offen sc1
    s_waitcnt vmcnt(0)
    v_cmp_ne_u32 vcc, s{S_TAG}, v43
    s_cbranch_vccz {E}
    s_sub_u32 s101, s101, 1
    s_cmp_gt_i32 s101, 0
    s_cbranch_scc1 {L}
{E}:""")
    if cfg.pre3: g(f"    s_sleep {cfg.pre3}")
    g.poll([f"buffer_load_dwordx4 v[32:35], v6, {srd(S_WS)}, s72 offen sc1"], [32], 48, sleep=cfg.sleep3, nk=13, masked=cfg.mask3)
    g.stamp(8)
    g(f"""    v_permlane32_swap_b32 v32, v34
    v_permlane32_swap_b32 v33, v35
    v_add_f32 v32, v32, v34
    v_add_f32 v33, v33, v35
    v_permlane16_swap_b32 v32, v33
    v_add_f32 v32, v32, v33""")
    for k in (8, 4, 2, 1):
        g(f"    v_add_f32_dpp v32, v32, v32 row_ror:{k} row_mask:0xf bank_mask:0xf")
    g(f"""    v_cvt_pk_bf16_f32 v32, v32, v32
    v_lshlrev_b32 v6, 1, v3               ; row*2
    s_lshl_b32 s72, s66, 3
    v_cmp_eq_u32 vcc, 0, v2
    s_and_saveexec_b64 s[70:71], vcc
    buffer_store_short v32, v6, {srd(S_OUT)}, s72 offen {cfg.outflag}
    s_cmp_eq_u32 s2, 0
    s_cbranch_scc0 L_noep
    s_mov_b64 exec, 1
    v_mov_b32 v7, s{S_TAG}
    v_mov_b32 v8, 0
    buffer_store_dword v7, v8, {srd(S_WS)}, 0 offen
L_noep:
    s_mov_b64 exec, s[70:71]""")
    if cfg.dbgst:
        g(f"""    s_cmp_lt_u32 s2, 8
    s_cbranch_scc0 L_nodbg
    s_memrealtime s[92:93]
    s_waitcnt lgkmcnt(0)
    v_mov_b32 v7, s94
    v_mov_b32 v8, s92
    s_lshl_b32 s72, s2, 2
    v_mov_b32 v9, 0
    s_mov_b64 exec, 1
    buffer_store_dword v7, v9, s[88:91], s72 offen
    buffer_store_dword v8, v9, s[88:91], s72 offen offset:32
    s_mov_b64 exec, -1
L_nodbg:""")
    g.stamp(9)
    g("L_stampout:")
    if cfg.stamps: stamp_out(g)
    g("    s_endpgm")
    g.a = sec["helper"]
    g("L_helper:")
    srd_load(g, ["gw", "w1", "ws"]); srd_const(g, ["x", "gw", "w1", "ws"])
    lane_regs(g); common_rest(g, cfg)
    g(f"""    s_mul_i32 s59, s2, 2341
    s_lshr_b32 s59, s59, 16               ; ks8 = c/28
    s_mul_i32 s60, s59, 28
    s_sub_u32 s60, s2, s60                ; fb
    s_lshl_b32 s61, s59, 6
    s_mul_i32 s62, s61, 3584
    s_lshl_b32 s63, s60, 7
    s_add_u32 s62, s62, s63               ; w1 soffset
    v_lshrrev_b32 v5, 3, v0               ; r8
    v_and_b32 v6, 7, v0
    v_lshlrev_b32 v6, 4, v6
    v_mul_u32_u24 v7, {8*3584}, v5
    v_add_u32 v7, v7, v6
    v_lshlrev_b32 v9, 4, v5               ; x voffset = 8*r8*2
    s_lshl_b32 s64, s61, 1
    v_lshlrev_b32 v11, 4, v0
""")
    if cfg.contig & 2:
        g(f"""    s_mul_i32 s62, s2, 7168
    v_lshlrev_b32 v7, 4, v0""")
    g(f"""
    s_waitcnt lgkmcnt(0)
    s_load_dword s{S_TAG}, s[{S_WS}:{S_WS+1}], 0x0
    s_barrier
    buffer_load_dwordx4 v[112:115], v11, {srd(S_X)}, 0 offen
    buffer_load_dwordx4 v[116:119], v11, {srd(S_X)}, 0 offen offset:1024
    buffer_load_dwordx4 v[120:123], v11, {srd(S_GW)}, 0 offen
    buffer_load_dwordx4 v[20:23], v9, {srd(S_X)}, s64 offen
    buffer_load_dwordx4 v[28:31], v9, {srd(S_X)}, s64 offen offset:1024""")
    for t in range(8):
        g(f"    buffer_load_dwordx4 v[{64+4*t}:{67+4*t}], v7, {srd(S_W1)}, s62 offen{NT}")
        if t < 7: g(f"    s_add_u32 s62, s62, {1024 if cfg.contig & 2 else 3584}")
    selectors(g); tags(g)
    g(f"""    s_mul_i32 s72, s59, {2*1792*4}
    s_lshl_b32 s73, s60, 8
    s_add_u32 s72, s72, s73
    s_add_u32 s72, s72, {WS_HP}
    v_lshrrev_b32 v4, 5, v0
    v_mul_u32_u24 v4, {1792*4}, v4        ; b*1792*4""")
    pub_addr(g)
    proj(g, 8, 20, 28, 2)
    g(f"""    s_cmp_ge_u32 s2, 224
    s_cbranch_scc1 L_nohpub
    s_mov_b64 exec, s[70:71]
    buffer_store_dwordx4 v[36:39], v4, {srd(S_WS)}, s72 offen sc1
    s_mov_b64 exec, -1
L_nohpub:""")
    g.stamp(2)
    for b in range(2):
        acc = 44 + b
        g(f"    v_mov_b32 v{acc}, 0")
        for r in range(4):
            xs = 112 + 4*b + r; gs = 120 + r
            g(f"""    v_lshlrev_b32 v46, 16, v{xs}
    v_lshlrev_b32 v47, 16, v{gs}
    v_and_b32 v48, 0xffff0000, v{xs}
    v_and_b32 v49, 0xffff0000, v{gs}
    v_mul_f32 v46, v46, v47
    v_mul_f32 v48, v48, v49
    v_cvt_pk_bf16_f32 v46, v46, v48
    v_lshlrev_b32 v47, 16, v46
    v_and_b32 v48, 0xffff0000, v46
    v_add_f32 v{acc}, v{acc}, v47
    v_add_f32 v{acc}, v{acc}, v48""")
    for k in (8, 4, 2, 1):
        g(f"""    v_add_f32_dpp v44, v44, v44 row_ror:{k} row_mask:0xf bank_mask:0xf
    v_add_f32_dpp v45, v45, v45 row_ror:{k} row_mask:0xf bank_mask:0xf""")
    for sw in ("v_permlane16_swap_b32", "v_permlane32_swap_b32"):
        g(f"""    v_mov_b32 v46, v44
    v_mov_b32 v47, v45
    {sw} v44, v46
    {sw} v45, v47
    v_add_f32 v44, v44, v46
    v_add_f32 v45, v45, v47""")
    g(f"""    v_cmp_gt_u32 vcc, 32, v0
    v_cndmask_b32 v44, v45, v44, vcc
    v_cvt_pk_bf16_f32 v44, v44, v44
    v_lshlrev_b32 v44, 16, v44
    v_mul_f32 v44, 0xbfb8aa3b, v44
    v_exp_f32 v44, v44
    v_add_f32 v44, 1.0, v44
    v_rcp_f32 v44, v44                    ; g
    v_lshrrev_b32 v4, 5, v0
    v_lshlrev_b32 v4, 2, v4
    ds_write_b32 v4, v44 offset:{L_GATE}
    v_and_b32 v8, 7, v0
    v_mul_u32_u24 v8, {2*1792*4}, v8
    v_bfe_u32 v9, v0, 3, 1
    v_mul_u32_u24 v10, {1792*4}, v9
    v_add_u32 v8, v8, v10
    v_lshl_add_u32 v8, v3, 4, v8          ; + qq*16
    v_add_u32 v11, 64, v8
    v_cmp_eq_u32 vcc, 3, v3
    v_cndmask_b32 v11, v11, v8, vcc
    s_mul_i32 s72, s{S_RB}, {28*4}
    s_add_u32 s72, s72, {WS_HP}""")
    if cfg.streamonly:
        g("    s_waitcnt vmcnt(0)\n    s_endpgm")
    g.wait_prog(cfg.hstart)
    g.poll([f"buffer_load_dwordx4 v[64:67], v8, {srd(S_WS)}, s72 offen sc1",
            f"buffer_load_dwordx4 v[68:71], v11, {srd(S_WS)}, s72 offen sc1"], [64, 68], 72, sleep=cfg.sleeph, nk=11)
    for dp in DPP8:
        for r in range(64, 72):
            g(f"    v_add_f32_dpp v{r}, v{r}, v{r} {dp} row_mask:0xf bank_mask:0xf")
    for q in range(2):
        r = 64 + 4*q
        g(f"""    v_cvt_pk_bf16_f32 v{r}, v{r}, v{r+1}
    v_cvt_pk_bf16_f32 v{r+2}, v{r+2}, v{r+3}
    v_and_b32 v{r+1}, 0xffff0000, v{r}
    v_lshlrev_b32 v{r}, 16, v{r}
    v_and_b32 v{r+3}, 0xffff0000, v{r+2}
    v_lshlrev_b32 v{r+2}, 16, v{r+2}""")
        for k in range(4):
            g(f"""    v_mul_f32 v{80+k}, 0xbfb8aa3b, v{r+k}
    v_exp_f32 v{80+k}, v{80+k}
    v_add_f32 v{80+k}, 1.0, v{80+k}
    v_rcp_f32 v{80+k}, v{80+k}
    v_mul_f32 v{r+k}, v{r+k}, v{80+k}""")
        g(f"""    v_cvt_pk_bf16_f32 v{r}, v{r}, v{r+1}
    v_cvt_pk_bf16_f32 v{r+1}, v{r+2}, v{r+3}""")
    g(f"""    v_lshlrev_b32 v4, 4, v9
    v_lshl_add_u32 v4, v3, 5, v4          ; qq*32 + b*16
    s_mov_b32 s70, 0x01010101
    s_mov_b32 s71, 0x01010101
    s_mov_b64 exec, s[70:71]
    ds_write_b64 v4, v[64:65] offset:{L_H}
    s_mov_b32 s71, 0x00000101
    s_mov_b64 exec, s[70:71]
    ds_write_b64 v4, v[68:69] offset:{L_H + 8}
    s_mov_b64 exec, -1
    v_mov_b32 v5, 1
    v_mov_b32 v4, 0
    ds_write_b32 v4, v5 offset:{L_HF}""")
    if cfg.dirty:
        g(f"""    s_mul_i32 s72, s2, {cfg.dirty*1024}
    s_add_u32 s72, s72, 0x800000
    v_lshlrev_b32 v6, 4, v0""")
        for k in range(cfg.dirty):
            g(f"    buffer_store_dwordx4 v[64:67], v6, {srd(S_WS)}, s72 offen\n    s_add_u32 s72, s72, 1024")
    if cfg.outtouch == 1:
        g(f"""    s_mov_b64 exec, 1
    buffer_load_dword v6, v4, {srd(S_OUT)}, 0 offen
    s_mov_b64 exec, -1
    s_waitcnt vmcnt(0)""")
    g.stamp(14)
    if cfg.stamps: stamp_out(g)
    g("    s_endpgm")
    g.a = sec["ld_early"]
    srd_const(g, ["k"])
    lane_regs(g)
    g(f"""    s_lshr_b32 s52, s{S_J}, 4
    s_lshl_b32 s54, s52, 3
    s_add_u32 s54, s54, s{S_HKV}
    s_lshl_b32 s54, s54, 23
    s_and_b32 s53, s{S_J}, 15
    s_lshl_b32 s55, s53, {12 if cfg.strided else 16}
    s_add_u32 s54, s54, s55
    s_add_u32 s54, s54, {(32768-4096)*256}
    v_lshlrev_b32 v4, 8, v3
    v_xor_b32 v5, v3, v2
    v_lshl_add_u32 v20, v5, 4, v4""")
    for n in range(1, 4):
        g(f"""    v_xor_b32 v6, {4*n}, v5
    v_lshl_add_u32 v{20+n}, v6, 4, v4""")
    g(f"""    s_mul_i32 s56, s{S_J}, {cfg.rotmul}""")
    if cfg.rothkv:
        g(f"""    s_mul_i32 s57, s{S_HKV}, {cfg.rothkv}
    s_add_u32 s56, s56, s57""")
    g("    s_waitcnt lgkmcnt(0)")
    def loader_rest():
        g("    s_setprio 3")
        srd_load(g, ["v", "wo", "w2"] + (["ws"] if cfg.stamps else [])); srd_const(g, ["v", "wo", "w2"] + (["ws"] if cfg.stamps else []))
        common_rest(g, cfg)
        g(f"""    v_mov_b32 v10, 0
    ds_write_b32 v1, v10 offset:{L_PROG}
    ds_write_b32 v1, v10 offset:256
    ds_write_b32 v1, v10 offset:512
    v_lshlrev_b32 v5, 1, v3
    v_xor_b32 v5, v5, v2
    v_lshl_add_u32 v24, v5, 4, v4
    v_xor_b32 v25, 128, v24
    v_lshlrev_b32 v5, 4, v5
    v_lshl_add_u32 v26, v3, 10, v5
    v_xor_b32 v27, 128, v26               ; odd
    v_mov_b32 v12, 0
    v_mov_b32 v13, 0
    v_mov_b32 v14, 0
    v_mov_b32 v15, 0
    v_lshlrev_b32 v5, 4, v0
    ds_write_b128 v5, v[12:15] offset:{L_W2 + 7168}
    s_lshl_b32 s60, s{S_RB}, 16            ; 64*rb*1024
    s_lshl_b32 s61, s{S_CBK}, 8
    s_add_u32 s60, s60, s61               ; wo soffset
    s_mul_i32 s62, s{S_RB}, {28*1024}
    s_add_u32 s62, s62, s61               ; w2 soffset
    s_mul_i32 s65, s{S_RB}, {2*cfg.wrot}
""")
        if cfg.contig & 4:
            g(f"""    v_lshlrev_b32 v26, 4, v0
    v_mov_b32 v27, v26
    s_lshl_b32 s60, s2, 14
    s_mul_i32 s62, s2, 7168""")
        g(f"""    s_waitcnt lgkmcnt(0)
    s_barrier""")
        g.stamp(11)
    if cfg.earlyn == 0: loader_rest()
    kseq = [("k", t, n) for t in range(16) for n in range(4)]
    vseq = [("v", t, n) for t in range(16) for n in range(4)]
    wl = [("wo", n, 0) for n in range(16)]; w2l = [("w2", n, 0) for n in range(7)]
    wseq = (w2l + wl) if cfg.w2first else (wl + w2l)
    if cfg.order == "kvw": seq = kseq + vseq + wseq
    elif cfg.order == "mix": seq = kseq + vseq[:4*cfg.vk] + wseq[:cfg.wm] + vseq[4*cfg.vk:] + wseq[cfg.wm:]
    elif cfg.order == "spread":
        seq = list(kseq); wi = 0
        for t in range(16):
            seq += vseq[4*t:4*t+4]
            if t >= cfg.vk and wi < cfg.wm:
                n = -(-(cfg.wm - wi) // (16 - t)) if t < 15 else 0
                seq += wseq[wi:wi+n]; wi += n
        seq += wseq[wi:]
    else: seq = kseq + wseq + vseq
    N = len(seq)
    mval = {}
    kv = 0; wdone = 0
    for i, (kind, t, n) in enumerate(seq):
        ch = False
        if kind in ("k", "v") and n == 3: kv += 1; ch = True
        if i + 1 == N: wdone = 1; ch = True
        if ch: mval[i + 1] = (kv, wdone)
    def post(done):
        kv_, wd_ = mval[done]
        g(f"""    v_mov_b32 v10, {kv_}
    ds_write_b32 v1, v10 offset:{L_PROG}""")
        if done == N: g.stamp(3)
        if seq[done-1][0] == "k" and kv_ == 16: g.stamp(1)
        if seq[done-1][0] == "k" and kv_ in (1, 2, 4, 8): g.stamp({1: 4, 2: 5, 4: 6, 8: 7}[kv_])
        if seq[done-1][0] == "v" and kv_ in (17, 18, 20): g.stamp({17: 8, 18: 9, 20: 10}[kv_])
        if seq[done-1][0] == "v" and kv_ == 32: g.stamp(2)
    def win(i):
        k = seq[i][0]
        return cfg.wk if k == "k" else (cfg.wv if k == "v" else cfg.ww)
    miles = sorted(mval.keys())
    st = {"issued": 0, "done": 0}
    def advance(need):
        while st["done"] < need:
            nxt = min([need] + [m for m in miles if m > st["done"]])
            g(f"    s_waitcnt vmcnt({st['issued'] - nxt})")
            st["done"] = nxt
            if nxt in miles: post(nxt)
    for i, (kind, t, n) in enumerate(seq):
        if kind in ("k", "v") and n == 0:
            g(f"""    s_add_u32 s63, s56, {t}
    s_and_b32 s63, s63, 15
    s_lshl_b32 s63, s63, {16 if cfg.strided else 12}
    s_add_u32 s63, s63, s54""")
        elif kind == "wo":
            g(f"""    s_add_u32 s63, s65, {t}
    s_and_b32 s63, s63, 15
    s_lshl_b32 s64, s63, 10
    s_lshl_b32 s63, s63, {10 if cfg.contig & 4 else 12}
    s_add_u32 s63, s63, s60""")
        elif kind == "w2":
            g(f"    s_add_u32 s63, s62, {t*(1024 if cfg.contig & 4 else 4096)}")
        if cfg.wgate >= 0 and i == 128 + cfg.wgate:
            advance(128)
            L = g.label("Lwd"); E = g.label("Lwde")
            g(f"""    v_mov_b32 v11, 0
{L}:
    ds_read_b128 v[12:15], v11 offset:{L_PUB}
    s_waitcnt lgkmcnt(0)
    v_min_u32 v12, v12, v13
    v_min3_u32 v12, v12, v14, v15
    v_cmp_eq_u32 vcc, 0, v12
    s_cbranch_vccz {E}""")
            g.spin_tail(L)
            g(f"{E}:")
        advance(i + 1 - win(i))
        if kind in ("k", "v") and n == 0:
            g(f"    s_mov_b32 m0, {(L_K if kind == 'k' else L_V) + t*4096}")
            g("    s_nop 0")
        if kind == "k":
            g(f"    buffer_load_dwordx4 v{20+n}, {srd(S_K)}, s63 offen offset:{n*1024}{NT} lds")
        elif kind == "v":
            g(f"    buffer_load_dwordx4 v{24+(n&1)}, {srd(S_V)}, s63 offen offset:{n*1024}{NT} lds")
        elif kind == "wo":
            g(f"""    s_add_u32 m0, s64, {L_WO}
    s_nop 0
    buffer_load_dwordx4 v{26+(t&1)}, {srd(S_WO)}, s63 offen{cfg.wnt} lds""")
        else:
            g(f"""    s_mov_b32 m0, {L_W2 + t*1024}
    s_nop 0
    buffer_load_dwordx4 v{26+(t&1)}, {srd(S_W2)}, s63 offen{cfg.wnt} lds""")
        st["issued"] += 1
        if cfg.earlyn > 0 and i == cfg.earlyn - 1:
            g("    s_branch L_loader_main")
            g.a = sec["ld_main"]
            if cfg.align4k: g(".p2align 12")
            g("L_loader_main:")
            loader_rest()
    if cfg.buddy:
        g(f"""    s_xor_b32 s66, s{S_J}, {cfg.buddy}
    s_lshr_b32 s67, s66, 2
    s_lshl_b32 s68, s{S_HKV}, 3
    s_add_u32 s67, s67, s68               ; rb'
    s_and_b32 s68, s66, 3
    s_lshl_b32 s68, s68, 8                ; cbk'*256
    s_lshl_b32 s69, s67, 16
    s_add_u32 s69, s69, s68               ; wo soffset
    s_mul_i32 s70, s67, {28*1024}
    s_add_u32 s70, s70, s68               ; w2 soffset
    v_lshlrev_b32 v28, 10, v0             ; row l
    v_lshrrev_b32 v29, 1, v0
    v_min_u32 v29, 27, v29
    v_lshlrev_b32 v29, 10, v29
    v_and_b32 v30, 1, v0
    v_lshl_add_u32 v29, v30, 7, v29
    buffer_load_dword v31, v29, {srd(S_W2)}, s70 offen
    buffer_load_dword v32, v28, {srd(S_WO)}, s69 offen
    buffer_load_dword v33, v28, {srd(S_WO)}, s69 offen offset:128""")
        st["issued"] += 3
    advance(N)
    if cfg.stamps: stamp_out(g)
    g("""    s_endpgm
L_end:
    s_endpgm""")
    g.a = main
    for k in ("ld_early", "p1q", "compute", "others", "helper", "ld_main"):
        g(sec[k].text())
    g(f""".section .rodata,"a"
.p2align 6
.amdhsa_kernel {KNAME}
  .amdhsa_next_free_vgpr {152 if cfg.stamps else 144}
  .amdhsa_next_free_sgpr 102
  .amdhsa_accum_offset {152 if cfg.stamps else 144}
  .amdhsa_group_segment_fixed_size 0
  .amdhsa_kernarg_size 96
  .amdhsa_user_sgpr_count 2
  .amdhsa_user_sgpr_kernarg_segment_ptr 1
  .amdhsa_system_sgpr_workgroup_id_x 1
.end_amdhsa_kernel
""")
    open(path, "w").write(hazard.fix(g.a.text(), True))

def parse(cfg, args):
    for a in args:
        k, v = a.split("=")
        cur = getattr(cfg, k)
        if isinstance(cur, bool): v = v in ("1", "True", "true")
        elif isinstance(cur, int): v = int(v)
        elif k in ("nt", "wnt"): v = " " + v if v else ""
        setattr(cfg, k, v)
    return cfg

if __name__ == "__main__":
    gen(parse(Cfg(), sys.argv[2:]), sys.argv[1])
```

```python
import sys, math, struct
from asmlib import A
import hazard

KNAME = "gated_mix__sliding_block_cached__dense_activation_silu__decode_kernel"

class Cfg:
    wk = 24
    wv = 24
    ww = 24
    qstart = 4
    hstart = 20
    stamps = False
    spin_lds = 1 << 20
    spin_glb = 1 << 14
    nt = " nt"
    rotmul = 1
    rothkv = 0
    wrot = 1
    sleep1 = 0
    sleeph = 4
    sleep2 = 1
    sleep3 = 1
    na1 = 4
    na2 = 8
    w2first = True
    dbgst = False
    pretouch = False
    wdelay = False
    order = 'kvw'
    earlyld = False
    earlyn = 12
    qk = 3
    npoll3 = 1
    pre3 = 0
    wgate = -1
    align4k = True
    opa = 0
    na3 = 6
    wtouch = 0
    xbar = False
    contig = 0
    lflag = 1
    lfmax = 10
    wnt = ' nt'
    buddy = 0
    mask2 = False
    mask3 = False
    dirty = 0
    opre = False
    outtouch = 0
    aflag = ''
    outflag = ''
    strided = False
    oplay = 2
    vk = 12
    wm = 19
    streamonly = False
    stag3 = 2
    tlb = False
    pollfirst = True

WS_QP, WS_HP, WS_OP, WS_AP = 0x10000, 0x50000, 0x70000, 0x100000
D_OP = 0x50000
WS_LF = 0xB0000
D_QP, D_AP = 0x20000, 0x80000
WS_STAMP = 0x4000000

L_PROG, L_S2, L_HF, L_GATE, L_PUB, L_MX, L_LW, L_H = 0x000, 0x100, 0x110, 0x120, 0x130, 0x140, 0x180, 0x1C0
L_WF = 0x118
L_O = 0xE80
L_QF = 0x11C
L_Q, L_P, L_WO, L_W2, L_K, L_V = 0x280, 0x680, 0x1000, 0x5000, 0x7000, 0x17000
LDS_TOTAL = 0x27000
L_P3P = L_K
NW = 6

S_X, S_K, S_V, S_WQ, S_WO, S_W1, S_W2, S_GW, S_OUT, S_WS = 8, 12, 16, 20, 24, 28, 32, 36, 40, 44
def srd(b): return f"s[{b}:{b+3}]"
S_WAVE = 3
S_HKV, S_J = 48, 49
S_RB, S_CBK = 50, 51
S_T0 = 80
S_TAG = 84
S_PROG = 85
S_LIM = 86
S_FF = 87
W_P1Q, W_HELP, W_LOAD = 2, 4, 5
TAB = {'x': (S_X, 0, 2048), 'k': (S_K, 8, 1 << 27), 'v': (S_V, 16, 1 << 27), 'wq': (S_WQ, 24, 1 << 22), 'wo': (S_WO, 32, 1 << 22),
       'w1': (S_W1, 48, 512*1792*2), 'w2': (S_W2, 56, 512*1792*2), 'gw': (S_GW, 64, 1024), 'out': (S_OUT, 72, 2048), 'ws': (S_WS, 88, 1 << 29)}
VSEL = 136
VST = 144

def f32bits(x): return struct.unpack("<I", struct.pack("<f", x))[0]
DPP8 = ("quad_perm:[1,0,3,2]", "quad_perm:[2,3,0,1]", "row_half_mirror")

class G:
    def __init__(self, cfg):
        self.c = cfg; self.a = A(); self.lab = 0
    def __call__(self, s): self.a(s)
    def label(self, p="L"):
        self.lab += 1; return f"{p}_{self.lab}"
    def stamp(self, k):
        if self.c.stamps:
            self(f"""    s_memrealtime s[98:99]
    s_waitcnt lgkmcnt(0)
    v_writelane_b32 v{VST}, s98, {k}""")
    def note(self, k, sreg):
        if self.c.stamps:
            self(f"    v_writelane_b32 v{VST}, s{sreg}, {k}")
    def spin_tail(self, L):
        self(f"""    s_sub_u32 s{S_LIM}, s{S_LIM}, 1
    s_cmp_gt_i32 s{S_LIM}, 0
    s_cbranch_scc1 {L}""")
    def wait_prog(self, need, vtmp=10):
        L = self.label("Lp"); E = self.label("Lpe")
        self(f"""    s_cmp_ge_u32 s{S_PROG}, {need}
    s_cbranch_scc1 {E}
{L}:
    ds_read_b32 v{vtmp}, v1 offset:{L_PROG}
    s_waitcnt lgkmcnt(0)
    v_readfirstlane_b32 s{S_PROG}, v{vtmp}
    s_cmp_ge_u32 s{S_PROG}, {need}
    s_cbranch_scc1 {E}""")
        self.spin_tail(L)
        self(f"{E}:")
    def wait_nonzero4(self, dst, vaddr, off, tmp):
        L = self.label("Ls"); E = self.label("Lse")
        self(f"""{L}:
    ds_read_b128 v[{dst}:{dst+3}], v{vaddr} offset:{off}
    s_waitcnt lgkmcnt(0)
    v_min_u32 v{tmp}, v{dst}, v{dst+1}
    v_min3_u32 v{tmp}, v{tmp}, v{dst+2}, v{dst+3}
    v_cmp_eq_u32 vcc, 0, v{tmp}
    s_cbranch_vccz {E}""")
        self.spin_tail(L)
        self(f"{E}:")
    def wait_flag(self, off, n, vtmp, vzero):
        L = self.label("Lf"); E = self.label("Lfe")
        if n == 1:
            rd = f"ds_read_b32 v{vtmp}, v{vzero} offset:{off}"; comb = ""
        else:
            rd = f"ds_read_b64 v[{vtmp}:{vtmp+1}], v{vzero} offset:{off}"; comb = f"    v_min_u32 v{vtmp}, v{vtmp}, v{vtmp+1}\n"
        self(f"""{L}:
    {rd}
    s_waitcnt lgkmcnt(0)
{comb}    v_cmp_eq_u32 vcc, 0, v{vtmp}
    s_cbranch_vccz {E}""")
        self.spin_tail(L)
        self(f"{E}:")
    def poll(self, loads, granules, bad, mode="low", sleep=0, tmp=None, dual=None, nk=None, masked=False):
        L = self.label("Lg"); E = self.label("Lge")
        self(f"    s_mov_b32 s101, {self.c.spin_glb}")
        self(f"{L}:")
        if dual:
            bases, tmps, delta, na = dual
            self(f"""    s_sub_u32 s100, {self.c.spin_glb - na}, s101
    s_cmp_ge_i32 s100, 0
    s_cselect_b32 s100, s101, 0
    s_and_b32 s100, s100, 1
    s_mul_i32 s100, s100, {delta}""")
            for bs, ts in zip(bases, tmps):
                self(f"    s_add_u32 s{ts}, s{bs}, s100")
        for ld in loads: self("    " + ld)
        self("    s_waitcnt vmcnt(0)")
        if mode == "low":
            for i, r in enumerate(granules):
                for k in range(4):
                    self(f"    v_xor_b32 v{r+k}, s{S_T0+k}, v{r+k}")
            for i, r in enumerate(granules):
                if i == 0:
                    self(f"    v_or3_b32 v{bad}, v{r}, v{r+1}, v{r+2}")
                    self(f"    v_or_b32 v{bad}, v{bad}, v{r+3}")
                else:
                    self(f"    v_or3_b32 v{bad}, v{bad}, v{r}, v{r+1}")
                    self(f"    v_or3_b32 v{bad}, v{bad}, v{r+2}, v{r+3}")
            self(f"    v_and_b32 v{bad}, 0xff, v{bad}")
        else:
            for i, r in enumerate(granules):
                t = bad if i == 0 else tmp
                self(f"    v_bitop3_b32 v{t}, v{r}, v{r+1}, v{r+2} bitop3:0x96")
                self(f"    v_bitop3_b32 v{t}, v{t}, v{r+3}, s{S_TAG} bitop3:0x96")
                if i: self(f"    v_or_b32 v{bad}, v{bad}, v{t}")
        if masked:
            self(f"""    v_cmp_ne_u32 vcc, 0, v{bad}
    s_and_b64 exec, exec, vcc
    s_cbranch_scc0 {E}""")
        else:
            self(f"""    v_cmp_ne_u32 vcc, 0, v{bad}
    s_cbranch_vccz {E}""")
        if sleep: self(f"    s_sleep {sleep}")
        self(f"""    s_sub_u32 s101, s101, 1
    s_cmp_gt_i32 s101, 0
    s_cbranch_scc1 {L}
{E}:""")
        if masked: self("    s_mov_b64 exec, -1")
        if nk is not None and self.c.stamps:
            self(f"    s_sub_u32 s100, {self.c.spin_glb}, s101")
            self.note(nk, 100)

def srd_load(g, names):
    for n in names:
        b, off, sz = TAB[n]
        g(f"    s_load_dwordx2 s[{b}:{b+1}], s[0:1], {off}")
def srd_const(g, names):
    for n in names:
        b, off, sz = TAB[n]
        g(f"    s_mov_b32 s{b+2}, {hex(sz)}")
        g(f"    s_mov_b32 s{b+3}, 0x20000")
def lane_regs(g):
    g("""    v_and_b32 v2, 15, v0                  ; v2 = l&15
    v_lshrrev_b32 v3, 4, v0               ; v3 = l>>4""")
def common_rest(g, cfg):
    g(f"""    v_lshlrev_b32 v1, 2, v0               ; v1 = lane*4
    s_lshr_b32 s{S_RB}, s{S_J}, 2
    s_lshl_b32 s{S_CBK}, s{S_HKV}, 3
    s_add_u32 s{S_RB}, s{S_RB}, s{S_CBK}
    s_and_b32 s{S_CBK}, s{S_J}, 3
    s_mov_b32 s{S_PROG}, 0
    s_mov_b32 s{S_LIM}, {cfg.spin_lds}
    s_mov_b32 s{S_FF}, 0xff""")
    if cfg.stamps: g(f"    v_mov_b32 v{VST}, 0")

def selectors(g):
    g(f"""    v_and_b32 v4, 1, v0                   ; e'&1
    v_bfe_u32 v5, v0, 1, 2                ; e'>>1
    v_mov_b32 v6, 0x0c0c0100
    v_mov_b32 v8, 0x01000c0c
    v_cmp_eq_u32 vcc, 1, v4
    v_cndmask_b32 v6, v6, v8, vcc
    v_mov_b32 v8, 0x0c0c0302
    v_mov_b32 v10, 0x03020c0c
    v_cndmask_b32 v8, v8, v10, vcc
    v_mov_b32 v10, 0x0c0c0c0c""")
    for r in range(4):
        g(f"""    v_cmp_eq_u32 vcc, {r}, v5
    v_cndmask_b32 v{VSEL+2*r}, v10, v6, vcc
    v_cndmask_b32 v{VSEL+1+2*r}, v10, v8, vcc""")

def tags(g):
    g(f"""    s_waitcnt lgkmcnt(0)
    s_add_u32 s{S_TAG}, s{S_TAG}, 0x01010101
    s_and_b32 s{S_T0}, s{S_TAG}, 0xff
    s_bfe_u32 s{S_T0+1}, s{S_TAG}, 0x80008
    s_bfe_u32 s{S_T0+2}, s{S_TAG}, 0x80010
    s_lshr_b32 s{S_T0+3}, s{S_TAG}, 24
    v_mov_b32 v16, s{S_T0}
    v_mov_b32 v17, s{S_T0+1}
    v_mov_b32 v18, s{S_T0+2}
    v_mov_b32 v19, s{S_T0+3}""")

def proj(g, n, x0, x1, nx):
    for r in range(128, 136): g(f"    v_mov_b32 v{r}, 0")
    g(f"    s_waitcnt vmcnt({n})")
    g.stamp(1)
    def build(t):
        base = 48 + (t & 1)*8
        for b, xb in ((0, x0), (1, x1)):
            for r in range(4):
                g(f"    v_perm_b32 v{base+4*b+r}, v{xb+(t>>1)}, v{xb+(t>>1)}, v{VSEL+2*r+(t&1)}")
    build(0)
    for t in range(n):
        if t + 1 < n: build(t + 1)
        base = 48 + (t & 1)*8
        g(f"    s_waitcnt vmcnt({n-1-t})")
        for b in range(2):
            g(f"    v_mfma_f32_16x16x32_bf16 v[{128+4*b}:{131+4*b}], v[{base+4*b}:{base+4*b+3}], v[{64+4*t}:{67+4*t}], v[{128+4*b}:{131+4*b}]")
    for k in range(4):
        g(f"    v_permlane32_swap_b32 v{128+k}, v{132+k}")
    for k in range(4):
        g(f"    v_add_f32_dpp v{36+k}, v{132+k}, v{128+k} row_ror:8 row_mask:0xf bank_mask:0xf")
    for k in range(4):
        g(f"    v_bfi_b32 v{36+k}, s{S_FF}, v{16+k}, v{36+k}")
def pub_addr(g):
    g("""    v_and_b32 v5, 7, v0
    v_lshl_add_u32 v4, v5, 5, v4          ; + cg*32
    v_bfe_u32 v5, v0, 4, 1
    v_lshl_add_u32 v4, v5, 4, v4          ; + half*16
    s_mov_b32 s70, 0x00ff00ff
    s_mov_b32 s71, 0x00ff00ff""")

def emit_w(g, cfg):
    g.wait_flag(L_WF, 1, 58, 11)
    g(f"""    ds_read_b128 v[80:83], v23 offset:{L_W2}
    ds_read_b128 v[84:87], v23 offset:{L_W2 + 4096}""")
    for t in range(4):
        g(f"    ds_read_b128 v[{64+4*t}:{67+4*t}], v22 offset:{L_WO + t*256}")
    lab = g.label("Lnw")
    g(f"""    s_waitcnt lgkmcnt(5)
    v_mfma_f32_16x16x32_bf16 v[108:111], v[96:99], v[80:83], v[108:111]
    s_waitcnt lgkmcnt(4)
    s_cmp_eq_u32 s{S_WAVE}, 3
    s_cbranch_scc1 {lab}
    v_mfma_f32_16x16x32_bf16 v[108:111], v[100:103], v[84:87], v[108:111]
{lab}:
    s_waitcnt lgkmcnt(0)""")

def stamp_out(g):
    g(f"""    s_waitcnt vmcnt(0) lgkmcnt(0)
    v_writelane_b32 v{VST}, s96, 0
    s_mul_i32 s72, s2, {NW}
    s_add_u32 s72, s72, s{S_WAVE}
    s_lshl_b32 s72, s72, 6
    s_add_u32 s72, s72, {WS_STAMP}
    s_mov_b32 exec_lo, 0xffff
    s_mov_b32 exec_hi, 0
    buffer_store_dword v{VST}, v1, {srd(S_WS)}, s72 offen
    s_waitcnt vmcnt(0)""")

def gen(cfg, path):
    g = G(cfg)
    NT = cfg.nt
    g(f"""; @launch grid=(256,1,1) block=({NW*64},1,1) lds={LDS_TOTAL}
;
; gated_mix(sliding-window GQA decode attention, SiLU FFN) - one fused launch, 256 workgroups (one per CU), 6 waves each.
;   workgroup c: hkv = c&7, j = c>>3 (b = j>>4, key split s = j&15)  -> 256 keys of K/V for 4 query heads
;   wave 5  loader : streams K, V (64 KiB each) and this workgroup's 64x128 wo / 28x128 w2 block into LDS by LDS-DMA,
;                    bounded number of loads in flight, progress word in LDS
;   waves 0,1 gather q (sum of 4 partials); waves 0-3: QK^T (MFMA), softmax with the true max over the 256 keys,
;            online-softmax combine, output projection (wo and w2 blocks), gate mix, publish partial outputs,
;   hand-offs: 16-byte granules carrying a per-launch tag (epoch word ws[0] + 0x01010101) or checksum; every granule is
;   validated on arrival.  Same-XCD consumers read a plain (L2) copy, a write-through copy is the placement-independent
.amdgcn_target "amdgcn-amd-amdhsa--gfx950"
.text
{".p2align 12" + chr(10) + ".fill 832, 4, 0xbf800000" if cfg.align4k else ""}
.globl {KNAME}
.p2align 8
.type {KNAME},@function
{KNAME}:
    s_cmp_ge_u32 s2, 256
    s_cbranch_scc1 L_end""")
    if cfg.stamps:
        g(f"    s_memrealtime s[96:97]")
    if cfg.dbgst:
        g(f"    s_memrealtime s[94:95]")
        g(f"    s_load_dwordx2 s[88:89], s[0:1], 80")
        g(f"    s_mov_b32 s90, 256")
        g(f"    s_mov_b32 s91, 0x20000")
    srd_load(g, ["k", "wq", "x", "ws", "out"])
    g(f"""    v_lshrrev_b32 v1, 6, v0
    s_and_b32 s{S_HKV}, s2, 7
    s_lshr_b32 s{S_J}, s2, 3
    v_readfirstlane_b32 s{S_WAVE}, v1
    v_and_b32 v0, 63, v0                  ; v0 = lane
    s_cmp_eq_u32 s{S_WAVE}, {W_P1Q}
    s_cbranch_scc1 L_p1q
    s_cmp_eq_u32 s{S_WAVE}, {W_LOAD}
    s_cbranch_scc0 L_others""")
    main = g.a
    sec = {k: A() for k in ("others", "p1q", "compute", "helper", "ld_early", "ld_main")}
    g.a = sec["others"]
    g(f"""L_others:
    s_cmp_eq_u32 s{S_WAVE}, {W_HELP}
    s_cbranch_scc1 L_helper""")
    srd_const(g, ["ws", "out"])
    lane_regs(g); common_rest(g, cfg)
    g(f"""    v_lshlrev_b32 v11, 4, v0              ; l*16
    s_waitcnt lgkmcnt(0)
    s_load_dword s{S_TAG}, s[{S_WS}:{S_WS+1}], 0x0
    s_barrier""")
    selectors(g); tags(g)
    g(f"""    s_cmp_eq_u32 s{S_WAVE}, 3
    s_cbranch_scc1 L_qwait""")
    if cfg.streamonly: g("    s_branch L_qwait")
    g(f"""    s_lshr_b32 s72, s{S_J}, 4              ; b
    s_lshl_b32 s73, s72, 14               ; b*4096*4
    s_lshl_b32 s74, s{S_HKV}, 11          ; hkv*512*4
    s_add_u32 s73, s73, s74
    s_and_b32 s74, s{S_WAVE}, 1
    s_lshl_b32 s74, s74, 10
    s_add_u32 s73, s73, s74
    s_add_u32 s73, s73, {WS_QP}
    s_add_u32 s74, s73, {1*32768}
    s_add_u32 s75, s73, {2*32768}
    s_add_u32 s76, s73, {3*32768}""")
    if cfg.qk >= 0:
        g("    v_mov_b32 v9, 0")
        g.wait_flag(L_QF, 1, 10, 9)
        g(f"""    ds_read_b32 v10, v1 offset:{L_PROG}
    s_waitcnt lgkmcnt(0)
    v_readfirstlane_b32 s72, v10
    s_add_u32 s72, s72, {cfg.qk}
    s_min_u32 s72, s72, 16""")
        g.wait_prog("s72")
    else:
        g.wait_prog(cfg.qstart)
    g.stamp(15)
    g.poll([f"buffer_load_dwordx4 v[{32+4*k}:{35+4*k}], v11, {srd(S_WS)}, s{60+k} offen sc1" for k in range(4)], [32, 36, 40, 44], 48, sleep=cfg.sleep1,
           dual=([73, 74, 75, 76], [60, 61, 62, 63], D_QP, cfg.na1), nk=10)
    for k in range(4):
        g(f"""    v_add_f32 v{32+k}, v{32+k}, v{36+k}
    v_add_f32 v{40+k}, v{40+k}, v{44+k}""")
    for k in range(4):
        g(f"    v_add_f32 v{32+k}, v{32+k}, v{40+k}")
    g(f"""    v_cvt_pk_bf16_f32 v32, v32, v33
    v_cvt_pk_bf16_f32 v33, v34, v35
    v_lshlrev_b32 v4, 3, v0
    s_and_b32 s72, s{S_WAVE}, 1
    s_lshl_b32 s73, s72, 9
    v_add_u32 v4, s73, v4
    ds_write_b64 v4, v[32:33] offset:{L_Q}
    v_mov_b32 v5, 1
    s_lshl_b32 s72, s72, 2
    v_mov_b32 v4, s72
    ds_write_b32 v4, v5 offset:{L_S2}
    s_branch L_qwait""")
    g.a = sec["p1q"]
    g("L_p1q:")
    srd_const(g, ["wq", "x"])
    g(f"""    s_and_b32 s52, s{S_J}, 7               ; cb
    s_lshr_b32 s53, s{S_J}, 3              ; ks
    s_lshl_b32 s56, s53, 20               ; 128*ks*8192
    s_lshl_b32 s57, s{S_HKV}, 10
    s_lshl_b32 s58, s52, 7
    s_add_u32 s57, s57, s58
    s_add_u32 s56, s56, s57
    v_lshrrev_b32 v5, 3, v0               ; r8
    v_and_b32 v6, 7, v0
    v_lshlrev_b32 v6, 4, v6
    v_lshlrev_b32 v7, 17, v5
    v_add_u32 v7, v7, v6
    v_lshlrev_b32 v9, 5, v5               ; x voffset = 16*r8*2
    s_lshl_b32 s64, s53, 8                ; 128*ks*2
    s_movk_i32 s65, 0x2000
""")
    if cfg.contig & 1:
        g(f"""    s_lshl_b32 s56, s2, 14
    v_lshlrev_b32 v7, 4, v0
    s_movk_i32 s65, 0x400""")
    g(f"""    s_waitcnt lgkmcnt(0)
    buffer_load_dwordx4 v[20:23], v9, {srd(S_X)}, s64 offen
    buffer_load_dwordx4 v[24:27], v9, {srd(S_X)}, s64 offen offset:16
    buffer_load_dwordx4 v[28:31], v9, {srd(S_X)}, s64 offen offset:1024
    buffer_load_dwordx4 v[32:35], v9, {srd(S_X)}, s64 offen offset:1040""")
    for t in range(16):
        g(f"    buffer_load_dwordx4 v[{64+4*t}:{67+4*t}], v7, {srd(S_WQ)}, s56 offen{NT}")
        if t < 15: g("    s_add_u32 s56, s56, s65")
    g(f"    s_load_dword s{S_TAG}, s[{S_WS}:{S_WS+1}], 0x0")
    srd_const(g, ["ws", "out"]); lane_regs(g); common_rest(g, cfg)
    g("    s_barrier")
    selectors(g); tags(g)
    g(f"""    s_lshl_b32 s72, s53, 15
    s_lshl_b32 s73, s57, 1
    s_add_u32 s72, s72, s73
    s_add_u32 s72, s72, {WS_QP}
    s_add_u32 s73, s72, {D_QP}
    v_lshrrev_b32 v4, 5, v0
    v_lshlrev_b32 v4, 14, v4              ; b*4096*4""")
    pub_addr(g)
    proj(g, 16, 20, 28, 4)
    g(f"""    s_mov_b64 exec, s[70:71]
    buffer_store_dwordx4 v[36:39], v4, {srd(S_WS)}, s72 offen {cfg.aflag}
    buffer_store_dwordx4 v[36:39], v4, {srd(S_WS)}, s73 offen sc1
    s_mov_b64 exec, -1
    v_mov_b32 v5, 1
    v_mov_b32 v4, 0
    ds_write_b32 v4, v5 offset:{L_QF}""")
    g.stamp(2)
    g.a = sec["compute"]
    g("L_qwait:")
    if cfg.streamonly:
        g("    s_waitcnt vmcnt(0)\n    s_endpgm")
    g(f"""    ; K read addresses v20..23 : L_K + w*4096 + i*256 + ((4t ^ g ^ i))*16
    v_xor_b32 v9, v3, v2                  ; g ^ i
    v_lshlrev_b32 v10, 8, v2              ; i*256
    s_lshl_b32 s72, s{S_WAVE}, 12
    s_add_u32 s72, s72, {L_K}
    v_add_u32 v10, s72, v10""")
    for t in range(4):
        g(f"""    v_xor_b32 v4, {4*t}, v9
    v_lshl_add_u32 v{20+t}, v4, 4, v10""")
    g(f"""    ; Q frag address v8: head*256 + (4t+g)*16 ; v4 = head*16 (MX/LW), v5 = v4 + 4w
    v_and_b32 v8, 3, v0
    v_lshlrev_b32 v4, 4, v8
    v_lshlrev_b32 v8, 8, v8
    v_lshl_add_u32 v8, v3, 4, v8
    s_lshl_b32 s72, s{S_WAVE}, 2
    v_add_u32 v5, s72, v4
    v_mov_b32 v9, 0""")
    for r in range(48, 64): g(f"    v_mov_b32 v{r}, 0")
    for T in range(3):
        g(f"    s_add_u32 s72, s{S_WAVE}, {4*T+1}")
        g.wait_prog("s72", 10)
        for t in range(4):
            r = 64 + T*16 + 4*t
            g(f"    ds_read_b128 v[{r}:{r+3}], v{20+t} offset:{T*16384}")
    g.wait_flag(L_S2, 2, 10, 9)
    g.stamp(3)
    for t in range(4):
        g(f"    ds_read_b128 v[{32+4*t}:{35+4*t}], v8 offset:{L_Q + t*64}")
    g(f"    s_add_u32 s72, s{S_WAVE}, 13")
    g.wait_prog("s72", 10)
    for t in range(4):
        r = 64 + 3*16 + 4*t
        g(f"    ds_read_b128 v[{r}:{r+3}], v{20+t} offset:{3*16384}")
    g("    s_waitcnt lgkmcnt(4)")
    for t in range(4):
        for T in range(3):
            r = 64 + T*16 + 4*t
            g(f"    v_mfma_f32_16x16x32_bf16 v[{48+4*T}:{51+4*T}], v[{r}:{r+3}], v[{32+4*t}:{35+4*t}], v[{48+4*T}:{51+4*T}]")
    g("    s_waitcnt lgkmcnt(0)")
    for t in range(4):
        r = 64 + 3*16 + 4*t
        g(f"    v_mfma_f32_16x16x32_bf16 v[60:63], v[{r}:{r+3}], v[{32+4*t}:{35+4*t}], v[60:63]")
    c = (128 ** -0.5) * math.log2(math.e)
    g(f"""    s_mov_b32 s61, {hex(f32bits(c))}
    v_max3_f32 v24, v48, v49, v50
    v_max3_f32 v25, v51, v52, v53
    v_max3_f32 v26, v54, v55, v56
    v_max3_f32 v27, v57, v58, v59
    v_max3_f32 v24, v24, v25, v26
    v_max3_f32 v28, v60, v61, v62
    v_max3_f32 v24, v24, v27, v63
    v_max_f32 v24, v24, v28
    v_mov_b32 v25, v24
    v_permlane16_swap_b32 v24, v25
    v_max_f32 v24, v24, v25
    v_mov_b32 v25, v24
    v_permlane32_swap_b32 v24, v25
    v_max_f32 v24, v24, v25
    v_or_b32 v24, 1, v24
    ds_write_b32 v5, v24 offset:{L_MX}""")
    g.wait_nonzero4(24, 4, L_MX, 28)
    g(f"""    v_max3_f32 v24, v24, v25, v26
    v_max_f32 v24, v24, v27
    v_mul_f32 v24, s61, v24""")
    for r in range(48, 64):
        g(f"    v_fma_f32 v{r}, v{r}, s61, -v24")
    for r in range(48, 64):
        g(f"    v_exp_f32 v{r}, v{r}")
    for T in range(4):
        g(f"    v_cvt_pk_bf16_f32 v{64+2*T}, v{48+4*T}, v{49+4*T}")
        g(f"    v_cvt_pk_bf16_f32 v{65+2*T}, v{50+4*T}, v{51+4*T}")
    g(f"""    v_and_b32 v6, 3, v0
    v_lshlrev_b32 v6, 6, v6
    v_lshl_add_u32 v6, v3, 4, v6
    s_lshr_b32 s72, s{S_WAVE}, 1
    s_lshl_b32 s72, s72, 8
    s_and_b32 s73, s{S_WAVE}, 1
    s_lshl_b32 s73, s73, 3
    s_add_u32 s72, s72, s73
    v_add_u32 v7, s72, v6""")
    for T in range(4):
        g(f"    ds_write_b64 v7, v[{64+2*T}:{65+2*T}] offset:{L_P + T*512}")
    g("""    v_add_f32 v25, v48, v49
    v_add_f32 v26, v50, v51
    v_add_f32 v27, v52, v53
    v_add_f32 v28, v54, v55
    v_add_f32 v29, v56, v57
    v_add_f32 v30, v58, v59
    v_add_f32 v31, v60, v61
    v_add_f32 v72, v62, v63
    v_add_f32 v25, v25, v26
    v_add_f32 v27, v27, v28
    v_add_f32 v29, v29, v30
    v_add_f32 v31, v31, v72
    v_add_f32 v25, v25, v27
    v_add_f32 v29, v29, v31
    v_add_f32 v25, v25, v29
    v_mov_b32 v26, v25
    v_permlane16_swap_b32 v25, v26
    v_add_f32 v25, v25, v26
    v_mov_b32 v26, v25
    v_permlane32_swap_b32 v25, v26
    v_add_f32 v25, v25, v26               ; l_w
    v_or_b32 v25, 1, v25""")
    g(f"    ds_write_b32 v5, v25 offset:{L_LW}")
    g(f"""    v_bfe_u32 v8, v0, 2, 2                ; r
    v_and_b32 v9, 3, v0                   ; c
    v_lshl_add_u32 v10, v3, 2, v8         ; 4g + r
    v_and_b32 v11, 7, v10                 ; k7
    v_lshlrev_b32 v10, 8, v10
    v_lshl_add_u32 v10, v9, 3, v10
    v_add_u32 v10, {L_V}, v10
    s_lshl_b32 s72, s{S_WAVE}, 1          ; dt0 = 2w
    v_xor_b32 v8, s72, v11
    v_lshl_add_u32 v20, v8, 5, v10
    s_add_u32 s72, s72, 1
    v_xor_b32 v8, s72, v11
    v_lshl_add_u32 v21, v8, 5, v10
    s_lshl_b32 s58, s{S_HKV}, 5
    s_add_u32 s58, s58, s{S_J}             ; producer
    s_lshl_b32 s58, s58, 11
    s_lshl_b32 s59, s{S_WAVE}, 7          ; 8w*16
    s_add_u32 s58, s58, s59
    s_add_u32 s58, s58, {WS_AP}
    s_add_u32 s59, s58, {D_AP}
    v_and_b32 v22, 3, v0
    v_lshlrev_b32 v22, 9, v22             ; head*512
    v_lshl_add_u32 v22, v3, 4, v22        ; + g'*16
    v_bfe_u32 v9, v0, 2, 1                ; dsel
    v_lshl_add_u32 v22, v9, 6, v22
    s_mov_b32 s54, 0x00f000f0
    s_mov_b32 s55, 0x00f000f0
    s_mov_b32 s56, 0x00ff00ff
    s_mov_b32 s57, 0x00ff00ff""")
    g.wait_nonzero4(28, 4, L_LW, 27)
    for u in range(8):
        g(f"    ds_read_b128 v[{32+4*u}:{35+4*u}], v6 offset:{L_P + u*256}")
    g(f"""    v_add_f32 v28, v28, v29
    v_add_f32 v30, v30, v31
    v_add_f32 v25, v28, v30               ; L
    v_rcp_f32 v26, v25                    ; v26 = 1/L
    v_log_f32 v27, v25
    v_add_f32 v27, v27, v24               ; v27 = lw
    v_xor_b32 v28, s{S_TAG}, v27""")
    for r in range(64, 72): g(f"    v_mov_b32 v{r}, 0")
    if cfg.opre:
        g(f"""    v_and_b32 v13, 1, v0
    v_lshlrev_b32 v13, 9, v13             ; b*512
    v_bfe_u32 v14, v0, 1, 1               ; ct
    v_lshl_add_u32 v13, v14, 6, v13
    v_lshl_add_u32 v13, v3, 4, v13        ; + g'*16
    s_lshl_b32 s76, s{S_CBK}, 6
    s_add_u32 s76, s76, s{S_RB}
    s_lshl_b32 s76, s76, 10
    s_lshl_b32 s77, s{S_WAVE}, 7
    s_add_u32 s76, s76, s77
    s_add_u32 s76, s76, {WS_OP}
    v_xor_b32 v72, 1, v16
    v_mov_b32 v73, v72
    v_mov_b32 v74, v72
    v_mov_b32 v75, v72
    s_mov_b32 s74, 0x000f000f
    s_mov_b32 s75, 0x000f000f
    s_mov_b64 exec, s[74:75]
    buffer_store_dwordx4 v[72:75], v13, {srd(S_WS)}, s76 offen sc1
    s_mov_b64 exec, -1""")
    if cfg.pretouch:
        g(f"""    v_mov_b32 v72, 0
    v_mov_b32 v73, 0
    v_mov_b32 v74, 0
    v_xor_b32 v75, 1, v72
    v_xor_b32 v75, s{S_TAG}, v75
    s_mov_b64 exec, s[56:57]
    buffer_store_dwordx4 v[72:75], v22, {srd(S_WS)}, s58 offen {cfg.aflag}
    s_mov_b64 exec, -1""")
    g.stamp(4)
    def pv_mfma(u):
        rb_ = 72 + (u & 1)*8
        for d in range(2):
            r = rb_ + d*4
            g(f"    v_mfma_f32_16x16x32_bf16 v[{64+4*d}:{67+4*d}], v[{r}:{r+3}], v[{32+4*u}:{35+4*u}], v[{64+4*d}:{67+4*d}]")
    for u in range(8):
        g.wait_prog(16 + 2*u + 2, 10)
        rb_ = 72 + (u & 1)*8
        for d in range(2):
            for h in range(2):
                r = rb_ + d*4 + 2*h
                g(f"    ds_read_b64_tr_b16 v[{r}:{r+1}], v{20+d} offset:{(2*u+h)*4096}")
        if u > 0:
            g("    s_waitcnt lgkmcnt(4)")
            pv_mfma(u - 1)
    g("    s_waitcnt lgkmcnt(0)")
    pv_mfma(7)
    g.stamp(5)
    g(f"""    v_cndmask_b32 v64, v64, v68, s[54:55]
    v_cndmask_b32 v65, v65, v69, s[54:55]
    v_cndmask_b32 v66, v66, v70, s[54:55]
    v_cndmask_b32 v67, v67, v71, s[54:55]
    v_mul_f32 v64, v64, v26
    v_mul_f32 v65, v65, v26
    v_mul_f32 v66, v66, v26
    v_mul_f32 v67, v67, v26
    v_cvt_pk_bf16_f32 v64, v64, v65
    v_cvt_pk_bf16_f32 v65, v66, v67
    v_mov_b32 v66, v27
    v_bitop3_b32 v67, v64, v65, v28 bitop3:0x96
    s_mov_b64 exec, s[56:57]
    buffer_store_dwordx4 v[64:67], v22, {srd(S_WS)}, s58 offen {cfg.aflag}
    buffer_store_dwordx4 v[64:67], v22, {srd(S_WS)}, s59 offen sc1
    s_mov_b64 exec, -1""")
    if cfg.wgate >= 0:
        g(f"""    v_mov_b32 v9, 1
    s_lshl_b32 s72, s{S_WAVE}, 2
    v_mov_b32 v8, s72
    ds_write_b32 v8, v9 offset:{L_PUB}""")
    g(f"""    ; lane (g, b'=(l>>3)&1, s8=l&7): granule index = 16*((j>>2)&1) + 4w + g  within head
    s_lshr_b32 s52, s{S_J}, 3              ; head4
    s_bfe_u32 s53, s{S_J}, 0x10002         ; (j>>2)&1
    v_and_b32 v8, 7, v0
    v_bfe_u32 v9, v0, 3, 1
    v_lshl_add_u32 v8, v9, 4, v8          ; b'*16 + s8
    v_lshlrev_b32 v8, 11, v8              ; *2048
    v_lshl_add_u32 v8, v3, 4, v8          ; + g*16
    s_lshl_b32 s72, s{S_HKV}, 16          ; hkv*32*2048
    s_lshl_b32 s73, s52, 9                ; head4*512
    s_add_u32 s72, s72, s73
    s_lshl_b32 s73, s53, 8
    s_add_u32 s72, s72, s73
    s_lshl_b32 s73, s{S_WAVE}, 6
    s_add_u32 s72, s72, s73
    s_add_u32 s72, s72, {WS_AP}
    s_add_u32 s73, s72, {8*2048}
    v_add_u32 v20, {(L_WO - L_V) & 0xffffffff:#x}, v20
    v_add_u32 v21, {(L_WO - L_V) & 0xffffffff:#x}, v21
    v_lshlrev_b32 v10, 5, v3
    v_lshl_add_u32 v10, v9, 4, v10
    s_lshr_b32 s74, s{S_WAVE}, 1
    s_lshl_b32 s74, s74, 7
    s_and_b32 s75, s{S_WAVE}, 1
    s_lshl_b32 s75, s75, 3
    s_add_u32 s74, s74, s75
    v_add_u32 v10, s74, v10
    v_and_b32 v11, 1, v0
    v_lshlrev_b32 v12, 2, v11
    v_lshlrev_b32 v11, 4, v11
    v_lshl_add_u32 v11, v3, 5, v11        ; v11
""")
    if cfg.oplay == 2:
        g(f"""    ; OP address: (cbk*64+rb)*1024 + (b*32 + 8w + 4ct + g')*16 ; lanes j<4: b=j&1, ct=(j>>1)&1
    v_and_b32 v13, 1, v0
    v_lshlrev_b32 v13, 9, v13             ; b*512
    v_bfe_u32 v14, v0, 1, 1               ; ct
    v_lshl_add_u32 v13, v14, 6, v13
    v_lshl_add_u32 v13, v3, 4, v13        ; + g'*16
    s_lshl_b32 s76, s{S_CBK}, 6
    s_add_u32 s76, s76, s{S_RB}
    s_lshl_b32 s76, s76, 10
    s_lshl_b32 s77, s{S_WAVE}, 7
    s_add_u32 s76, s76, s77
    s_add_u32 s76, s76, {WS_OP}""")
    else:
        g(f"""    ; OP address: Q*1024 + rb*16, Q = b*128 + cbk*32 + 8w + 4ct + g'
    v_and_b32 v13, 1, v0
    v_lshlrev_b32 v13, 17, v13            ; b*128*1024
    v_bfe_u32 v14, v0, 1, 1               ; ct
    v_lshl_add_u32 v13, v14, 12, v13      ; 4ct*1024
    v_lshl_add_u32 v13, v3, 10, v13       ; g'*1024
    s_lshl_b32 s76, s{S_CBK}, 15          ; cbk*32*1024
    s_lshl_b32 s77, s{S_WAVE}, 13         ; 8w*1024
    s_add_u32 s76, s76, s77
    s_lshl_b32 s77, s{S_RB}, 4
    s_add_u32 s76, s76, s77
    s_add_u32 s76, s76, {WS_OP}""")
    g(f"""    s_mov_b32 s54, 0xcccccccc
    s_mov_b32 s55, 0xcccccccc
    s_mov_b32 s56, 0x000f000f             ; lanes j<4
    s_mov_b32 s57, 0x000f000f
    s_mov_b32 s78, 0x01010101             ; lanes s8==0
    s_mov_b32 s79, 0x01010101""")
    for r in range(96, 112): g(f"    v_mov_b32 v{r}, 0")
    g.poll([f"buffer_load_dwordx4 v[32:35], v8, {srd(S_WS)}, s60 offen sc1",
            f"buffer_load_dwordx4 v[36:39], v8, {srd(S_WS)}, s61 offen sc1"], [32, 36], 48, mode="sum", tmp=49, sleep=cfg.sleep2,
           dual=([72, 73], [60, 61], D_AP, cfg.na2), nk=12, masked=cfg.mask2)
    g.stamp(6)
    g("    v_max_f32 v48, v34, v38")
    g("""    v_lshlrev_b32 v50, 16, v32
    v_and_b32 v51, 0xffff0000, v32""")
    g(f"    v_max_f32_dpp v48, v48, v48 {DPP8[0]} row_mask:0xf bank_mask:0xf")
    g("""    v_lshlrev_b32 v52, 16, v33
    v_and_b32 v53, 0xffff0000, v33""")
    g(f"    v_max_f32_dpp v48, v48, v48 {DPP8[1]} row_mask:0xf bank_mask:0xf")
    g("""    v_lshlrev_b32 v54, 16, v36
    v_and_b32 v55, 0xffff0000, v36""")
    g(f"    v_max_f32_dpp v48, v48, v48 {DPP8[2]} row_mask:0xf bank_mask:0xf")
    g("""    v_lshlrev_b32 v56, 16, v37
    v_and_b32 v57, 0xffff0000, v37
    v_sub_f32 v40, v34, v48
    v_sub_f32 v44, v38, v48
    v_exp_f32 v40, v40
    v_exp_f32 v44, v44
    v_mul_f32 v32, v40, v50
    v_mul_f32 v33, v40, v51
    v_mul_f32 v34, v40, v52
    v_mul_f32 v35, v40, v53
    v_add_f32 v49, v40, v44
    v_fmac_f32 v32, v44, v54
    v_fmac_f32 v33, v44, v55
    v_fmac_f32 v34, v44, v56
    v_fmac_f32 v35, v44, v57""")
    for dp in DPP8:
        for r in (49, 32, 33, 34, 35):
            g(f"    v_add_f32_dpp v{r}, v{r}, v{r} {dp} row_mask:0xf bank_mask:0xf")
    g(f"""    v_rcp_f32 v49, v49
    v_mul_f32 v32, v32, v49
    v_mul_f32 v33, v33, v49
    v_mul_f32 v34, v34, v49
    v_mul_f32 v35, v35, v49
    v_cvt_pk_bf16_f32 v32, v32, v33
    v_cvt_pk_bf16_f32 v33, v34, v35
    s_mov_b64 exec, s[78:79]
    ds_write_b64 v10, v[32:33] offset:{L_O}
    s_mov_b64 exec, -1
    s_waitcnt lgkmcnt(0)
    s_barrier
    ds_read_b128 v[32:35], v11 offset:{L_O}
    ds_read_b128 v[36:39], v11 offset:{L_O + 128}""")
    for ks in range(2):
        for d in range(2):
            for h in range(2):
                r = 64 + (ks*2 + d)*4 + 2*h
                g(f"    ds_read_b64_tr_b16 v[{r}:{r+1}], v{20+d} offset:{(32*ks + 16*h)*256}")
    g(f"    ds_read_b128 v[40:43], v11 offset:{L_H}")
    for d in range(2):
        for h in range(2):
            r = 80 + d*4 + 2*h
            g(f"    ds_read_b64_tr_b16 v[{r}:{r+1}], v{20+d} offset:{L_W2 - L_WO + 16*h*256}")
    g(f"""    s_waitcnt lgkmcnt(11)
    v_mfma_f32_16x16x32_bf16 v[96:99], v[64:67], v[32:35], v[96:99]
    ds_read_b32 v30, v12 offset:{L_GATE}
    s_waitcnt lgkmcnt(10)
    v_mfma_f32_16x16x32_bf16 v[100:103], v[68:71], v[32:35], v[100:103]
    s_waitcnt lgkmcnt(8)
    v_mfma_f32_16x16x32_bf16 v[96:99], v[72:75], v[36:39], v[96:99]
    s_waitcnt lgkmcnt(6)
    v_mfma_f32_16x16x32_bf16 v[100:103], v[76:79], v[36:39], v[100:103]
    s_waitcnt lgkmcnt(3)
    v_mfma_f32_16x16x32_bf16 v[104:107], v[80:83], v[40:43], v[104:107]
    s_waitcnt lgkmcnt(1)
    v_mfma_f32_16x16x32_bf16 v[108:111], v[84:87], v[40:43], v[108:111]
    s_waitcnt lgkmcnt(0)
    v_sub_f32 v31, 1.0, v30
    v_cndmask_b32 v96, v96, v100, s[54:55]
    v_cndmask_b32 v97, v97, v101, s[54:55]
    v_cndmask_b32 v98, v98, v102, s[54:55]
    v_cndmask_b32 v99, v99, v103, s[54:55]
    v_mul_f32 v96, v96, v30
    v_mul_f32 v97, v97, v30
    v_mul_f32 v98, v98, v30
    v_mul_f32 v99, v99, v30
    v_cndmask_b32 v104, v104, v108, s[54:55]
    v_cndmask_b32 v105, v105, v109, s[54:55]
    v_cndmask_b32 v106, v106, v110, s[54:55]
    v_cndmask_b32 v107, v107, v111, s[54:55]
    v_fmac_f32 v96, v104, v31
    v_fmac_f32 v97, v105, v31
    v_fmac_f32 v98, v106, v31
    v_fmac_f32 v99, v107, v31""")
    for k in range(4):
        g(f"    v_bfi_b32 v{96+k}, s{S_FF}, v{16+k}, v{96+k}")
    g(f"""    s_mov_b64 exec, s[56:57]
    buffer_store_dwordx4 v[96:99], v13, {srd(S_WS)}, s76 offen sc1
    {f"s_add_u32 s77, s76, {D_OP}" if cfg.opa else ""}
    {f"buffer_store_dwordx4 v[96:99], v13, {srd(S_WS)}, s77 offen" if cfg.opa else ""}
    s_mov_b64 exec, -1""")
    g.stamp(7)
    g(f"""    s_cmp_ge_u32 s{S_WAVE}, {cfg.npoll3}
    s_cbranch_scc1 L_stampout""")
    if cfg.npoll3 > 1:
        for w in range(1, cfg.npoll3):
            lab = g.label("Lstg")
            g(f"""    s_cmp_lt_u32 s{S_WAVE}, {w}
    s_cbranch_scc1 {lab}
    s_sleep {cfg.stag3}
{lab}:""")
    g(f"""    ; Q = G*8 + (j&7), G = (j>>3)*8 + hkv   (G = b*16 + cbk*4 + qh)
    s_lshr_b32 s66, s{S_J}, 3
    s_lshl_b32 s66, s66, 3
    s_add_u32 s66, s66, s{S_HKV}
    s_lshl_b32 s66, s66, 3
    s_and_b32 s67, s{S_J}, 7
    s_add_u32 s66, s66, s67
""")
    if cfg.oplay == 2:
        g(f"""    s_bfe_u32 s72, s66, 0x20005           ; cbk
    s_lshl_b32 s72, s72, 16
    s_lshr_b32 s73, s66, 7
    s_lshl_b32 s73, s73, 9
    s_add_u32 s72, s72, s73
    s_and_b32 s73, s66, 31
    s_lshl_b32 s73, s73, 4
    s_add_u32 s72, s72, s73
    s_add_u32 s72, s72, {WS_OP}
    v_lshlrev_b32 v6, 10, v0""")
    else:
        g(f"""    s_lshl_b32 s72, s66, 10
    s_add_u32 s72, s72, {WS_OP}
    v_lshlrev_b32 v6, 4, v0""")
    if cfg.outtouch == 2:
        g(f"""    v_mov_b32 v7, 0
    s_mov_b64 exec, 1
    buffer_load_dword v8, v7, {srd(S_OUT)}, 0 offen
    s_mov_b64 exec, -1""")
    if cfg.opa:
        g(f"""    v_lshrrev_b32 v7, 3, v0
    v_cmp_eq_u32 vcc, s{S_HKV}, v7
    v_add_u32 v7, {D_OP}, v6
    v_cndmask_b32 v7, v6, v7, vcc""")
        E = g.label("Lo3e"); L = g.label("Lo3")
        def chk():
            g(f"""    s_waitcnt vmcnt(0)
    v_xor_b32 v32, s{S_T0}, v32
    v_xor_b32 v33, s{S_T0+1}, v33
    v_xor_b32 v34, s{S_T0+2}, v34
    v_xor_b32 v35, s{S_T0+3}, v35
    v_or3_b32 v48, v32, v33, v34
    v_or_b32 v48, v48, v35
    v_and_b32 v48, 0xff, v48
    v_cmp_ne_u32 vcc, 0, v48
    s_and_b64 exec, exec, vcc
    s_cbranch_scc0 {E}""")
        g(f"""    s_lshl_b32 s74, s{S_HKV}, 9
    s_add_u32 s74, s74, {WS_LF}
    s_lshl_b32 s75, s{S_J}, 4
    s_add_u32 s75, s75, s74
    v_mov_b32 v40, s{S_TAG}
    v_mov_b32 v41, 0
    v_and_b32 v42, 31, v0
    v_lshlrev_b32 v42, 4, v42
    s_mov_b64 exec, 1
    buffer_store_dword v40, v41, {srd(S_WS)}, s75 offen
    s_mov_b64 exec, -1""")
        g(f"    buffer_load_dwordx4 v[32:35], v7, {srd(S_WS)}, s72 offen sc1")
        chk()
        g("    s_mov_b64 s[68:69], exec\n    s_mov_b64 exec, -1")
        if cfg.opa == 1:
            LL = g.label("Llf"); EE = g.label("Llfe")
            g(f"""    s_mov_b32 s101, {cfg.lfmax}
{LL}:
    buffer_load_dword v43, v42, {srd(S_WS)}, s74 offen sc1
    s_waitcnt vmcnt(0)
    v_cmp_ne_u32 vcc, s{S_TAG}, v43
    s_cbranch_vccz {EE}
    s_sub_u32 s101, s101, 1
    s_cmp_gt_i32 s101, 0
    s_cbranch_scc1 {LL}
{EE}:""")
        g(f"""    s_mov_b64 exec, s[68:69]
    s_mov_b32 s101, {cfg.spin_glb}
{L}:
    s_cmp_lt_u32 s101, {cfg.spin_glb - cfg.na3}
    s_cbranch_scc0 {L}_a
    v_mov_b32 v7, v6
{L}_a:
    buffer_load_dwordx4 v[32:35], v7, {srd(S_WS)}, s72 offen sc1""")
        chk()
        if cfg.sleep3: g(f"    s_sleep {cfg.sleep3}")
        g(f"""    s_sub_u32 s101, s101, 1
    s_cmp_gt_i32 s101, 0
    s_cbranch_scc1 {L}
{E}:
    s_mov_b64 exec, -1""")
    else:
        if cfg.lflag:
            L = g.label("Llf"); E = g.label("Llfe")
            g(f"""    s_lshl_b32 s74, s{S_HKV}, 9
        s_add_u32 s74, s74, {WS_LF}
        s_lshl_b32 s75, s{S_J}, 4
        s_add_u32 s75, s75, s74
        v_mov_b32 v40, s{S_TAG}
        v_mov_b32 v41, 0
        v_and_b32 v42, 31, v0
        v_lshlrev_b32 v42, 4, v42
        s_mov_b64 exec, 1
        buffer_store_dword v40, v41, {srd(S_WS)}, s75 offen
        s_mov_b64 exec, -1
        s_mov_b32 s101, {cfg.lfmax}
    {L}:
        buffer_load_dword v43, v42, {srd(S_WS)}, s74 offen sc1
        s_waitcnt vmcnt(0)
        v_cmp_ne_u32 vcc, s{S_TAG}, v43
        s_cbranch_vccz {E}
        s_sub_u32 s101, s101, 1
        s_cmp_gt_i32 s101, 0
        s_cbranch_scc1 {L}
    {E}:""")
        if cfg.pre3: g(f"    s_sleep {cfg.pre3}")
        g.poll([f"buffer_load_dwordx4 v[32:35], v6, {srd(S_WS)}, s72 offen sc1"], [32], 48, sleep=cfg.sleep3, nk=13, masked=cfg.mask3)
    g.stamp(8)
    g(f"""    v_permlane32_swap_b32 v32, v34
    v_permlane32_swap_b32 v33, v35
    v_add_f32 v32, v32, v34
    v_add_f32 v33, v33, v35
    v_permlane16_swap_b32 v32, v33
    v_add_f32 v32, v32, v33""")
    for k in (8, 4, 2, 1):
        g(f"    v_add_f32_dpp v32, v32, v32 row_ror:{k} row_mask:0xf bank_mask:0xf")
    g(f"""    v_cvt_pk_bf16_f32 v32, v32, v32
    v_lshlrev_b32 v6, 1, v3               ; row*2
    s_lshl_b32 s72, s66, 3
    v_cmp_eq_u32 vcc, 0, v2
    s_and_saveexec_b64 s[70:71], vcc
    buffer_store_short v32, v6, {srd(S_OUT)}, s72 offen {cfg.outflag}
    s_cmp_eq_u32 s2, 0
    s_cbranch_scc0 L_noep
    s_mov_b64 exec, 1
    v_mov_b32 v7, s{S_TAG}
    v_mov_b32 v8, 0
    buffer_store_dword v7, v8, {srd(S_WS)}, 0 offen
L_noep:
    s_mov_b64 exec, s[70:71]""")
    if cfg.dbgst:
        g(f"""    s_cmp_lt_u32 s2, 8
    s_cbranch_scc0 L_nodbg
    s_memrealtime s[92:93]
    s_waitcnt lgkmcnt(0)
    v_mov_b32 v7, s94
    v_mov_b32 v8, s92
    s_lshl_b32 s72, s2, 2
    v_mov_b32 v9, 0
    s_mov_b64 exec, 1
    buffer_store_dword v7, v9, s[88:91], s72 offen
    buffer_store_dword v8, v9, s[88:91], s72 offen offset:32
    s_mov_b64 exec, -1
L_nodbg:""")
    g.stamp(9)
    g("L_stampout:")
    if cfg.stamps: stamp_out(g)
    g("    s_endpgm")
    g.a = sec["helper"]
    g("L_helper:")
    srd_load(g, ["gw", "w1"]); srd_const(g, ["x", "gw", "w1", "ws"])
    lane_regs(g); common_rest(g, cfg)
    g(f"""    s_mul_i32 s59, s2, 2341
    s_lshr_b32 s59, s59, 16               ; ks8 = c/28
    s_mul_i32 s60, s59, 28
    s_sub_u32 s60, s2, s60                ; fb
    s_lshl_b32 s61, s59, 6
    s_mul_i32 s62, s61, 3584
    s_lshl_b32 s63, s60, 7
    s_add_u32 s62, s62, s63               ; w1 soffset
    v_lshrrev_b32 v5, 3, v0               ; r8
    v_and_b32 v6, 7, v0
    v_lshlrev_b32 v6, 4, v6
    v_mul_u32_u24 v7, {8*3584}, v5
    v_add_u32 v7, v7, v6
    v_lshlrev_b32 v9, 4, v5               ; x voffset = 8*r8*2
    s_lshl_b32 s64, s61, 1
    v_lshlrev_b32 v11, 4, v0
""")
    if cfg.contig & 2:
        g(f"""    s_mul_i32 s62, s2, 7168
    v_lshlrev_b32 v7, 4, v0""")
    g(f"""
    s_waitcnt lgkmcnt(0)
    s_load_dword s{S_TAG}, s[{S_WS}:{S_WS+1}], 0x0
    s_barrier
    buffer_load_dwordx4 v[112:115], v11, {srd(S_X)}, 0 offen
    buffer_load_dwordx4 v[116:119], v11, {srd(S_X)}, 0 offen offset:1024
    buffer_load_dwordx4 v[120:123], v11, {srd(S_GW)}, 0 offen
    buffer_load_dwordx4 v[20:23], v9, {srd(S_X)}, s64 offen
    buffer_load_dwordx4 v[28:31], v9, {srd(S_X)}, s64 offen offset:1024""")
    for t in range(8):
        g(f"    buffer_load_dwordx4 v[{64+4*t}:{67+4*t}], v7, {srd(S_W1)}, s62 offen{NT}")
        if t < 7: g(f"    s_add_u32 s62, s62, {1024 if cfg.contig & 2 else 3584}")
    selectors(g); tags(g)
    g(f"""    s_mul_i32 s72, s59, {2*1792*4}
    s_lshl_b32 s73, s60, 8
    s_add_u32 s72, s72, s73
    s_add_u32 s72, s72, {WS_HP}
    v_lshrrev_b32 v4, 5, v0
    v_mul_u32_u24 v4, {1792*4}, v4        ; b*1792*4""")
    pub_addr(g)
    proj(g, 8, 20, 28, 2)
    g(f"""    s_cmp_ge_u32 s2, 224
    s_cbranch_scc1 L_nohpub
    s_mov_b64 exec, s[70:71]
    buffer_store_dwordx4 v[36:39], v4, {srd(S_WS)}, s72 offen sc1
    s_mov_b64 exec, -1
L_nohpub:""")
    g.stamp(2)
    for b in range(2):
        acc = 44 + b
        g(f"    v_mov_b32 v{acc}, 0")
        for r in range(4):
            xs = 112 + 4*b + r; gs = 120 + r
            g(f"""    v_lshlrev_b32 v46, 16, v{xs}
    v_lshlrev_b32 v47, 16, v{gs}
    v_and_b32 v48, 0xffff0000, v{xs}
    v_and_b32 v49, 0xffff0000, v{gs}
    v_mul_f32 v46, v46, v47
    v_mul_f32 v48, v48, v49
    v_cvt_pk_bf16_f32 v46, v46, v48
    v_lshlrev_b32 v47, 16, v46
    v_and_b32 v48, 0xffff0000, v46
    v_add_f32 v{acc}, v{acc}, v47
    v_add_f32 v{acc}, v{acc}, v48""")
    for k in (8, 4, 2, 1):
        g(f"""    v_add_f32_dpp v44, v44, v44 row_ror:{k} row_mask:0xf bank_mask:0xf
    v_add_f32_dpp v45, v45, v45 row_ror:{k} row_mask:0xf bank_mask:0xf""")
    for sw in ("v_permlane16_swap_b32", "v_permlane32_swap_b32"):
        g(f"""    v_mov_b32 v46, v44
    v_mov_b32 v47, v45
    {sw} v44, v46
    {sw} v45, v47
    v_add_f32 v44, v44, v46
    v_add_f32 v45, v45, v47""")
    g(f"""    v_cmp_gt_u32 vcc, 32, v0
    v_cndmask_b32 v44, v45, v44, vcc
    v_cvt_pk_bf16_f32 v44, v44, v44
    v_lshlrev_b32 v44, 16, v44
    v_mul_f32 v44, 0xbfb8aa3b, v44
    v_exp_f32 v44, v44
    v_add_f32 v44, 1.0, v44
    v_rcp_f32 v44, v44                    ; g
    v_lshrrev_b32 v4, 5, v0
    v_lshlrev_b32 v4, 2, v4
    ds_write_b32 v4, v44 offset:{L_GATE}
    v_and_b32 v8, 7, v0
    v_mul_u32_u24 v8, {2*1792*4}, v8
    v_bfe_u32 v9, v0, 3, 1
    v_mul_u32_u24 v10, {1792*4}, v9
    v_add_u32 v8, v8, v10
    v_lshl_add_u32 v8, v3, 4, v8          ; + qq*16
    v_add_u32 v11, 64, v8
    v_cmp_eq_u32 vcc, 3, v3
    v_cndmask_b32 v11, v11, v8, vcc
    s_mul_i32 s72, s{S_RB}, {28*4}
    s_add_u32 s72, s72, {WS_HP}""")
    if cfg.streamonly:
        g("    s_waitcnt vmcnt(0)\n    s_endpgm")
    g.wait_prog(cfg.hstart)
    g.poll([f"buffer_load_dwordx4 v[64:67], v8, {srd(S_WS)}, s72 offen sc1",
            f"buffer_load_dwordx4 v[68:71], v11, {srd(S_WS)}, s72 offen sc1"], [64, 68], 72, sleep=cfg.sleeph, nk=11)
    for dp in DPP8:
        for r in range(64, 72):
            g(f"    v_add_f32_dpp v{r}, v{r}, v{r} {dp} row_mask:0xf bank_mask:0xf")
    for q in range(2):
        r = 64 + 4*q
        g(f"""    v_cvt_pk_bf16_f32 v{r}, v{r}, v{r+1}
    v_cvt_pk_bf16_f32 v{r+2}, v{r+2}, v{r+3}
    v_and_b32 v{r+1}, 0xffff0000, v{r}
    v_lshlrev_b32 v{r}, 16, v{r}
    v_and_b32 v{r+3}, 0xffff0000, v{r+2}
    v_lshlrev_b32 v{r+2}, 16, v{r+2}""")
        for k in range(4):
            g(f"""    v_mul_f32 v{80+k}, 0xbfb8aa3b, v{r+k}
    v_exp_f32 v{80+k}, v{80+k}
    v_add_f32 v{80+k}, 1.0, v{80+k}
    v_rcp_f32 v{80+k}, v{80+k}
    v_mul_f32 v{r+k}, v{r+k}, v{80+k}""")
        g(f"""    v_cvt_pk_bf16_f32 v{r}, v{r}, v{r+1}
    v_cvt_pk_bf16_f32 v{r+1}, v{r+2}, v{r+3}""")
    g(f"""    v_lshlrev_b32 v4, 4, v9
    v_lshl_add_u32 v4, v3, 5, v4          ; qq*32 + b*16
    s_mov_b32 s70, 0x01010101
    s_mov_b32 s71, 0x01010101
    s_mov_b64 exec, s[70:71]
    ds_write_b64 v4, v[64:65] offset:{L_H}
    s_mov_b32 s71, 0x00000101
    s_mov_b64 exec, s[70:71]
    ds_write_b64 v4, v[68:69] offset:{L_H + 8}
    s_mov_b64 exec, -1
    v_mov_b32 v5, 1
    v_mov_b32 v4, 0
    ds_write_b32 v4, v5 offset:{L_HF}""")
    if cfg.dirty:
        g(f"""    s_mul_i32 s72, s2, {cfg.dirty*1024}
    s_add_u32 s72, s72, 0x800000
    v_lshlrev_b32 v6, 4, v0""")
        for k in range(cfg.dirty):
            g(f"    buffer_store_dwordx4 v[64:67], v6, {srd(S_WS)}, s72 offen\n    s_add_u32 s72, s72, 1024")
    if cfg.wtouch:
        srd_load(g, ["wo", "w2", "out"]); srd_const(g, ["wo", "w2", "out"])
        g(f"""    s_lshl_b32 s60, s{S_RB}, 16
    s_mul_i32 s62, s{S_RB}, {28*1024}
    s_waitcnt lgkmcnt(0)
    s_mov_b64 exec, 1
    buffer_load_dword v6, v4, {srd(S_WO)}, s60 offen
    buffer_load_dword v7, v4, {srd(S_W2)}, s62 offen""")
        if cfg.wtouch == 2: g(f"    buffer_load_dword v8, v4, {srd(S_OUT)}, 0 offen")
        g("    s_mov_b64 exec, -1")
    if cfg.outtouch == 1:
        g(f"""    s_mov_b64 exec, 1
    buffer_load_dword v6, v4, {srd(S_OUT)}, 0 offen
    s_mov_b64 exec, -1
    s_waitcnt vmcnt(0)""")
    g.stamp(14)
    if cfg.xbar: g("    s_waitcnt lgkmcnt(0)\n    s_barrier")
    if cfg.stamps: stamp_out(g)
    g("    s_endpgm")
    g.a = sec["ld_early"]
    srd_const(g, ["k"])
    lane_regs(g)
    g(f"""    s_lshr_b32 s52, s{S_J}, 4
    s_lshl_b32 s54, s52, 3
    s_add_u32 s54, s54, s{S_HKV}
    s_lshl_b32 s54, s54, 23
    s_and_b32 s53, s{S_J}, 15
    s_lshl_b32 s55, s53, {12 if cfg.strided else 16}
    s_add_u32 s54, s54, s55
    s_add_u32 s54, s54, {(32768-4096)*256}
    v_lshlrev_b32 v4, 8, v3
    v_xor_b32 v5, v3, v2
    v_lshl_add_u32 v20, v5, 4, v4""")
    for n in range(1, 4):
        g(f"""    v_xor_b32 v6, {4*n}, v5
    v_lshl_add_u32 v{20+n}, v6, 4, v4""")
    g(f"""    s_mul_i32 s56, s{S_J}, {cfg.rotmul}""")
    if cfg.rothkv:
        g(f"""    s_mul_i32 s57, s{S_HKV}, {cfg.rothkv}
    s_add_u32 s56, s56, s57""")
    g("    s_waitcnt lgkmcnt(0)")
    def loader_rest():
        g("    s_setprio 3")
        srd_load(g, ["v", "wo", "w2"]); srd_const(g, ["v", "wo", "w2"] + (["ws"] if cfg.stamps else []))
        common_rest(g, cfg)
        g(f"""    v_mov_b32 v10, 0
    ds_write_b32 v1, v10 offset:{L_PROG}
    ds_write_b32 v1, v10 offset:256
    ds_write_b32 v1, v10 offset:512
    v_lshlrev_b32 v5, 1, v3
    v_xor_b32 v5, v5, v2
    v_lshl_add_u32 v24, v5, 4, v4
    v_xor_b32 v25, 128, v24
    v_lshlrev_b32 v5, 4, v5
    v_lshl_add_u32 v26, v3, 10, v5
    v_xor_b32 v27, 128, v26               ; odd
    v_mov_b32 v12, 0
    v_mov_b32 v13, 0
    v_mov_b32 v14, 0
    v_mov_b32 v15, 0
    v_lshlrev_b32 v5, 4, v0
    ds_write_b128 v5, v[12:15] offset:{L_W2 + 7168}
    s_lshl_b32 s60, s{S_RB}, 16            ; 64*rb*1024
    s_lshl_b32 s61, s{S_CBK}, 8
    s_add_u32 s60, s60, s61               ; wo soffset
    s_mul_i32 s62, s{S_RB}, {28*1024}
    s_add_u32 s62, s62, s61               ; w2 soffset
    s_mul_i32 s65, s{S_RB}, {2*cfg.wrot}
""")
        if cfg.contig & 4:
            g(f"""    v_lshlrev_b32 v26, 4, v0
    v_mov_b32 v27, v26
    s_lshl_b32 s60, s2, 14
    s_mul_i32 s62, s2, 7168""")
        g(f"""    s_waitcnt lgkmcnt(0)
    s_barrier""")
        g.stamp(11)
    if cfg.earlyn == 0: loader_rest()
    kseq = [("k", t, n) for t in range(16) for n in range(4)]
    vseq = [("v", t, n) for t in range(16) for n in range(4)]
    wl = [("wo", n, 0) for n in range(16)]; w2l = [("w2", n, 0) for n in range(7)]
    wseq = (w2l + wl) if cfg.w2first else (wl + w2l)
    if cfg.order == "kvw": seq = kseq + vseq + wseq
    elif cfg.order == "mix": seq = kseq + vseq[:4*cfg.vk] + wseq[:cfg.wm] + vseq[4*cfg.vk:] + wseq[cfg.wm:]
    elif cfg.order == "spread":
        seq = list(kseq); wi = 0
        for t in range(16):
            seq += vseq[4*t:4*t+4]
            if t >= cfg.vk and wi < cfg.wm:
                n = -(-(cfg.wm - wi) // (16 - t)) if t < 15 else 0
                seq += wseq[wi:wi+n]; wi += n
        seq += wseq[wi:]
    else: seq = kseq + wseq + vseq
    N = len(seq)
    mval = {}
    kv = 0; wdone = 0
    for i, (kind, t, n) in enumerate(seq):
        ch = False
        if kind in ("k", "v") and n == 3: kv += 1; ch = True
        if i + 1 == N: wdone = 1; ch = True
        if ch: mval[i + 1] = (kv, wdone)
    def post(done):
        kv_, wd_ = mval[done]
        g(f"""    v_mov_b32 v10, {kv_}
    ds_write_b32 v1, v10 offset:{L_PROG}""")
        if done == N: g.stamp(3)
        if seq[done-1][0] == "k" and kv_ == 16: g.stamp(1)
        if seq[done-1][0] == "k" and kv_ in (1, 2, 4, 8): g.stamp({1: 4, 2: 5, 4: 6, 8: 7}[kv_])
        if seq[done-1][0] == "v" and kv_ in (17, 18, 20): g.stamp({17: 8, 18: 9, 20: 10}[kv_])
        if seq[done-1][0] == "v" and kv_ == 32: g.stamp(2)
    def win(i):
        k = seq[i][0]
        return cfg.wk if k == "k" else (cfg.wv if k == "v" else cfg.ww)
    miles = sorted(mval.keys())
    st = {"issued": 0, "done": 0}
    def advance(need):
        while st["done"] < need:
            nxt = min([need] + [m for m in miles if m > st["done"]])
            g(f"    s_waitcnt vmcnt({st['issued'] - nxt})")
            st["done"] = nxt
            if nxt in miles: post(nxt)
    for i, (kind, t, n) in enumerate(seq):
        if kind in ("k", "v") and n == 0:
            g(f"""    s_add_u32 s63, s56, {t}
    s_and_b32 s63, s63, 15
    s_lshl_b32 s63, s63, {16 if cfg.strided else 12}
    s_add_u32 s63, s63, s54""")
        elif kind == "wo":
            g(f"""    s_add_u32 s63, s65, {t}
    s_and_b32 s63, s63, 15
    s_lshl_b32 s64, s63, 10
    s_lshl_b32 s63, s63, {10 if cfg.contig & 4 else 12}
    s_add_u32 s63, s63, s60""")
        elif kind == "w2":
            g(f"    s_add_u32 s63, s62, {t*(1024 if cfg.contig & 4 else 4096)}")
        if cfg.wgate >= 0 and i == 128 + cfg.wgate:
            advance(128)
            L = g.label("Lwd"); E = g.label("Lwde")
            g(f"""    v_mov_b32 v11, 0
{L}:
    ds_read_b128 v[12:15], v11 offset:{L_PUB}
    s_waitcnt lgkmcnt(0)
    v_min_u32 v12, v12, v13
    v_min3_u32 v12, v12, v14, v15
    v_cmp_eq_u32 vcc, 0, v12
    s_cbranch_vccz {E}""")
            g.spin_tail(L)
            g(f"{E}:")
        advance(i + 1 - win(i))
        if kind in ("k", "v") and n == 0:
            g(f"    s_mov_b32 m0, {(L_K if kind == 'k' else L_V) + t*4096}")
            g("    s_nop 0")
        if kind == "k":
            g(f"    buffer_load_dwordx4 v{20+n}, {srd(S_K)}, s63 offen offset:{n*1024}{NT} lds")
        elif kind == "v":
            g(f"    buffer_load_dwordx4 v{24+(n&1)}, {srd(S_V)}, s63 offen offset:{n*1024}{NT} lds")
        elif kind == "wo":
            g(f"""    s_add_u32 m0, s64, {L_WO}
    s_nop 0
    buffer_load_dwordx4 v{26+(t&1)}, {srd(S_WO)}, s63 offen{cfg.wnt} lds""")
        else:
            g(f"""    s_mov_b32 m0, {L_W2 + t*1024}
    s_nop 0
    buffer_load_dwordx4 v{26+(t&1)}, {srd(S_W2)}, s63 offen{cfg.wnt} lds""")
        st["issued"] += 1
        if cfg.earlyn > 0 and i == cfg.earlyn - 1:
            g("    s_branch L_loader_main")
            g.a = sec["ld_main"]
            if cfg.align4k: g(".p2align 12")
            g("L_loader_main:")
            loader_rest()
    if cfg.buddy:
        g(f"""    s_xor_b32 s66, s{S_J}, {cfg.buddy}
    s_lshr_b32 s67, s66, 2
    s_lshl_b32 s68, s{S_HKV}, 3
    s_add_u32 s67, s67, s68               ; rb'
    s_and_b32 s68, s66, 3
    s_lshl_b32 s68, s68, 8                ; cbk'*256
    s_lshl_b32 s69, s67, 16
    s_add_u32 s69, s69, s68               ; wo soffset
    s_mul_i32 s70, s67, {28*1024}
    s_add_u32 s70, s70, s68               ; w2 soffset
    v_lshlrev_b32 v28, 10, v0             ; row l
    v_lshrrev_b32 v29, 1, v0
    v_min_u32 v29, 27, v29
    v_lshlrev_b32 v29, 10, v29
    v_and_b32 v30, 1, v0
    v_lshl_add_u32 v29, v30, 7, v29
    buffer_load_dword v31, v29, {srd(S_W2)}, s70 offen
    buffer_load_dword v32, v28, {srd(S_WO)}, s69 offen
    buffer_load_dword v33, v28, {srd(S_WO)}, s69 offen offset:128""")
        st["issued"] += 3
    advance(N)
    if cfg.xbar: g("    s_barrier")
    if cfg.stamps: stamp_out(g)
    g("""    s_endpgm
L_end:
    s_endpgm""")
    g.a = main
    for k in ("ld_early", "p1q", "compute", "others", "helper", "ld_main"):
        g(sec[k].text())
    g(f""".section .rodata,"a"
.p2align 6
.amdhsa_kernel {KNAME}
  .amdhsa_next_free_vgpr {152 if cfg.stamps else 144}
  .amdhsa_next_free_sgpr 102
  .amdhsa_accum_offset {152 if cfg.stamps else 144}
  .amdhsa_group_segment_fixed_size 0
  .amdhsa_kernarg_size 96
  .amdhsa_user_sgpr_count 2
  .amdhsa_user_sgpr_kernarg_segment_ptr 1
  .amdhsa_system_sgpr_workgroup_id_x 1
.end_amdhsa_kernel
""")
    open(path, "w").write(hazard.fix(g.a.text(), True))

def parse(cfg, args):
    for a in args:
        k, v = a.split("=")
        cur = getattr(cfg, k)
        if isinstance(cur, bool): v = v in ("1", "True", "true")
        elif isinstance(cur, int): v = int(v)
        elif k in ("nt", "wnt"): v = " " + v if v else ""
        setattr(cfg, k, v)
    return cfg

if __name__ == "__main__":
    gen(parse(Cfg(), sys.argv[2:]), sys.argv[1])
```

```python
import sys, math, struct
from asmlib import A
import hazard

KNAME = "gated_mix__sliding_block_cached__dense_activation_silu__decode_kernel"

class Cfg:
    wk = 24
    wv = 24
    ww = 24
    qstart = 4
    hstart = 20
    stamps = False
    spin_lds = 1 << 20
    spin_glb = 1 << 14
    nt = " nt"
    rotmul = 1
    rothkv = 0
    wrot = 1
    sleep1 = 0
    sleeph = 4
    sleep2 = 1
    sleep3 = 1
    na1 = 4
    na2 = 8
    w2first = True
    dbgst = False
    pretouch = False
    wdelay = False
    order = 'kvw'
    earlyld = False
    earlyn = 12
    qk = 3
    npoll3 = 1
    pre3 = 0
    wgate = -1
    align4k = True
    gatemask = 0
    opa = 0
    na3 = 6
    wtouch = 0
    xbar = False
    contig = 0
    lflag = 1
    lfmax = 10
    wnt = ' nt'
    buddy = 0
    mask2 = False
    mask3 = False
    dirty = 0
    opre = False
    outtouch = 0
    aflag = ''
    outflag = ''
    strided = False
    oplay = 2
    vk = 12
    wm = 19
    streamonly = False
    stag3 = 2
    tlb = False
    pollfirst = True

WS_QP, WS_HP, WS_OP, WS_AP = 0x10000, 0x50000, 0x70000, 0x100000
D_OP = 0x50000
WS_LF = 0xB0000
D_QP, D_AP = 0x20000, 0x80000
WS_STAMP = 0x4000000

L_PROG, L_S2, L_HF, L_GATE, L_PUB, L_MX, L_LW, L_H = 0x000, 0x100, 0x110, 0x120, 0x130, 0x140, 0x180, 0x1C0
L_WF = 0x118
L_O = 0xE80
L_QF = 0x11C
L_Q, L_P, L_WO, L_W2, L_K, L_V = 0x280, 0x680, 0x1000, 0x5000, 0x7000, 0x17000
LDS_TOTAL = 0x27000
L_P3P = L_K
NW = 6

S_X, S_K, S_V, S_WQ, S_WO, S_W1, S_W2, S_GW, S_OUT, S_WS = 8, 12, 16, 20, 24, 28, 32, 36, 40, 44
def srd(b): return f"s[{b}:{b+3}]"
S_WAVE = 3
S_HKV, S_J = 48, 49
S_RB, S_CBK = 50, 51
S_T0 = 80
S_TAG = 84
S_PROG = 85
S_LIM = 86
S_FF = 87
W_P1Q, W_HELP, W_LOAD = 2, 4, 5
TAB = {'x': (S_X, 0, 2048), 'k': (S_K, 8, 1 << 27), 'v': (S_V, 16, 1 << 27), 'wq': (S_WQ, 24, 1 << 22), 'wo': (S_WO, 32, 1 << 22),
       'w1': (S_W1, 48, 512*1792*2), 'w2': (S_W2, 56, 512*1792*2), 'gw': (S_GW, 64, 1024), 'out': (S_OUT, 72, 2048), 'ws': (S_WS, 88, 1 << 29)}
VSEL = 136
VST = 144

def f32bits(x): return struct.unpack("<I", struct.pack("<f", x))[0]
DPP8 = ("quad_perm:[1,0,3,2]", "quad_perm:[2,3,0,1]", "row_half_mirror")

class G:
    def __init__(self, cfg):
        self.c = cfg; self.a = A(); self.lab = 0
    def __call__(self, s): self.a(s)
    def label(self, p="L"):
        self.lab += 1; return f"{p}_{self.lab}"
    def stamp(self, k):
        if self.c.stamps:
            self(f"""    s_memrealtime s[98:99]
    s_waitcnt lgkmcnt(0)
    v_writelane_b32 v{VST}, s98, {k}""")
    def note(self, k, sreg):
        if self.c.stamps:
            self(f"    v_writelane_b32 v{VST}, s{sreg}, {k}")
    def spin_tail(self, L):
        self(f"""    s_sub_u32 s{S_LIM}, s{S_LIM}, 1
    s_cmp_gt_i32 s{S_LIM}, 0
    s_cbranch_scc1 {L}""")
    def wait_prog(self, need, vtmp=10):
        L = self.label("Lp"); E = self.label("Lpe")
        self(f"""    s_cmp_ge_u32 s{S_PROG}, {need}
    s_cbranch_scc1 {E}
{L}:
    ds_read_b32 v{vtmp}, v1 offset:{L_PROG}
    s_waitcnt lgkmcnt(0)
    v_readfirstlane_b32 s{S_PROG}, v{vtmp}
    s_cmp_ge_u32 s{S_PROG}, {need}
    s_cbranch_scc1 {E}""")
        self.spin_tail(L)
        self(f"{E}:")
    def wait_nonzero4(self, dst, vaddr, off, tmp):
        L = self.label("Ls"); E = self.label("Lse")
        self(f"""{L}:
    ds_read_b128 v[{dst}:{dst+3}], v{vaddr} offset:{off}
    s_waitcnt lgkmcnt(0)
    v_min_u32 v{tmp}, v{dst}, v{dst+1}
    v_min3_u32 v{tmp}, v{tmp}, v{dst+2}, v{dst+3}
    v_cmp_eq_u32 vcc, 0, v{tmp}
    s_cbranch_vccz {E}""")
        self.spin_tail(L)
        self(f"{E}:")
    def wait_flag(self, off, n, vtmp, vzero):
        L = self.label("Lf"); E = self.label("Lfe")
        if n == 1:
            rd = f"ds_read_b32 v{vtmp}, v{vzero} offset:{off}"; comb = ""
        else:
            rd = f"ds_read_b64 v[{vtmp}:{vtmp+1}], v{vzero} offset:{off}"; comb = f"    v_min_u32 v{vtmp}, v{vtmp}, v{vtmp+1}\n"
        self(f"""{L}:
    {rd}
    s_waitcnt lgkmcnt(0)
{comb}    v_cmp_eq_u32 vcc, 0, v{vtmp}
    s_cbranch_vccz {E}""")
        self.spin_tail(L)
        self(f"{E}:")
    def poll(self, loads, granules, bad, mode="low", sleep=0, tmp=None, dual=None, nk=None, masked=False):
        L = self.label("Lg"); E = self.label("Lge")
        self(f"    s_mov_b32 s101, {self.c.spin_glb}")
        self(f"{L}:")
        if dual:
            bases, tmps, delta, na = dual
            self(f"""    s_sub_u32 s100, {self.c.spin_glb - na}, s101
    s_cmp_ge_i32 s100, 0
    s_cselect_b32 s100, s101, 0
    s_and_b32 s100, s100, 1
    s_mul_i32 s100, s100, {delta}""")
            for bs, ts in zip(bases, tmps):
                self(f"    s_add_u32 s{ts}, s{bs}, s100")
        for ld in loads: self("    " + ld)
        self("    s_waitcnt vmcnt(0)")
        if mode == "low":
            for i, r in enumerate(granules):
                for k in range(4):
                    self(f"    v_xor_b32 v{r+k}, s{S_T0+k}, v{r+k}")
            for i, r in enumerate(granules):
                if i == 0:
                    self(f"    v_or3_b32 v{bad}, v{r}, v{r+1}, v{r+2}")
                    self(f"    v_or_b32 v{bad}, v{bad}, v{r+3}")
                else:
                    self(f"    v_or3_b32 v{bad}, v{bad}, v{r}, v{r+1}")
                    self(f"    v_or3_b32 v{bad}, v{bad}, v{r+2}, v{r+3}")
            self(f"    v_and_b32 v{bad}, 0xff, v{bad}")
        else:
            for i, r in enumerate(granules):
                t = bad if i == 0 else tmp
                self(f"    v_bitop3_b32 v{t}, v{r}, v{r+1}, v{r+2} bitop3:0x96")
                self(f"    v_bitop3_b32 v{t}, v{t}, v{r+3}, s{S_TAG} bitop3:0x96")
                if i: self(f"    v_or_b32 v{bad}, v{bad}, v{t}")
        if masked:
            self(f"""    v_cmp_ne_u32 vcc, 0, v{bad}
    s_and_b64 exec, exec, vcc
    s_cbranch_scc0 {E}""")
        else:
            self(f"""    v_cmp_ne_u32 vcc, 0, v{bad}
    s_cbranch_vccz {E}""")
        if sleep: self(f"    s_sleep {sleep}")
        self(f"""    s_sub_u32 s101, s101, 1
    s_cmp_gt_i32 s101, 0
    s_cbranch_scc1 {L}
{E}:""")
        if masked: self("    s_mov_b64 exec, -1")
        if nk is not None and self.c.stamps:
            self(f"    s_sub_u32 s100, {self.c.spin_glb}, s101")
            self.note(nk, 100)

def srd_load(g, names):
    for n in names:
        b, off, sz = TAB[n]
        g(f"    s_load_dwordx2 s[{b}:{b+1}], s[0:1], {off}")
def srd_const(g, names):
    for n in names:
        b, off, sz = TAB[n]
        g(f"    s_mov_b32 s{b+2}, {hex(sz)}")
        g(f"    s_mov_b32 s{b+3}, 0x20000")
def lane_regs(g):
    g("""    v_and_b32 v2, 15, v0                  ; v2 = l&15
    v_lshrrev_b32 v3, 4, v0               ; v3 = l>>4""")
def common_rest(g, cfg):
    g(f"""    v_lshlrev_b32 v1, 2, v0               ; v1 = lane*4
    s_lshr_b32 s{S_RB}, s{S_J}, 2
    s_lshl_b32 s{S_CBK}, s{S_HKV}, 3
    s_add_u32 s{S_RB}, s{S_RB}, s{S_CBK}
    s_and_b32 s{S_CBK}, s{S_J}, 3
    s_mov_b32 s{S_PROG}, 0
    s_mov_b32 s{S_LIM}, {cfg.spin_lds}
    s_mov_b32 s{S_FF}, 0xff""")
    if cfg.stamps: g(f"    v_mov_b32 v{VST}, 0")

def selectors(g):
    g(f"""    v_and_b32 v4, 1, v0                   ; e'&1
    v_bfe_u32 v5, v0, 1, 2                ; e'>>1
    v_mov_b32 v6, 0x0c0c0100
    v_mov_b32 v8, 0x01000c0c
    v_cmp_eq_u32 vcc, 1, v4
    v_cndmask_b32 v6, v6, v8, vcc
    v_mov_b32 v8, 0x0c0c0302
    v_mov_b32 v10, 0x03020c0c
    v_cndmask_b32 v8, v8, v10, vcc
    v_mov_b32 v10, 0x0c0c0c0c""")
    for r in range(4):
        g(f"""    v_cmp_eq_u32 vcc, {r}, v5
    v_cndmask_b32 v{VSEL+2*r}, v10, v6, vcc
    v_cndmask_b32 v{VSEL+1+2*r}, v10, v8, vcc""")

def tags(g):
    g(f"""    s_waitcnt lgkmcnt(0)
    s_add_u32 s{S_TAG}, s{S_TAG}, 0x01010101
    s_and_b32 s{S_T0}, s{S_TAG}, 0xff
    s_bfe_u32 s{S_T0+1}, s{S_TAG}, 0x80008
    s_bfe_u32 s{S_T0+2}, s{S_TAG}, 0x80010
    s_lshr_b32 s{S_T0+3}, s{S_TAG}, 24
    v_mov_b32 v16, s{S_T0}
    v_mov_b32 v17, s{S_T0+1}
    v_mov_b32 v18, s{S_T0+2}
    v_mov_b32 v19, s{S_T0+3}""")

def proj(g, n, x0, x1, nx):
    for r in range(128, 136): g(f"    v_mov_b32 v{r}, 0")
    g(f"    s_waitcnt vmcnt({n})")
    g.stamp(1)
    def build(t):
        base = 48 + (t & 1)*8
        for b, xb in ((0, x0), (1, x1)):
            for r in range(4):
                g(f"    v_perm_b32 v{base+4*b+r}, v{xb+(t>>1)}, v{xb+(t>>1)}, v{VSEL+2*r+(t&1)}")
    build(0)
    for t in range(n):
        if t + 1 < n: build(t + 1)
        base = 48 + (t & 1)*8
        g(f"    s_waitcnt vmcnt({n-1-t})")
        for b in range(2):
            g(f"    v_mfma_f32_16x16x32_bf16 v[{128+4*b}:{131+4*b}], v[{base+4*b}:{base+4*b+3}], v[{64+4*t}:{67+4*t}], v[{128+4*b}:{131+4*b}]")
    for k in range(4):
        g(f"    v_permlane32_swap_b32 v{128+k}, v{132+k}")
    for k in range(4):
        g(f"    v_add_f32_dpp v{36+k}, v{132+k}, v{128+k} row_ror:8 row_mask:0xf bank_mask:0xf")
    for k in range(4):
        g(f"    v_bfi_b32 v{36+k}, s{S_FF}, v{16+k}, v{36+k}")
def pub_addr(g):
    g("""    v_and_b32 v5, 7, v0
    v_lshl_add_u32 v4, v5, 5, v4          ; + cg*32
    v_bfe_u32 v5, v0, 4, 1
    v_lshl_add_u32 v4, v5, 4, v4          ; + half*16
    s_mov_b32 s70, 0x00ff00ff
    s_mov_b32 s71, 0x00ff00ff""")

def emit_w(g, cfg):
    g.wait_flag(L_WF, 1, 58, 11)
    g(f"""    ds_read_b128 v[80:83], v23 offset:{L_W2}
    ds_read_b128 v[84:87], v23 offset:{L_W2 + 4096}""")
    for t in range(4):
        g(f"    ds_read_b128 v[{64+4*t}:{67+4*t}], v22 offset:{L_WO + t*256}")
    lab = g.label("Lnw")
    g(f"""    s_waitcnt lgkmcnt(5)
    v_mfma_f32_16x16x32_bf16 v[108:111], v[96:99], v[80:83], v[108:111]
    s_waitcnt lgkmcnt(4)
    s_cmp_eq_u32 s{S_WAVE}, 3
    s_cbranch_scc1 {lab}
    v_mfma_f32_16x16x32_bf16 v[108:111], v[100:103], v[84:87], v[108:111]
{lab}:
    s_waitcnt lgkmcnt(0)""")

def stamp_out(g):
    g(f"""    s_waitcnt vmcnt(0) lgkmcnt(0)
    v_writelane_b32 v{VST}, s96, 0
    s_mul_i32 s72, s2, {NW}
    s_add_u32 s72, s72, s{S_WAVE}
    s_lshl_b32 s72, s72, 6
    s_add_u32 s72, s72, {WS_STAMP}
    s_mov_b32 exec_lo, 0xffff
    s_mov_b32 exec_hi, 0
    buffer_store_dword v{VST}, v1, {srd(S_WS)}, s72 offen
    s_waitcnt vmcnt(0)""")

def gen(cfg, path):
    g = G(cfg)
    NT = cfg.nt
    g(f"""; @launch grid=(256,1,1) block=({NW*64},1,1) lds={LDS_TOTAL}
;
; gated_mix(sliding-window GQA decode attention, SiLU FFN) - one fused launch, 256 workgroups (one per CU), 6 waves each.
;   workgroup c: hkv = c&7, j = c>>3 (b = j>>4, key split s = j&15)  -> 256 keys of K/V for 4 query heads
;   wave 5  loader : streams K, V (64 KiB each) and this workgroup's 64x128 wo / 28x128 w2 block into LDS by LDS-DMA,
;                    bounded number of loads in flight, progress word in LDS
;   waves 0,1 gather q (sum of 4 partials); waves 0-3: QK^T (MFMA), softmax with the true max over the 256 keys,
;            online-softmax combine, output projection (wo and w2 blocks), gate mix, publish partial outputs,
;   hand-offs: 16-byte granules carrying a per-launch tag (epoch word ws[0] + 0x01010101) or checksum; every granule is
;   validated on arrival.  Same-XCD consumers read a plain (L2) copy, a write-through copy is the placement-independent
.amdgcn_target "amdgcn-amd-amdhsa--gfx950"
.text
{".p2align 12" + chr(10) + ".fill 832, 4, 0xbf800000" if cfg.align4k else ""}
.globl {KNAME}
.p2align 8
.type {KNAME},@function
{KNAME}:
    s_cmp_ge_u32 s2, 256
    s_cbranch_scc1 L_end""")
    if cfg.stamps:
        g(f"    s_memrealtime s[96:97]")
    if cfg.dbgst:
        g(f"    s_memrealtime s[94:95]")
        g(f"    s_load_dwordx2 s[88:89], s[0:1], 80")
        g(f"    s_mov_b32 s90, 256")
        g(f"    s_mov_b32 s91, 0x20000")
    srd_load(g, ["k", "wq", "x", "ws", "out"])
    g(f"""    v_lshrrev_b32 v1, 6, v0
    s_and_b32 s{S_HKV}, s2, 7
    s_lshr_b32 s{S_J}, s2, 3
    v_readfirstlane_b32 s{S_WAVE}, v1
    v_and_b32 v0, 63, v0                  ; v0 = lane
    s_cmp_eq_u32 s{S_WAVE}, {W_P1Q}
    s_cbranch_scc1 L_p1q
    s_cmp_eq_u32 s{S_WAVE}, {W_LOAD}
    s_cbranch_scc0 L_others""")
    main = g.a
    sec = {k: A() for k in ("others", "p1q", "compute", "helper", "ld_early", "ld_main")}
    g.a = sec["others"]
    g(f"""L_others:
    s_cmp_eq_u32 s{S_WAVE}, {W_HELP}
    s_cbranch_scc1 L_helper""")
    srd_const(g, ["ws", "out"])
    lane_regs(g); common_rest(g, cfg)
    g(f"""    v_lshlrev_b32 v11, 4, v0              ; l*16
    s_waitcnt lgkmcnt(0)
    s_load_dword s{S_TAG}, s[{S_WS}:{S_WS+1}], 0x0
    s_barrier""")
    selectors(g); tags(g)
    g(f"""    s_cmp_eq_u32 s{S_WAVE}, 3
    s_cbranch_scc1 L_qwait""")
    if cfg.streamonly: g("    s_branch L_qwait")
    g(f"""    s_lshr_b32 s72, s{S_J}, 4              ; b
    s_lshl_b32 s73, s72, 14               ; b*4096*4
    s_lshl_b32 s74, s{S_HKV}, 11          ; hkv*512*4
    s_add_u32 s73, s73, s74
    s_and_b32 s74, s{S_WAVE}, 1
    s_lshl_b32 s74, s74, 10
    s_add_u32 s73, s73, s74
    s_add_u32 s73, s73, {WS_QP}
    s_add_u32 s74, s73, {1*32768}
    s_add_u32 s75, s73, {2*32768}
    s_add_u32 s76, s73, {3*32768}""")
    if cfg.qk >= 0:
        g("    v_mov_b32 v9, 0")
        g.wait_flag(L_QF, 1, 10, 9)
        g(f"""    ds_read_b32 v10, v1 offset:{L_PROG}
    s_waitcnt lgkmcnt(0)
    v_readfirstlane_b32 s72, v10
    s_add_u32 s72, s72, {cfg.qk}
    s_min_u32 s72, s72, 16""")
        g.wait_prog("s72")
    else:
        g.wait_prog(cfg.qstart)
    g.stamp(15)
    g.poll([f"buffer_load_dwordx4 v[{32+4*k}:{35+4*k}], v11, {srd(S_WS)}, s{60+k} offen sc1" for k in range(4)], [32, 36, 40, 44], 48, sleep=cfg.sleep1,
           dual=([73, 74, 75, 76], [60, 61, 62, 63], D_QP, cfg.na1), nk=10)
    for k in range(4):
        g(f"""    v_add_f32 v{32+k}, v{32+k}, v{36+k}
    v_add_f32 v{40+k}, v{40+k}, v{44+k}""")
    for k in range(4):
        g(f"    v_add_f32 v{32+k}, v{32+k}, v{40+k}")
    g(f"""    v_cvt_pk_bf16_f32 v32, v32, v33
    v_cvt_pk_bf16_f32 v33, v34, v35
    v_lshlrev_b32 v4, 3, v0
    s_and_b32 s72, s{S_WAVE}, 1
    s_lshl_b32 s73, s72, 9
    v_add_u32 v4, s73, v4
    ds_write_b64 v4, v[32:33] offset:{L_Q}
    v_mov_b32 v5, 1
    s_lshl_b32 s72, s72, 2
    v_mov_b32 v4, s72
    ds_write_b32 v4, v5 offset:{L_S2}
    s_branch L_qwait""")
    g.a = sec["p1q"]
    g("L_p1q:")
    srd_const(g, ["wq", "x"])
    g(f"""    s_and_b32 s52, s{S_J}, 7               ; cb
    s_lshr_b32 s53, s{S_J}, 3              ; ks
    s_lshl_b32 s56, s53, 20               ; 128*ks*8192
    s_lshl_b32 s57, s{S_HKV}, 10
    s_lshl_b32 s58, s52, 7
    s_add_u32 s57, s57, s58
    s_add_u32 s56, s56, s57
    v_lshrrev_b32 v5, 3, v0               ; r8
    v_and_b32 v6, 7, v0
    v_lshlrev_b32 v6, 4, v6
    v_lshlrev_b32 v7, 17, v5
    v_add_u32 v7, v7, v6
    v_lshlrev_b32 v9, 5, v5               ; x voffset = 16*r8*2
    s_lshl_b32 s64, s53, 8                ; 128*ks*2
    s_movk_i32 s65, 0x2000
""")
    if cfg.contig & 1:
        g(f"""    s_lshl_b32 s56, s2, 14
    v_lshlrev_b32 v7, 4, v0
    s_movk_i32 s65, 0x400""")
    g(f"""    s_waitcnt lgkmcnt(0)
    buffer_load_dwordx4 v[20:23], v9, {srd(S_X)}, s64 offen
    buffer_load_dwordx4 v[24:27], v9, {srd(S_X)}, s64 offen offset:16
    buffer_load_dwordx4 v[28:31], v9, {srd(S_X)}, s64 offen offset:1024
    buffer_load_dwordx4 v[32:35], v9, {srd(S_X)}, s64 offen offset:1040""")
    for t in range(16):
        g(f"    buffer_load_dwordx4 v[{64+4*t}:{67+4*t}], v7, {srd(S_WQ)}, s56 offen{NT}")
        if t < 15: g("    s_add_u32 s56, s56, s65")
    g(f"    s_load_dword s{S_TAG}, s[{S_WS}:{S_WS+1}], 0x0")
    srd_const(g, ["ws", "out"]); lane_regs(g); common_rest(g, cfg)
    g("    s_barrier")
    selectors(g); tags(g)
    g(f"""    s_lshl_b32 s72, s53, 15
    s_lshl_b32 s73, s57, 1
    s_add_u32 s72, s72, s73
    s_add_u32 s72, s72, {WS_QP}
    s_add_u32 s73, s72, {D_QP}
    v_lshrrev_b32 v4, 5, v0
    v_lshlrev_b32 v4, 14, v4              ; b*4096*4""")
    pub_addr(g)
    proj(g, 16, 20, 28, 4)
    g(f"""    s_mov_b64 exec, s[70:71]
    buffer_store_dwordx4 v[36:39], v4, {srd(S_WS)}, s72 offen {cfg.aflag}
    buffer_store_dwordx4 v[36:39], v4, {srd(S_WS)}, s73 offen sc1
    s_mov_b64 exec, -1
    v_mov_b32 v5, 1
    v_mov_b32 v4, 0
    ds_write_b32 v4, v5 offset:{L_QF}""")
    g.stamp(2)
    g.a = sec["compute"]
    g("L_qwait:")
    if cfg.streamonly:
        g("    s_waitcnt vmcnt(0)\n    s_endpgm")
    g(f"""    ; K read addresses v20..23 : L_K + w*4096 + i*256 + ((4t ^ g ^ i))*16
    v_xor_b32 v9, v3, v2                  ; g ^ i
    v_lshlrev_b32 v10, 8, v2              ; i*256
    s_lshl_b32 s72, s{S_WAVE}, 12
    s_add_u32 s72, s72, {L_K}
    v_add_u32 v10, s72, v10""")
    for t in range(4):
        g(f"""    v_xor_b32 v4, {4*t}, v9
    v_lshl_add_u32 v{20+t}, v4, 4, v10""")
    g(f"""    ; Q frag address v8: head*256 + (4t+g)*16 ; v4 = head*16 (MX/LW), v5 = v4 + 4w
    v_and_b32 v8, 3, v0
    v_lshlrev_b32 v4, 4, v8
    v_lshlrev_b32 v8, 8, v8
    v_lshl_add_u32 v8, v3, 4, v8
    s_lshl_b32 s72, s{S_WAVE}, 2
    v_add_u32 v5, s72, v4
    v_mov_b32 v9, 0""")
    for r in range(48, 64): g(f"    v_mov_b32 v{r}, 0")
    for T in range(3):
        g(f"    s_add_u32 s72, s{S_WAVE}, {4*T+1}")
        g.wait_prog("s72", 10)
        for t in range(4):
            r = 64 + T*16 + 4*t
            g(f"    ds_read_b128 v[{r}:{r+3}], v{20+t} offset:{T*16384}")
    g.wait_flag(L_S2, 2, 10, 9)
    g.stamp(3)
    for t in range(4):
        g(f"    ds_read_b128 v[{32+4*t}:{35+4*t}], v8 offset:{L_Q + t*64}")
    g(f"    s_add_u32 s72, s{S_WAVE}, 13")
    g.wait_prog("s72", 10)
    for t in range(4):
        r = 64 + 3*16 + 4*t
        g(f"    ds_read_b128 v[{r}:{r+3}], v{20+t} offset:{3*16384}")
    g("    s_waitcnt lgkmcnt(4)")
    for t in range(4):
        for T in range(3):
            r = 64 + T*16 + 4*t
            g(f"    v_mfma_f32_16x16x32_bf16 v[{48+4*T}:{51+4*T}], v[{r}:{r+3}], v[{32+4*t}:{35+4*t}], v[{48+4*T}:{51+4*T}]")
    g("    s_waitcnt lgkmcnt(0)")
    for t in range(4):
        r = 64 + 3*16 + 4*t
        g(f"    v_mfma_f32_16x16x32_bf16 v[60:63], v[{r}:{r+3}], v[{32+4*t}:{35+4*t}], v[60:63]")
    c = (128 ** -0.5) * math.log2(math.e)
    g(f"""    s_mov_b32 s61, {hex(f32bits(c))}
    v_max3_f32 v24, v48, v49, v50
    v_max3_f32 v25, v51, v52, v53
    v_max3_f32 v26, v54, v55, v56
    v_max3_f32 v27, v57, v58, v59
    v_max3_f32 v24, v24, v25, v26
    v_max3_f32 v28, v60, v61, v62
    v_max3_f32 v24, v24, v27, v63
    v_max_f32 v24, v24, v28
    v_mov_b32 v25, v24
    v_permlane16_swap_b32 v24, v25
    v_max_f32 v24, v24, v25
    v_mov_b32 v25, v24
    v_permlane32_swap_b32 v24, v25
    v_max_f32 v24, v24, v25
    v_or_b32 v24, 1, v24
    ds_write_b32 v5, v24 offset:{L_MX}""")
    g.wait_nonzero4(24, 4, L_MX, 28)
    g(f"""    v_max3_f32 v24, v24, v25, v26
    v_max_f32 v24, v24, v27
    v_mul_f32 v24, s61, v24""")
    for r in range(48, 64):
        g(f"    v_fma_f32 v{r}, v{r}, s61, -v24")
    for r in range(48, 64):
        g(f"    v_exp_f32 v{r}, v{r}")
    for T in range(4):
        g(f"    v_cvt_pk_bf16_f32 v{64+2*T}, v{48+4*T}, v{49+4*T}")
        g(f"    v_cvt_pk_bf16_f32 v{65+2*T}, v{50+4*T}, v{51+4*T}")
    g(f"""    v_and_b32 v6, 3, v0
    v_lshlrev_b32 v6, 6, v6
    v_lshl_add_u32 v6, v3, 4, v6
    s_lshr_b32 s72, s{S_WAVE}, 1
    s_lshl_b32 s72, s72, 8
    s_and_b32 s73, s{S_WAVE}, 1
    s_lshl_b32 s73, s73, 3
    s_add_u32 s72, s72, s73
    v_add_u32 v7, s72, v6""")
    for T in range(4):
        g(f"    ds_write_b64 v7, v[{64+2*T}:{65+2*T}] offset:{L_P + T*512}")
    g("""    v_add_f32 v25, v48, v49
    v_add_f32 v26, v50, v51
    v_add_f32 v27, v52, v53
    v_add_f32 v28, v54, v55
    v_add_f32 v29, v56, v57
    v_add_f32 v30, v58, v59
    v_add_f32 v31, v60, v61
    v_add_f32 v72, v62, v63
    v_add_f32 v25, v25, v26
    v_add_f32 v27, v27, v28
    v_add_f32 v29, v29, v30
    v_add_f32 v31, v31, v72
    v_add_f32 v25, v25, v27
    v_add_f32 v29, v29, v31
    v_add_f32 v25, v25, v29
    v_mov_b32 v26, v25
    v_permlane16_swap_b32 v25, v26
    v_add_f32 v25, v25, v26
    v_mov_b32 v26, v25
    v_permlane32_swap_b32 v25, v26
    v_add_f32 v25, v25, v26               ; l_w
    v_or_b32 v25, 1, v25""")
    g(f"    ds_write_b32 v5, v25 offset:{L_LW}")
    g(f"""    v_bfe_u32 v8, v0, 2, 2                ; r
    v_and_b32 v9, 3, v0                   ; c
    v_lshl_add_u32 v10, v3, 2, v8         ; 4g + r
    v_and_b32 v11, 7, v10                 ; k7
    v_lshlrev_b32 v10, 8, v10
    v_lshl_add_u32 v10, v9, 3, v10
    v_add_u32 v10, {L_V}, v10
    s_lshl_b32 s72, s{S_WAVE}, 1          ; dt0 = 2w
    v_xor_b32 v8, s72, v11
    v_lshl_add_u32 v20, v8, 5, v10
    s_add_u32 s72, s72, 1
    v_xor_b32 v8, s72, v11
    v_lshl_add_u32 v21, v8, 5, v10
    s_lshl_b32 s58, s{S_HKV}, 5
    s_add_u32 s58, s58, s{S_J}             ; producer
    s_lshl_b32 s58, s58, 11
    s_lshl_b32 s59, s{S_WAVE}, 7          ; 8w*16
    s_add_u32 s58, s58, s59
    s_add_u32 s58, s58, {WS_AP}
    s_add_u32 s59, s58, {D_AP}
    v_and_b32 v22, 3, v0
    v_lshlrev_b32 v22, 9, v22             ; head*512
    v_lshl_add_u32 v22, v3, 4, v22        ; + g'*16
    v_bfe_u32 v9, v0, 2, 1                ; dsel
    v_lshl_add_u32 v22, v9, 6, v22
    s_mov_b32 s54, 0x00f000f0
    s_mov_b32 s55, 0x00f000f0
    s_mov_b32 s56, 0x00ff00ff
    s_mov_b32 s57, 0x00ff00ff""")
    g.wait_nonzero4(28, 4, L_LW, 27)
    for u in range(8):
        g(f"    ds_read_b128 v[{32+4*u}:{35+4*u}], v6 offset:{L_P + u*256}")
    g(f"""    v_add_f32 v28, v28, v29
    v_add_f32 v30, v30, v31
    v_add_f32 v25, v28, v30               ; L
    v_rcp_f32 v26, v25                    ; v26 = 1/L
    v_log_f32 v27, v25
    v_add_f32 v27, v27, v24               ; v27 = lw
    v_xor_b32 v28, s{S_TAG}, v27""")
    for r in range(64, 72): g(f"    v_mov_b32 v{r}, 0")
    if cfg.opre:
        g(f"""    v_and_b32 v13, 1, v0
    v_lshlrev_b32 v13, 9, v13             ; b*512
    v_bfe_u32 v14, v0, 1, 1               ; ct
    v_lshl_add_u32 v13, v14, 6, v13
    v_lshl_add_u32 v13, v3, 4, v13        ; + g'*16
    s_lshl_b32 s76, s{S_CBK}, 6
    s_add_u32 s76, s76, s{S_RB}
    s_lshl_b32 s76, s76, 10
    s_lshl_b32 s77, s{S_WAVE}, 7
    s_add_u32 s76, s76, s77
    s_add_u32 s76, s76, {WS_OP}
    v_xor_b32 v72, 1, v16
    v_mov_b32 v73, v72
    v_mov_b32 v74, v72
    v_mov_b32 v75, v72
    s_mov_b32 s74, 0x000f000f
    s_mov_b32 s75, 0x000f000f
    s_mov_b64 exec, s[74:75]
    buffer_store_dwordx4 v[72:75], v13, {srd(S_WS)}, s76 offen sc1
    s_mov_b64 exec, -1""")
    if cfg.pretouch:
        g(f"""    v_mov_b32 v72, 0
    v_mov_b32 v73, 0
    v_mov_b32 v74, 0
    v_xor_b32 v75, 1, v72
    v_xor_b32 v75, s{S_TAG}, v75
    s_mov_b64 exec, s[56:57]
    buffer_store_dwordx4 v[72:75], v22, {srd(S_WS)}, s58 offen {cfg.aflag}
    s_mov_b64 exec, -1""")
    g.stamp(4)
    def pv_mfma(u):
        rb_ = 72 + (u & 1)*8
        for d in range(2):
            r = rb_ + d*4
            g(f"    v_mfma_f32_16x16x32_bf16 v[{64+4*d}:{67+4*d}], v[{r}:{r+3}], v[{32+4*u}:{35+4*u}], v[{64+4*d}:{67+4*d}]")
    for u in range(8):
        g.wait_prog(16 + 2*u + 2, 10)
        rb_ = 72 + (u & 1)*8
        for d in range(2):
            for h in range(2):
                r = rb_ + d*4 + 2*h
                g(f"    ds_read_b64_tr_b16 v[{r}:{r+1}], v{20+d} offset:{(2*u+h)*4096}")
        if u > 0:
            g("    s_waitcnt lgkmcnt(4)")
            pv_mfma(u - 1)
    g("    s_waitcnt lgkmcnt(0)")
    pv_mfma(7)
    g.stamp(5)
    g(f"""    v_cndmask_b32 v64, v64, v68, s[54:55]
    v_cndmask_b32 v65, v65, v69, s[54:55]
    v_cndmask_b32 v66, v66, v70, s[54:55]
    v_cndmask_b32 v67, v67, v71, s[54:55]
    v_mul_f32 v64, v64, v26
    v_mul_f32 v65, v65, v26
    v_mul_f32 v66, v66, v26
    v_mul_f32 v67, v67, v26
    v_cvt_pk_bf16_f32 v64, v64, v65
    v_cvt_pk_bf16_f32 v65, v66, v67
    v_mov_b32 v66, v27
    v_bitop3_b32 v67, v64, v65, v28 bitop3:0x96
    s_mov_b64 exec, s[56:57]
    buffer_store_dwordx4 v[64:67], v22, {srd(S_WS)}, s58 offen {cfg.aflag}
    buffer_store_dwordx4 v[64:67], v22, {srd(S_WS)}, s59 offen sc1
    s_mov_b64 exec, -1""")
    if cfg.wgate >= 0:
        g(f"""    v_mov_b32 v9, 1
    s_lshl_b32 s72, s{S_WAVE}, 2
    v_mov_b32 v8, s72
    ds_write_b32 v8, v9 offset:{L_PUB}""")
    g(f"""    ; lane (g, b'=(l>>3)&1, s8=l&7): granule index = 16*((j>>2)&1) + 4w + g  within head
    s_lshr_b32 s52, s{S_J}, 3              ; head4
    s_bfe_u32 s53, s{S_J}, 0x10002         ; (j>>2)&1
    v_and_b32 v8, 7, v0
    v_bfe_u32 v9, v0, 3, 1
    v_lshl_add_u32 v8, v9, 4, v8          ; b'*16 + s8
    v_lshlrev_b32 v8, 11, v8              ; *2048
    v_lshl_add_u32 v8, v3, 4, v8          ; + g*16
    s_lshl_b32 s72, s{S_HKV}, 16          ; hkv*32*2048
    s_lshl_b32 s73, s52, 9                ; head4*512
    s_add_u32 s72, s72, s73
    s_lshl_b32 s73, s53, 8
    s_add_u32 s72, s72, s73
    s_lshl_b32 s73, s{S_WAVE}, 6
    s_add_u32 s72, s72, s73
    s_add_u32 s72, s72, {WS_AP}
    s_add_u32 s73, s72, {8*2048}
    v_add_u32 v20, {(L_WO - L_V) & 0xffffffff:#x}, v20
    v_add_u32 v21, {(L_WO - L_V) & 0xffffffff:#x}, v21
    v_lshlrev_b32 v10, 5, v3
    v_lshl_add_u32 v10, v9, 4, v10
    s_lshr_b32 s74, s{S_WAVE}, 1
    s_lshl_b32 s74, s74, 7
    s_and_b32 s75, s{S_WAVE}, 1
    s_lshl_b32 s75, s75, 3
    s_add_u32 s74, s74, s75
    v_add_u32 v10, s74, v10
    v_and_b32 v11, 1, v0
    v_lshlrev_b32 v12, 2, v11
    v_lshlrev_b32 v11, 4, v11
    v_lshl_add_u32 v11, v3, 5, v11        ; v11
""")
    if cfg.oplay == 2:
        g(f"""    ; OP address: (cbk*64+rb)*1024 + (b*32 + 8w + 4ct + g')*16 ; lanes j<4: b=j&1, ct=(j>>1)&1
    v_and_b32 v13, 1, v0
    v_lshlrev_b32 v13, 9, v13             ; b*512
    v_bfe_u32 v14, v0, 1, 1               ; ct
    v_lshl_add_u32 v13, v14, 6, v13
    v_lshl_add_u32 v13, v3, 4, v13        ; + g'*16
    s_lshl_b32 s76, s{S_CBK}, 6
    s_add_u32 s76, s76, s{S_RB}
    s_lshl_b32 s76, s76, 10
    s_lshl_b32 s77, s{S_WAVE}, 7
    s_add_u32 s76, s76, s77
    s_add_u32 s76, s76, {WS_OP}""")
    else:
        g(f"""    ; OP address: Q*1024 + rb*16, Q = b*128 + cbk*32 + 8w + 4ct + g'
    v_and_b32 v13, 1, v0
    v_lshlrev_b32 v13, 17, v13            ; b*128*1024
    v_bfe_u32 v14, v0, 1, 1               ; ct
    v_lshl_add_u32 v13, v14, 12, v13      ; 4ct*1024
    v_lshl_add_u32 v13, v3, 10, v13       ; g'*1024
    s_lshl_b32 s76, s{S_CBK}, 15          ; cbk*32*1024
    s_lshl_b32 s77, s{S_WAVE}, 13         ; 8w*1024
    s_add_u32 s76, s76, s77
    s_lshl_b32 s77, s{S_RB}, 4
    s_add_u32 s76, s76, s77
    s_add_u32 s76, s76, {WS_OP}""")
    g(f"""    s_mov_b32 s54, 0xcccccccc
    s_mov_b32 s55, 0xcccccccc
    s_mov_b32 s56, 0x000f000f             ; lanes j<4
    s_mov_b32 s57, 0x000f000f
    s_mov_b32 s78, 0x01010101             ; lanes s8==0
    s_mov_b32 s79, 0x01010101""")
    for r in range(96, 112): g(f"    v_mov_b32 v{r}, 0")
    g.poll([f"buffer_load_dwordx4 v[32:35], v8, {srd(S_WS)}, s60 offen sc1",
            f"buffer_load_dwordx4 v[36:39], v8, {srd(S_WS)}, s61 offen sc1"], [32, 36], 48, mode="sum", tmp=49, sleep=cfg.sleep2,
           dual=([72, 73], [60, 61], D_AP, cfg.na2), nk=12, masked=cfg.mask2)
    g.stamp(6)
    g("    v_max_f32 v48, v34, v38")
    g("""    v_lshlrev_b32 v50, 16, v32
    v_and_b32 v51, 0xffff0000, v32""")
    g(f"    v_max_f32_dpp v48, v48, v48 {DPP8[0]} row_mask:0xf bank_mask:0xf")
    g("""    v_lshlrev_b32 v52, 16, v33
    v_and_b32 v53, 0xffff0000, v33""")
    g(f"    v_max_f32_dpp v48, v48, v48 {DPP8[1]} row_mask:0xf bank_mask:0xf")
    g("""    v_lshlrev_b32 v54, 16, v36
    v_and_b32 v55, 0xffff0000, v36""")
    g(f"    v_max_f32_dpp v48, v48, v48 {DPP8[2]} row_mask:0xf bank_mask:0xf")
    g("""    v_lshlrev_b32 v56, 16, v37
    v_and_b32 v57, 0xffff0000, v37
    v_sub_f32 v40, v34, v48
    v_sub_f32 v44, v38, v48
    v_exp_f32 v40, v40
    v_exp_f32 v44, v44
    v_mul_f32 v32, v40, v50
    v_mul_f32 v33, v40, v51
    v_mul_f32 v34, v40, v52
    v_mul_f32 v35, v40, v53
    v_add_f32 v49, v40, v44
    v_fmac_f32 v32, v44, v54
    v_fmac_f32 v33, v44, v55
    v_fmac_f32 v34, v44, v56
    v_fmac_f32 v35, v44, v57""")
    for dp in DPP8:
        for r in (49, 32, 33, 34, 35):
            g(f"    v_add_f32_dpp v{r}, v{r}, v{r} {dp} row_mask:0xf bank_mask:0xf")
    g(f"""    v_rcp_f32 v49, v49
    v_mul_f32 v32, v32, v49
    v_mul_f32 v33, v33, v49
    v_mul_f32 v34, v34, v49
    v_mul_f32 v35, v35, v49
    v_cvt_pk_bf16_f32 v32, v32, v33
    v_cvt_pk_bf16_f32 v33, v34, v35
    s_mov_b64 exec, s[78:79]
    ds_write_b64 v10, v[32:33] offset:{L_O}
    s_mov_b64 exec, -1
    s_waitcnt lgkmcnt(0)
    s_barrier
    ds_read_b128 v[32:35], v11 offset:{L_O}
    ds_read_b128 v[36:39], v11 offset:{L_O + 128}""")
    for ks in range(2):
        for d in range(2):
            for h in range(2):
                r = 64 + (ks*2 + d)*4 + 2*h
                g(f"    ds_read_b64_tr_b16 v[{r}:{r+1}], v{20+d} offset:{(32*ks + 16*h)*256}")
    g(f"    ds_read_b128 v[40:43], v11 offset:{L_H}")
    for d in range(2):
        for h in range(2):
            r = 80 + d*4 + 2*h
            g(f"    ds_read_b64_tr_b16 v[{r}:{r+1}], v{20+d} offset:{L_W2 - L_WO + 16*h*256}")
    g(f"""    s_waitcnt lgkmcnt(11)
    v_mfma_f32_16x16x32_bf16 v[96:99], v[64:67], v[32:35], v[96:99]
    ds_read_b32 v30, v12 offset:{L_GATE}
    s_waitcnt lgkmcnt(10)
    v_mfma_f32_16x16x32_bf16 v[100:103], v[68:71], v[32:35], v[100:103]
    s_waitcnt lgkmcnt(8)
    v_mfma_f32_16x16x32_bf16 v[96:99], v[72:75], v[36:39], v[96:99]
    s_waitcnt lgkmcnt(6)
    v_mfma_f32_16x16x32_bf16 v[100:103], v[76:79], v[36:39], v[100:103]
    s_waitcnt lgkmcnt(3)
    v_mfma_f32_16x16x32_bf16 v[104:107], v[80:83], v[40:43], v[104:107]
    s_waitcnt lgkmcnt(1)
    v_mfma_f32_16x16x32_bf16 v[108:111], v[84:87], v[40:43], v[108:111]
    s_waitcnt lgkmcnt(0)
    v_sub_f32 v31, 1.0, v30
    v_cndmask_b32 v96, v96, v100, s[54:55]
    v_cndmask_b32 v97, v97, v101, s[54:55]
    v_cndmask_b32 v98, v98, v102, s[54:55]
    v_cndmask_b32 v99, v99, v103, s[54:55]
    v_mul_f32 v96, v96, v30
    v_mul_f32 v97, v97, v30
    v_mul_f32 v98, v98, v30
    v_mul_f32 v99, v99, v30
    v_cndmask_b32 v104, v104, v108, s[54:55]
    v_cndmask_b32 v105, v105, v109, s[54:55]
    v_cndmask_b32 v106, v106, v110, s[54:55]
    v_cndmask_b32 v107, v107, v111, s[54:55]
    v_fmac_f32 v96, v104, v31
    v_fmac_f32 v97, v105, v31
    v_fmac_f32 v98, v106, v31
    v_fmac_f32 v99, v107, v31""")
    for k in range(4):
        g(f"    v_bfi_b32 v{96+k}, s{S_FF}, v{16+k}, v{96+k}")
    g(f"""    s_mov_b64 exec, s[56:57]
    buffer_store_dwordx4 v[96:99], v13, {srd(S_WS)}, s76 offen sc1
    {f"s_add_u32 s77, s76, {D_OP}" if cfg.opa else ""}
    {f"buffer_store_dwordx4 v[96:99], v13, {srd(S_WS)}, s77 offen" if cfg.opa else ""}
    s_mov_b64 exec, -1""")
    g.stamp(7)
    g(f"""    s_cmp_ge_u32 s{S_WAVE}, {cfg.npoll3}
    s_cbranch_scc1 L_stampout""")
    if cfg.npoll3 > 1:
        for w in range(1, cfg.npoll3):
            lab = g.label("Lstg")
            g(f"""    s_cmp_lt_u32 s{S_WAVE}, {w}
    s_cbranch_scc1 {lab}
    s_sleep {cfg.stag3}
{lab}:""")
    g(f"""    ; Q = G*8 + (j&7), G = (j>>3)*8 + hkv   (G = b*16 + cbk*4 + qh)
    s_lshr_b32 s66, s{S_J}, 3
    s_lshl_b32 s66, s66, 3
    s_add_u32 s66, s66, s{S_HKV}
    s_lshl_b32 s66, s66, 3
    s_and_b32 s67, s{S_J}, 7
    s_add_u32 s66, s66, s67
""")
    if cfg.oplay == 2:
        g(f"""    s_bfe_u32 s72, s66, 0x20005           ; cbk
    s_lshl_b32 s72, s72, 16
    s_lshr_b32 s73, s66, 7
    s_lshl_b32 s73, s73, 9
    s_add_u32 s72, s72, s73
    s_and_b32 s73, s66, 31
    s_lshl_b32 s73, s73, 4
    s_add_u32 s72, s72, s73
    s_add_u32 s72, s72, {WS_OP}
    v_lshlrev_b32 v6, 10, v0""")
    else:
        g(f"""    s_lshl_b32 s72, s66, 10
    s_add_u32 s72, s72, {WS_OP}
    v_lshlrev_b32 v6, 4, v0""")
    if cfg.outtouch == 2:
        g(f"""    v_mov_b32 v7, 0
    s_mov_b64 exec, 1
    buffer_load_dword v8, v7, {srd(S_OUT)}, 0 offen
    s_mov_b64 exec, -1""")
    if cfg.opa:
        g(f"""    v_lshrrev_b32 v7, 3, v0
    v_cmp_eq_u32 vcc, s{S_HKV}, v7
    v_add_u32 v7, {D_OP}, v6
    v_cndmask_b32 v7, v6, v7, vcc""")
        E = g.label("Lo3e"); L = g.label("Lo3")
        def chk():
            g(f"""    s_waitcnt vmcnt(0)
    v_xor_b32 v32, s{S_T0}, v32
    v_xor_b32 v33, s{S_T0+1}, v33
    v_xor_b32 v34, s{S_T0+2}, v34
    v_xor_b32 v35, s{S_T0+3}, v35
    v_or3_b32 v48, v32, v33, v34
    v_or_b32 v48, v48, v35
    v_and_b32 v48, 0xff, v48
    v_cmp_ne_u32 vcc, 0, v48
    s_and_b64 exec, exec, vcc
    s_cbranch_scc0 {E}""")
        g(f"""    s_lshl_b32 s74, s{S_HKV}, 9
    s_add_u32 s74, s74, {WS_LF}
    s_lshl_b32 s75, s{S_J}, 4
    s_add_u32 s75, s75, s74
    v_mov_b32 v40, s{S_TAG}
    v_mov_b32 v41, 0
    v_and_b32 v42, 31, v0
    v_lshlrev_b32 v42, 4, v42
    s_mov_b64 exec, 1
    buffer_store_dword v40, v41, {srd(S_WS)}, s75 offen
    s_mov_b64 exec, -1""")
        g(f"    buffer_load_dwordx4 v[32:35], v7, {srd(S_WS)}, s72 offen sc1")
        chk()
        g("    s_mov_b64 s[68:69], exec\n    s_mov_b64 exec, -1")
        if cfg.opa == 1:
            LL = g.label("Llf"); EE = g.label("Llfe")
            g(f"""    s_mov_b32 s101, {cfg.lfmax}
{LL}:
    buffer_load_dword v43, v42, {srd(S_WS)}, s74 offen sc1
    s_waitcnt vmcnt(0)
    v_cmp_ne_u32 vcc, s{S_TAG}, v43
    s_cbranch_vccz {EE}
    s_sub_u32 s101, s101, 1
    s_cmp_gt_i32 s101, 0
    s_cbranch_scc1 {LL}
{EE}:""")
        g(f"""    s_mov_b64 exec, s[68:69]
    s_mov_b32 s101, {cfg.spin_glb}
{L}:
    s_cmp_lt_u32 s101, {cfg.spin_glb - cfg.na3}
    s_cbranch_scc0 {L}_a
    v_mov_b32 v7, v6
{L}_a:
    buffer_load_dwordx4 v[32:35], v7, {srd(S_WS)}, s72 offen sc1""")
        chk()
        if cfg.sleep3: g(f"    s_sleep {cfg.sleep3}")
        g(f"""    s_sub_u32 s101, s101, 1
    s_cmp_gt_i32 s101, 0
    s_cbranch_scc1 {L}
{E}:
    s_mov_b64 exec, -1""")
    else:
        if cfg.lflag:
            L = g.label("Llf"); E = g.label("Llfe")
            g(f"""    s_lshl_b32 s74, s{S_HKV}, 9
        s_add_u32 s74, s74, {WS_LF}
        s_lshl_b32 s75, s{S_J}, 4
        s_add_u32 s75, s75, s74
        v_mov_b32 v40, s{S_TAG}
        v_mov_b32 v41, 0
        v_and_b32 v42, 31, v0
        v_lshlrev_b32 v42, 4, v42
        s_mov_b64 exec, 1
        buffer_store_dword v40, v41, {srd(S_WS)}, s75 offen
        s_mov_b64 exec, -1
        s_mov_b32 s101, {cfg.lfmax}
    {L}:
        buffer_load_dword v43, v42, {srd(S_WS)}, s74 offen sc1
        s_waitcnt vmcnt(0)
        v_cmp_ne_u32 vcc, s{S_TAG}, v43
        s_cbranch_vccz {E}
        s_sub_u32 s101, s101, 1
        s_cmp_gt_i32 s101, 0
        s_cbranch_scc1 {L}
    {E}:""")
        if cfg.pre3: g(f"    s_sleep {cfg.pre3}")
        g.poll([f"buffer_load_dwordx4 v[32:35], v6, {srd(S_WS)}, s72 offen sc1"], [32], 48, sleep=cfg.sleep3, nk=13, masked=cfg.mask3)
    g.stamp(8)
    g(f"""    v_permlane32_swap_b32 v32, v34
    v_permlane32_swap_b32 v33, v35
    v_add_f32 v32, v32, v34
    v_add_f32 v33, v33, v35
    v_permlane16_swap_b32 v32, v33
    v_add_f32 v32, v32, v33""")
    for k in (8, 4, 2, 1):
        g(f"    v_add_f32_dpp v32, v32, v32 row_ror:{k} row_mask:0xf bank_mask:0xf")
    g(f"""    v_cvt_pk_bf16_f32 v32, v32, v32
    v_lshlrev_b32 v6, 1, v3               ; row*2
    s_lshl_b32 s72, s66, 3
    v_cmp_eq_u32 vcc, 0, v2
    s_and_saveexec_b64 s[70:71], vcc
    buffer_store_short v32, v6, {srd(S_OUT)}, s72 offen {cfg.outflag}
    s_cmp_eq_u32 s2, 0
    s_cbranch_scc0 L_noep
    s_mov_b64 exec, 1
    v_mov_b32 v7, s{S_TAG}
    v_mov_b32 v8, 0
    buffer_store_dword v7, v8, {srd(S_WS)}, 0 offen
L_noep:
    s_mov_b64 exec, s[70:71]""")
    if cfg.dbgst:
        g(f"""    s_cmp_lt_u32 s2, 8
    s_cbranch_scc0 L_nodbg
    s_memrealtime s[92:93]
    s_waitcnt lgkmcnt(0)
    v_mov_b32 v7, s94
    v_mov_b32 v8, s92
    s_lshl_b32 s72, s2, 2
    v_mov_b32 v9, 0
    s_mov_b64 exec, 1
    buffer_store_dword v7, v9, s[88:91], s72 offen
    buffer_store_dword v8, v9, s[88:91], s72 offen offset:32
    s_mov_b64 exec, -1
L_nodbg:""")
    g.stamp(9)
    g("L_stampout:")
    if cfg.stamps: stamp_out(g)
    g("    s_endpgm")
    g.a = sec["helper"]
    g("L_helper:")
    srd_load(g, ["gw", "w1"]); srd_const(g, ["x", "gw", "w1", "ws"])
    lane_regs(g); common_rest(g, cfg)
    g(f"""    s_mul_i32 s59, s2, 2341
    s_lshr_b32 s59, s59, 16               ; ks8 = c/28
    s_mul_i32 s60, s59, 28
    s_sub_u32 s60, s2, s60                ; fb
    s_lshl_b32 s61, s59, 6
    s_mul_i32 s62, s61, 3584
    s_lshl_b32 s63, s60, 7
    s_add_u32 s62, s62, s63               ; w1 soffset
    v_lshrrev_b32 v5, 3, v0               ; r8
    v_and_b32 v6, 7, v0
    v_lshlrev_b32 v6, 4, v6
    v_mul_u32_u24 v7, {8*3584}, v5
    v_add_u32 v7, v7, v6
    v_lshlrev_b32 v9, 4, v5               ; x voffset = 8*r8*2
    s_lshl_b32 s64, s61, 1
    v_lshlrev_b32 v11, 4, v0
""")
    if cfg.contig & 2:
        g(f"""    s_mul_i32 s62, s2, 7168
    v_lshlrev_b32 v7, 4, v0""")
    g(f"""
    s_waitcnt lgkmcnt(0)
    s_load_dword s{S_TAG}, s[{S_WS}:{S_WS+1}], 0x0
    s_barrier
    buffer_load_dwordx4 v[112:115], v11, {srd(S_X)}, 0 offen
    buffer_load_dwordx4 v[116:119], v11, {srd(S_X)}, 0 offen offset:1024
    buffer_load_dwordx4 v[120:123], v11, {srd(S_GW)}, 0 offen
    buffer_load_dwordx4 v[20:23], v9, {srd(S_X)}, s64 offen
    buffer_load_dwordx4 v[28:31], v9, {srd(S_X)}, s64 offen offset:1024""")
    for t in range(8):
        g(f"    buffer_load_dwordx4 v[{64+4*t}:{67+4*t}], v7, {srd(S_W1)}, s62 offen{NT}")
        if t < 7: g(f"    s_add_u32 s62, s62, {1024 if cfg.contig & 2 else 3584}")
    selectors(g); tags(g)
    g(f"""    s_mul_i32 s72, s59, {2*1792*4}
    s_lshl_b32 s73, s60, 8
    s_add_u32 s72, s72, s73
    s_add_u32 s72, s72, {WS_HP}
    v_lshrrev_b32 v4, 5, v0
    v_mul_u32_u24 v4, {1792*4}, v4        ; b*1792*4""")
    pub_addr(g)
    proj(g, 8, 20, 28, 2)
    g(f"""    s_cmp_ge_u32 s2, 224
    s_cbranch_scc1 L_nohpub
    s_mov_b64 exec, s[70:71]
    buffer_store_dwordx4 v[36:39], v4, {srd(S_WS)}, s72 offen sc1
    s_mov_b64 exec, -1
L_nohpub:""")
    g.stamp(2)
    for b in range(2):
        acc = 44 + b
        g(f"    v_mov_b32 v{acc}, 0")
        for r in range(4):
            xs = 112 + 4*b + r; gs = 120 + r
            g(f"""    v_lshlrev_b32 v46, 16, v{xs}
    v_lshlrev_b32 v47, 16, v{gs}
    v_and_b32 v48, 0xffff0000, v{xs}
    v_and_b32 v49, 0xffff0000, v{gs}
    v_mul_f32 v46, v46, v47
    v_mul_f32 v48, v48, v49
    v_cvt_pk_bf16_f32 v46, v46, v48
    v_lshlrev_b32 v47, 16, v46
    v_and_b32 v48, 0xffff0000, v46
    v_add_f32 v{acc}, v{acc}, v47
    v_add_f32 v{acc}, v{acc}, v48""")
    for k in (8, 4, 2, 1):
        g(f"""    v_add_f32_dpp v44, v44, v44 row_ror:{k} row_mask:0xf bank_mask:0xf
    v_add_f32_dpp v45, v45, v45 row_ror:{k} row_mask:0xf bank_mask:0xf""")
    for sw in ("v_permlane16_swap_b32", "v_permlane32_swap_b32"):
        g(f"""    v_mov_b32 v46, v44
    v_mov_b32 v47, v45
    {sw} v44, v46
    {sw} v45, v47
    v_add_f32 v44, v44, v46
    v_add_f32 v45, v45, v47""")
    g(f"""    v_cmp_gt_u32 vcc, 32, v0
    v_cndmask_b32 v44, v45, v44, vcc
    v_cvt_pk_bf16_f32 v44, v44, v44
    v_lshlrev_b32 v44, 16, v44
    v_mul_f32 v44, 0xbfb8aa3b, v44
    v_exp_f32 v44, v44
    v_add_f32 v44, 1.0, v44
    v_rcp_f32 v44, v44                    ; g
    v_lshrrev_b32 v4, 5, v0
    v_lshlrev_b32 v4, 2, v4
    ds_write_b32 v4, v44 offset:{L_GATE}
    v_and_b32 v8, 7, v0
    v_mul_u32_u24 v8, {2*1792*4}, v8
    v_bfe_u32 v9, v0, 3, 1
    v_mul_u32_u24 v10, {1792*4}, v9
    v_add_u32 v8, v8, v10
    v_lshl_add_u32 v8, v3, 4, v8          ; + qq*16
    v_add_u32 v11, 64, v8
    v_cmp_eq_u32 vcc, 3, v3
    v_cndmask_b32 v11, v11, v8, vcc
    s_mul_i32 s72, s{S_RB}, {28*4}
    s_add_u32 s72, s72, {WS_HP}""")
    if cfg.streamonly:
        g("    s_waitcnt vmcnt(0)\n    s_endpgm")
    g.wait_prog(cfg.hstart)
    g.poll([f"buffer_load_dwordx4 v[64:67], v8, {srd(S_WS)}, s72 offen sc1",
            f"buffer_load_dwordx4 v[68:71], v11, {srd(S_WS)}, s72 offen sc1"], [64, 68], 72, sleep=cfg.sleeph, nk=11)
    for dp in DPP8:
        for r in range(64, 72):
            g(f"    v_add_f32_dpp v{r}, v{r}, v{r} {dp} row_mask:0xf bank_mask:0xf")
    for q in range(2):
        r = 64 + 4*q
        g(f"""    v_cvt_pk_bf16_f32 v{r}, v{r}, v{r+1}
    v_cvt_pk_bf16_f32 v{r+2}, v{r+2}, v{r+3}
    v_and_b32 v{r+1}, 0xffff0000, v{r}
    v_lshlrev_b32 v{r}, 16, v{r}
    v_and_b32 v{r+3}, 0xffff0000, v{r+2}
    v_lshlrev_b32 v{r+2}, 16, v{r+2}""")
        for k in range(4):
            g(f"""    v_mul_f32 v{80+k}, 0xbfb8aa3b, v{r+k}
    v_exp_f32 v{80+k}, v{80+k}
    v_add_f32 v{80+k}, 1.0, v{80+k}
    v_rcp_f32 v{80+k}, v{80+k}
    v_mul_f32 v{r+k}, v{r+k}, v{80+k}""")
        g(f"""    v_cvt_pk_bf16_f32 v{r}, v{r}, v{r+1}
    v_cvt_pk_bf16_f32 v{r+1}, v{r+2}, v{r+3}""")
    g(f"""    v_lshlrev_b32 v4, 4, v9
    v_lshl_add_u32 v4, v3, 5, v4          ; qq*32 + b*16
    s_mov_b32 s70, 0x01010101
    s_mov_b32 s71, 0x01010101
    s_mov_b64 exec, s[70:71]
    ds_write_b64 v4, v[64:65] offset:{L_H}
    s_mov_b32 s71, 0x00000101
    s_mov_b64 exec, s[70:71]
    ds_write_b64 v4, v[68:69] offset:{L_H + 8}
    s_mov_b64 exec, -1
    v_mov_b32 v5, 1
    v_mov_b32 v4, 0
    ds_write_b32 v4, v5 offset:{L_HF}""")
    if cfg.dirty:
        g(f"""    s_mul_i32 s72, s2, {cfg.dirty*1024}
    s_add_u32 s72, s72, 0x800000
    v_lshlrev_b32 v6, 4, v0""")
        for k in range(cfg.dirty):
            g(f"    buffer_store_dwordx4 v[64:67], v6, {srd(S_WS)}, s72 offen\n    s_add_u32 s72, s72, 1024")
    if cfg.wtouch:
        srd_load(g, ["wo", "w2", "out"]); srd_const(g, ["wo", "w2", "out"])
        g(f"""    s_lshl_b32 s60, s{S_RB}, 16
    s_mul_i32 s62, s{S_RB}, {28*1024}
    s_waitcnt lgkmcnt(0)
    s_mov_b64 exec, 1
    buffer_load_dword v6, v4, {srd(S_WO)}, s60 offen
    buffer_load_dword v7, v4, {srd(S_W2)}, s62 offen""")
        if cfg.wtouch == 2: g(f"    buffer_load_dword v8, v4, {srd(S_OUT)}, 0 offen")
        g("    s_mov_b64 exec, -1")
    if cfg.outtouch == 1:
        g(f"""    s_mov_b64 exec, 1
    buffer_load_dword v6, v4, {srd(S_OUT)}, 0 offen
    s_mov_b64 exec, -1
    s_waitcnt vmcnt(0)""")
    g.stamp(14)
    if cfg.xbar: g("    s_waitcnt lgkmcnt(0)\n    s_barrier")
    if cfg.stamps: stamp_out(g)
    g("    s_endpgm")
    g.a = sec["ld_early"]
    srd_const(g, ["k"])
    lane_regs(g)
    g(f"""    s_lshr_b32 s52, s{S_J}, 4
    s_lshl_b32 s54, s52, 3
    s_add_u32 s54, s54, s{S_HKV}
    s_lshl_b32 s54, s54, 23
    s_and_b32 s53, s{S_J}, 15
    s_lshl_b32 s55, s53, {12 if cfg.strided else 16}
    s_add_u32 s54, s54, s55
    s_add_u32 s54, s54, {(32768-4096)*256}
    v_lshlrev_b32 v4, 8, v3
    v_xor_b32 v5, v3, v2
    v_lshl_add_u32 v20, v5, 4, v4""")
    for n in range(1, 4):
        g(f"""    v_xor_b32 v6, {4*n}, v5
    v_lshl_add_u32 v{20+n}, v6, 4, v4""")
    g(f"""    s_mul_i32 s56, s{S_J}, {cfg.rotmul}""")
    if cfg.rothkv:
        g(f"""    s_mul_i32 s57, s{S_HKV}, {cfg.rothkv}
    s_add_u32 s56, s56, s57""")
    g("    s_waitcnt lgkmcnt(0)")
    def loader_rest():
        g("    s_setprio 3")
        srd_load(g, ["v", "wo", "w2"]); srd_const(g, ["v", "wo", "w2"] + (["ws"] if cfg.stamps else []))
        common_rest(g, cfg)
        g(f"""    v_mov_b32 v10, 0
    ds_write_b32 v1, v10 offset:{L_PROG}
    ds_write_b32 v1, v10 offset:256
    ds_write_b32 v1, v10 offset:512
    v_lshlrev_b32 v5, 1, v3
    v_xor_b32 v5, v5, v2
    v_lshl_add_u32 v24, v5, 4, v4
    v_xor_b32 v25, 128, v24
    v_lshlrev_b32 v5, 4, v5
    v_lshl_add_u32 v26, v3, 10, v5
    v_xor_b32 v27, 128, v26               ; odd
    v_mov_b32 v12, 0
    v_mov_b32 v13, 0
    v_mov_b32 v14, 0
    v_mov_b32 v15, 0
    v_lshlrev_b32 v5, 4, v0
    ds_write_b128 v5, v[12:15] offset:{L_W2 + 7168}
    s_lshl_b32 s60, s{S_RB}, 16            ; 64*rb*1024
    s_lshl_b32 s61, s{S_CBK}, 8
    s_add_u32 s60, s60, s61               ; wo soffset
    s_mul_i32 s62, s{S_RB}, {28*1024}
    s_add_u32 s62, s62, s61               ; w2 soffset
    s_mul_i32 s65, s{S_RB}, {2*cfg.wrot}
""")
        if cfg.contig & 4:
            g(f"""    v_lshlrev_b32 v26, 4, v0
    v_mov_b32 v27, v26
    s_lshl_b32 s60, s2, 14
    s_mul_i32 s62, s2, 7168""")
        g(f"""    s_waitcnt lgkmcnt(0)
    s_barrier""")
        g.stamp(11)
    if cfg.earlyn == 0: loader_rest()
    kseq = [("k", t, n) for t in range(16) for n in range(4)]
    vseq = [("v", t, n) for t in range(16) for n in range(4)]
    wl = [("wo", n, 0) for n in range(16)]; w2l = [("w2", n, 0) for n in range(7)]
    wseq = (w2l + wl) if cfg.w2first else (wl + w2l)
    if cfg.order == "kvw": seq = kseq + vseq + wseq
    elif cfg.order == "mix": seq = kseq + vseq[:4*cfg.vk] + wseq[:cfg.wm] + vseq[4*cfg.vk:] + wseq[cfg.wm:]
    elif cfg.order == "spread":
        seq = list(kseq); wi = 0
        for t in range(16):
            seq += vseq[4*t:4*t+4]
            if t >= cfg.vk and wi < cfg.wm:
                n = -(-(cfg.wm - wi) // (16 - t)) if t < 15 else 0
                seq += wseq[wi:wi+n]; wi += n
        seq += wseq[wi:]
    else: seq = kseq + wseq + vseq
    N = len(seq)
    mval = {}
    kv = 0; wdone = 0
    for i, (kind, t, n) in enumerate(seq):
        ch = False
        if kind in ("k", "v") and n == 3: kv += 1; ch = True
        if i + 1 == N: wdone = 1; ch = True
        if ch: mval[i + 1] = (kv, wdone)
    def post(done):
        kv_, wd_ = mval[done]
        g(f"""    v_mov_b32 v10, {kv_}
    ds_write_b32 v1, v10 offset:{L_PROG}""")
        if done == N: g.stamp(3)
        if seq[done-1][0] == "k" and kv_ == 16: g.stamp(1)
        if seq[done-1][0] == "k" and kv_ in (1, 2, 4, 8): g.stamp({1: 4, 2: 5, 4: 6, 8: 7}[kv_])
        if seq[done-1][0] == "v" and kv_ in (17, 18, 20): g.stamp({17: 8, 18: 9, 20: 10}[kv_])
        if seq[done-1][0] == "v" and kv_ == 32: g.stamp(2)
    def win(i):
        k = seq[i][0]
        return cfg.wk if k == "k" else (cfg.wv if k == "v" else cfg.ww)
    miles = sorted(mval.keys())
    st = {"issued": 0, "done": 0}
    def advance(need):
        while st["done"] < need:
            nxt = min([need] + [m for m in miles if m > st["done"]])
            g(f"    s_waitcnt vmcnt({st['issued'] - nxt})")
            st["done"] = nxt
            if nxt in miles: post(nxt)
    for i, (kind, t, n) in enumerate(seq):
        if kind in ("k", "v") and n == 0:
            g(f"""    s_add_u32 s63, s56, {t}
    s_and_b32 s63, s63, 15
    s_lshl_b32 s63, s63, {16 if cfg.strided else 12}
    s_add_u32 s63, s63, s54""")
        elif kind == "wo":
            g(f"""    s_add_u32 s63, s65, {t}
    s_and_b32 s63, s63, 15
    s_lshl_b32 s64, s63, 10
    s_lshl_b32 s63, s63, {10 if cfg.contig & 4 else 12}
    s_add_u32 s63, s63, s60""")
        elif kind == "w2":
            g(f"    s_add_u32 s63, s62, {t*(1024 if cfg.contig & 4 else 4096)}")
        if cfg.wgate >= 0 and i == 128 + cfg.wgate:
            L = g.label("Lwd"); E = g.label("Lwde")
            if cfg.gatemask:
                g(f"    s_lshr_b32 s66, s2, 5\n    s_mov_b32 s67, 0")
                for w in range(8):
                    g(f"    s_cmp_eq_u32 s66, {w}\n    s_cselect_b32 s67, {hex((cfg.gatemask >> (32*w)) & 0xffffffff)}, s67")
                g(f"    s_and_b32 s66, s2, 31\n    s_bitcmp1_b32 s67, s66\n    s_cbranch_scc0 L_ungated")
                saved = dict(st)
            advance(128)
            g(f"""    v_mov_b32 v11, 0
{L}:
    ds_read_b128 v[12:15], v11 offset:{L_PUB}
    s_waitcnt lgkmcnt(0)
    v_min_u32 v12, v12, v13
    v_min3_u32 v12, v12, v14, v15
    v_cmp_eq_u32 vcc, 0, v12
    s_cbranch_vccz {E}""")
            g.spin_tail(L)
            g(f"{E}:")
        advance(i + 1 - win(i))
        if kind in ("k", "v") and n == 0:
            g(f"    s_mov_b32 m0, {(L_K if kind == 'k' else L_V) + t*4096}")
            g("    s_nop 0")
        if kind == "k":
            g(f"    buffer_load_dwordx4 v{20+n}, {srd(S_K)}, s63 offen offset:{n*1024}{NT} lds")
        elif kind == "v":
            g(f"    buffer_load_dwordx4 v{24+(n&1)}, {srd(S_V)}, s63 offen offset:{n*1024}{NT} lds")
        elif kind == "wo":
            g(f"""    s_add_u32 m0, s64, {L_WO}
    s_nop 0
    buffer_load_dwordx4 v{26+(t&1)}, {srd(S_WO)}, s63 offen{cfg.wnt} lds""")
        else:
            g(f"""    s_mov_b32 m0, {L_W2 + t*1024}
    s_nop 0
    buffer_load_dwordx4 v{26+(t&1)}, {srd(S_W2)}, s63 offen{cfg.wnt} lds""")
        st["issued"] += 1
        if cfg.earlyn > 0 and i == cfg.earlyn - 1:
            g("    s_branch L_loader_main")
            g.a = sec["ld_main"]
            if cfg.align4k: g(".p2align 12")
            g("L_loader_main:")
            loader_rest()
    if cfg.gatemask:
        advance(N)
        g("    s_endpgm\nL_ungated:")
        st.update(saved)
        for i, (kind, t, n) in enumerate(seq):
            if i < 128 + cfg.wgate: continue
            if kind == "wo":
                g(f"""    s_add_u32 s63, s65, {t}
    s_and_b32 s63, s63, 15
    s_lshl_b32 s64, s63, 10
    s_lshl_b32 s63, s63, 12
    s_add_u32 s63, s63, s60""")
            else:
                g(f"    s_add_u32 s63, s62, {t*4096}")
            advance(i + 1 - win(i))
            if kind == "wo":
                g(f"""    s_add_u32 m0, s64, {L_WO}
    s_nop 0
    buffer_load_dwordx4 v{26+(t&1)}, {srd(S_WO)}, s63 offen{cfg.wnt} lds""")
            else:
                g(f"""    s_mov_b32 m0, {L_W2 + t*1024}
    s_nop 0
    buffer_load_dwordx4 v{26+(t&1)}, {srd(S_W2)}, s63 offen{cfg.wnt} lds""")
            st["issued"] += 1
    if cfg.buddy:
        g(f"""    s_xor_b32 s66, s{S_J}, {cfg.buddy}
    s_lshr_b32 s67, s66, 2
    s_lshl_b32 s68, s{S_HKV}, 3
    s_add_u32 s67, s67, s68               ; rb'
    s_and_b32 s68, s66, 3
    s_lshl_b32 s68, s68, 8                ; cbk'*256
    s_lshl_b32 s69, s67, 16
    s_add_u32 s69, s69, s68               ; wo soffset
    s_mul_i32 s70, s67, {28*1024}
    s_add_u32 s70, s70, s68               ; w2 soffset
    v_lshlrev_b32 v28, 10, v0             ; row l
    v_lshrrev_b32 v29, 1, v0
    v_min_u32 v29, 27, v29
    v_lshlrev_b32 v29, 10, v29
    v_and_b32 v30, 1, v0
    v_lshl_add_u32 v29, v30, 7, v29
    buffer_load_dword v31, v29, {srd(S_W2)}, s70 offen
    buffer_load_dword v32, v28, {srd(S_WO)}, s69 offen
    buffer_load_dword v33, v28, {srd(S_WO)}, s69 offen offset:128""")
        st["issued"] += 3
    advance(N)
    if cfg.xbar: g("    s_barrier")
    if cfg.stamps: stamp_out(g)
    g("""    s_endpgm
L_end:
    s_endpgm""")
    g.a = main
    for k in ("ld_early", "p1q", "compute", "others", "helper", "ld_main"):
        g(sec[k].text())
    g(f""".section .rodata,"a"
.p2align 6
.amdhsa_kernel {KNAME}
  .amdhsa_next_free_vgpr {152 if cfg.stamps else 144}
  .amdhsa_next_free_sgpr 102
  .amdhsa_accum_offset {152 if cfg.stamps else 144}
  .amdhsa_group_segment_fixed_size 0
  .amdhsa_kernarg_size 96
  .amdhsa_user_sgpr_count 2
  .amdhsa_user_sgpr_kernarg_segment_ptr 1
  .amdhsa_system_sgpr_workgroup_id_x 1
.end_amdhsa_kernel
""")
    open(path, "w").write(hazard.fix(g.a.text(), True))

def parse(cfg, args):
    for a in args:
        k, v = a.split("=")
        cur = getattr(cfg, k)
        if isinstance(cur, bool): v = v in ("1", "True", "true")
        elif isinstance(cur, int): v = int(v, 0)
        elif k in ("nt", "wnt"): v = " " + v if v else ""
        setattr(cfg, k, v)
    return cfg

if __name__ == "__main__":
    gen(parse(Cfg(), sys.argv[2:]), sys.argv[1])
```
